```python
import torch

def _softmax(x, axis=-1):
    return torch.softmax(x, dim=axis)

def _gelu(x):
    return torch.nn.functional.gelu(x, approximate='tanh')

def _silu(x):
    return torch.nn.functional.silu(x)

def _sigmoid(x):
    return torch.sigmoid(x)

def _layernorm(x, axis=-1, eps=1e-05):
    m = x.mean(dim=axis, keepdim=True)
    v = x.var(dim=axis, keepdim=True, unbiased=False)
    return (x - m) / torch.sqrt(v + eps)

def _scatter_add(tgt, idx, src, axis=0):
    return tgt.clone().index_add_(axis, idx, src)

def _segment_sum(src, seg, n):
    out = torch.zeros((n,) + src.shape[1:], dtype=src.dtype)
    return out.index_add_(0, seg, src)

def _pad(x, pw):
    flat = tuple((v for pair in reversed(pw) for v in pair))
    return torch.nn.functional.pad(x, flat)
kernel_name = 'gated_mix__memory_aug_recurrent_mem_tr__glu_gated_swiglu__prompt'

def setup_inputs():

    _w = lambda a: (lambda t: t.to(torch.bfloat16) if t.is_floating_point() else t)(torch.as_tensor(a))

    def _A_setup():
        B, S, Dm = (1, 2048, 1024)
        H, Dh = (32, 128)
        M, seg = (8, 32)
        seg = min(seg, S)
        S = S // seg * seg
        return {'x': _w((lambda *s: torch.randn(*s, dtype=torch.bfloat16) * 0.05)(B, S, Dm)), 'mem0': _w((lambda *s: torch.randn(*s, dtype=torch.bfloat16) * 0.4)(B, M, Dm)), 'Wq': _w((lambda *s: torch.randn(*s, dtype=torch.bfloat16) * 6.4)(Dm, H, Dh) * Dm ** (-0.5)), 'Wk': _w((lambda *s: torch.randn(*s, dtype=torch.bfloat16) * 6.4)(Dm, H, Dh) * Dm ** (-0.5)), 'Wv': _w((lambda *s: torch.randn(*s, dtype=torch.bfloat16) * 0.4)(Dm, H, Dh) * Dm ** (-0.5)), 'Wo': _w((lambda *s: torch.randn(*s, dtype=torch.bfloat16) * 0.4)(H, Dh, Dm) * (H * Dh) ** (-0.5)), 'seg_len': seg}
    _A_in = _A_setup()

    def _B_setup():
        B, S, D, F = (1, 2048, 1024, 3584)
        return {'x': _w((lambda *s: torch.randn(*s, dtype=torch.bfloat16) * 0.05)(B, S, D)), 'w1': _w((lambda *s: torch.randn(*s, dtype=torch.bfloat16) * 1.6)(D, F) * (2.0 / D) ** 0.5), 'w3': _w((lambda *s: torch.randn(*s, dtype=torch.bfloat16) * 1.6)(D, F) * (2.0 / D) ** 0.5), 'w2': _w((lambda *s: torch.randn(*s, dtype=torch.bfloat16) * 1.6)(F, D) * (2.0 / F) ** 0.5)}
    _B_in = _B_setup()
    return {'A_x': _A_in['x'], 'A_mem0': _A_in['mem0'], 'A_Wq': _A_in['Wq'], 'A_Wk': _A_in['Wk'], 'A_Wv': _A_in['Wv'], 'A_Wo': _A_in['Wo'], 'A_seg_len': _A_in['seg_len'], 'B_x': _B_in['x'], 'B_w1': _B_in['w1'], 'B_w3': _B_in['w3'], 'B_w2': _B_in['w2'], 'gate_w': _w((lambda *s: torch.randn(*s, dtype=torch.bfloat16) * 0.05)(1024) * 16.0)}

def reference(A_x, A_mem0, A_Wq, A_Wk, A_Wv, A_Wo, A_seg_len, B_x, B_w1, B_w3, B_w2, gate_w):

    def _A_ref(x, mem0, Wq, Wk, Wv, Wo, seg_len):
        B, S, Dm = x.shape
        H, Dh = (Wq.shape[1], Wq.shape[2])
        M = mem0.shape[1]
        scale = Dh ** (-0.5)
        n_seg = S // seg_len
        L = M + seg_len
        idx = torch.arange(L)
        mask = (idx[:, None] < M) | (idx[:, None] >= idx[None, :])
        mem = mem0
        outs = []
        for s in range(n_seg):
            xs = x[:, s * seg_len:(s + 1) * seg_len, :].clone()
            h = torch.concatenate([mem, xs], axis=1)
            q = torch.einsum('btd,dhe->bhte', h, Wq)
            k = torch.einsum('btd,dhe->bhte', h, Wk)
            v = torch.einsum('btd,dhe->bhte', h, Wv)
            scores = torch.einsum('bhqe,bhke->bhqk', q, k) * scale
            scores = torch.where(mask[None, None], scores, -1000000000.0)
            p = _softmax(scores, axis=-1)
            o = torch.einsum('bhqk,bhke->bhqe', p, v)
            o = torch.einsum('bhte,hed->btd', o, Wo)
            mem = o[:, :M, :].clone()
            outs.append(o[:, M:, :])
        return torch.concatenate(outs, axis=1)

    def _B_ref(x, w1, w3, w2):
        gate = torch.einsum('bsd,df->bsf', x, w1)
        up = torch.einsum('bsd,df->bsf', x, w3)
        h = _silu(gate) * up
        out = torch.einsum('bsf,fd->bsd', h, w2)
        return out
    x = A_x
    g = _sigmoid((x * gate_w).sum(-1, keepdims=True))
    a = _A_ref(x, A_mem0, A_Wq, A_Wk, A_Wv, A_Wo, A_seg_len)
    b = _B_ref(x, B_w1, B_w3, B_w2)
    return g * a + (1 - g) * b
```

```python
from layout import *
from util import *
from gemm2 import *
import gemm2

C_ANAT = 192; C_ABLK = 196; C_B8 = 200; C_B7 = 204; C_B2 = 208; C_RDN = 212; C_RDB = 213
C_BRN = 216; C_BRS = 224
V_TK = 232; V_SIG = 233; V_ONE = 234; V_ZERO = 235; V_DEP = 236; V_GADDR = 237; V_GV = 240
S_WS = 4; S_DBG = 6; S_GRP = 10
S_PX = 64; S_PQ = 66; S_PK = 68; S_PV = 70; S_P1 = 72; S_P3 = 74; S_P2 = 76; S_TAB = 78
S_CURI = 26; S_NXTI = 27; S_PF = 28; S_OUT = 30; S_SIGN = 32; S_BUD = 40
S_TY = 33; S_RB = 34; S_CT = 35
SCALE_LOG2E = f2u(128 ** -0.5 * math.log2(math.e))

def decode(o, item):
    o(f's_and_b32 s{S_TY}, s{item}, 15')
    o(f's_bfe_u32 s{S_RB}, s{item}, 0x40004')
    o(f's_bfe_u32 s{S_CT}, s{item}, 0x80008')

def set_dma(o, P):
    o(f's_lshr_b32 s55, s{S_W}, 1')
    o(f's_cmp_eq_u32 s{S_TY}, {T_DB}')
    o(f's_cbranch_scc1 {P}_db')
    o(f's_lshl_b32 s54, s{S_RB}, 19')
    s_add64(o, S_AB, S_PX, 's54')
    o(f's_mov_b32 s{S_AST}, 64')
    for i in range(4): o(f'v_mov_b32 v{G_AOFF+i}, v{C_ANAT+i}')
    o(f's_cmp_eq_u32 s{S_TY}, {T_UP}')
    o(f's_cbranch_scc1 {P}_up')
    o(f's_cmp_eq_u32 s{S_TY}, {T_K}')
    o(f's_cselect_b64 s[56:57], s[{S_PK}:{S_PK+1}], s[{S_PQ}:{S_PQ+1}]')
    o(f's_cmp_eq_u32 s{S_TY}, {T_V}')
    o(f's_cselect_b64 s[56:57], s[{S_PV}:{S_PV+1}], s[56:57]')
    s_expr(o, 54, [(S_CT, 512), (55, 256)])
    s_add64(o, S_BB, 56, 's54')
    o(f's_mov_b32 s{S_BST}, {32*8192}')
    for i in range(4): o(f'v_mov_b32 v{G_BOFF+i}, v{C_B8+i}')
    o(f's_branch {P}_e')
    o(f'{P}_up:')
    o('s_cmp_eq_u32 s55, 1')
    o(f's_cselect_b64 s[56:57], s[{S_P3}:{S_P3+1}], s[{S_P1}:{S_P1+1}]')
    o(f's_lshl_b32 s54, s{S_CT}, 8')
    s_add64(o, S_BB, 56, 's54')
    o(f's_mov_b32 s{S_BST}, {32*7168}')
    for i in range(4): o(f'v_mov_b32 v{G_BOFF+i}, v{C_B7+i}')
    o(f's_branch {P}_e')
    o(f'{P}_db:')
    s_expr(o, 54, [(S_RB, 8*112*1024)], const=WS_H - 3072)
    s_add64(o, S_AB, S_WS, 's54')
    o(f's_mov_b32 s{S_AST}, 1024')
    s_expr(o, 54, [(S_CT, 512), (55, 256)])
    s_add64(o, S_BB, S_P2, 's54')
    o(f's_mov_b32 s{S_BST}, {32*2048}')
    for i in range(4):
        o(f'v_mov_b32 v{G_AOFF+i}, v{C_ABLK+i}')
        o(f'v_mov_b32 v{G_BOFF+i}, v{C_B2+i}')
    o(f'{P}_e:')

def poll_ge(o, lbl, addr_v, base, target, off=0):
    o(f'{lbl}:')
    o(f'global_load_dword v{V_DEP}, v{addr_v}, s[{base}:{base+1}] offset:{off} sc1')
    o(f's_sub_u32 s{S_BUD}, s{S_BUD}, 1')
    o('s_cbranch_scc1 L_bulk_bail')
    o('s_waitcnt vmcnt(0)')
    o(f'v_cmp_gt_u32 vcc, {target}, v{V_DEP}')
    o(f's_cbranch_vccz {lbl}_ok')
    o('s_sleep 8')
    o(f's_branch {lbl}')
    o(f'{lbl}_ok:')

SIG = (f's_mov_b64 exec, 1\n    global_atomic_add v{V_SIG}, v{V_ONE}, s[{S_DBG}:{S_DBG+1}]\n    s_mov_b64 exec, -1')

def fetch_issue(o):
    pass

def gen_bulk(o, tables):
    o('L_bulk:')
    for reg, nm in ((S_WS, 'ws'), (S_DBG, 'dbg'), (S_PX, 'x'), (S_PQ, 'Wq'), (S_PK, 'Wk'), (S_PV, 'Wv'), (S_P1, 'w1'), (S_P3, 'w3'), (S_P2, 'w2')):
        o(f's_load_dwordx2 s[{reg}:{reg+1}], s[0:1], {KA[nm]}')
    o('v_lshrrev_b32 v2, 6, v0')
    o(f's_mov_b32 s{S_BUD}, 0x200000')
    o(f'v_readfirstlane_b32 s{S_W}, v2')
    o(f's_getpc_b64 s[{S_TAB}:{S_TAB+1}]')
    o('L_bulk_pc:')
    o(f's_add_u32 s{S_TAB}, s{S_TAB}, L_table-L_bulk_pc')
    o(f's_addc_u32 s{S_TAB+1}, s{S_TAB+1}, 0')
    n = len(tables[0][0])
    s_expr(o, 54, [(S_GRP, 32*n*4), (11, n*4)])
    s_add64(o, S_TAB, S_TAB, 's54')
    o(f's_load_dwordx2 s[{S_CURI}:{S_CURI+1}], s[{S_TAB}:{S_TAB+1}], 0')
    o(f's_lshl_b32 s{S_MA}, s{S_W}, 12')
    o(f's_mov_b32 s{S_MB}, s{S_MA}')
    tid_expr(o, G_L16, [(0, 6, 16)])
    o(f'v_add_u32 v{G_L16B}, 4096, v{G_L16}')
    a_nat(o, C_ANAT, C_RDN)
    a_blk48(o, C_ABLK, C_RDB, 112*1024)
    b_off(o, C_B8, False, 8192)
    b_off(o, C_B7, False, 7168)
    b_off(o, C_B2, True, 2048)
    b_rd(o, C_BRN, False)
    b_rd(o, C_BRS, True)
    o(f'v_mov_b32 v{V_ONE}, 1')
    o(f'v_mov_b32 v{V_ZERO}, 0')
    o(f'v_mov_b32 v{V_SIG}, {D_DUMMY*4}')
    tid_expr(o, V_GADDR, [(0, 4, 8), (7, 1, 512)], const=WS_G)
    o(f's_mov_b32 s{S_PF}, 0')
    o('s_waitcnt lgkmcnt(0)')
    o('L_bulk_item:')
    decode(o, S_CURI)
    o(f's_cmp_eq_u32 s{S_TY}, {T_END}')
    o('s_cbranch_scc1 L_bulk_end')
    o(f's_cmp_eq_u32 s{S_TY}, {T_ATT}')
    o('s_cbranch_scc1 L_att')
    o(f's_cmp_lg_u32 s{S_PF}, 0')
    o('s_cbranch_scc1 L_bulk_go')
    o('s_waitcnt vmcnt(0)')
    o(SIG)
    o(f'v_mov_b32 v{V_SIG}, {D_DUMMY*4}')
    o(f's_cmp_eq_u32 s{S_TY}, {T_DB}')
    o('s_cbranch_scc0 L_bulk_nodep')
    o(f's_lshr_b32 s54, s{S_RB}, 1')
    o('s_lshl_b32 s54, s54, 2')
    o(f'v_mov_b32 v{G_T}, s54')
    poll_ge(o, 'L_bulk_dep', G_T, S_DBG, 112, D_H*4)
    o('L_bulk_nodep:')
    set_dma(o, 'L_sd0')
    o('s_barrier')
    prologue_dma(o, S88, 'sc1')
    o('s_waitcnt vmcnt(0)')
    o('L_bulk_go:')
    o(f's_lshr_b32 s55, s{S_W}, 1')
    o(f's_and_b32 s56, s{S_W}, 1')
    o(f's_cmp_eq_u32 s{S_TY}, {T_DB}')
    o('s_cbranch_scc1 L_g_db')
    o(f'v_mov_b32 v{G_ARD}, v{C_RDN}')
    o(f's_mov_b32 s{S_CNT}, 6')
    o(f's_cmp_eq_u32 s{S_TY}, {T_UP}')
    o('s_cbranch_scc1 L_g_up')
    for i in range(8): o(f'v_mov_b32 v{G_BRD+i}, v{C_BRN+i}')
    o(f's_sub_u32 s57, s{S_TY}, 1')
    s_expr(o, 54, [(57, 16*MB), (S_RB, 1 << 21), (55, 1 << 20), (S_CT, 16384), (56, 8192)])
    s_add64(o, S_OUT, S_WS, 's54')
    o(f's_cmp_eq_u32 s{S_TY}, {T_Q}')
    o(f's_cselect_b32 s54, {D_Q}, {D_KV}')
    o(f's_add_u32 s{S_SIGN}, s54, s{S_RB}')
    o(f's_cmp_eq_u32 s{S_TY}, {T_V}')
    o('s_cbranch_scc1 L_g_v')
    o('s_branch L_g_tr')
    o('L_g_up:')
    for i in range(8): o(f'v_mov_b32 v{G_BRD+i}, v{C_BRS+i}')
    s_expr(o, 54, [(S_RB, 16*112*1024), (55, 8*112*1024), (S_CT, 4096), (56, 2048)], const=WS_H)
    s_add64(o, S_OUT, S_WS, 's54')
    o(f's_add_u32 s{S_SIGN}, s{S_RB}, {D_H}')
    def hook(P):
        o(f's_mov_b32 s36, s{S_TY}')
        decode(o, S_NXTI)
        o(f's_mov_b32 s{S_PF}, 1')
        o(f's_sub_u32 s54, s{S_TY}, 1')
        o('s_cmp_lt_u32 s54, 4')
        o(f's_cbranch_scc1 {P}_pf')
        o(f's_cmp_eq_u32 s{S_TY}, {T_DB}')
        o(f's_cbranch_scc0 {P}_no')
        o(f'v_readfirstlane_b32 s54, v{V_DEP}')
        o('s_cmp_ge_u32 s54, 112')
        o(f's_cbranch_scc1 {P}_pf')
        o(f'{P}_no:')
        o(f's_mov_b32 s{S_PF}, 0')
        o(f's_mov_b32 s{S_TY}, {T_Q}')
        o(f's_mov_b32 s{S_RB}, 0')
        o(f's_mov_b32 s{S_CT}, 0')
        o(f'{P}_pf:')
        set_dma(o, P + '_sd')
    def depload():
        return [f's_bfe_u32 s54, s{S_NXTI}, 0x30005\n    s_lshl_b32 s54, s54, 2\n    v_mov_b32 v{V_DEP}, s54\n    global_load_dword v{V_DEP}, v{V_DEP}, s[{S_DBG}:{S_DBG+1}] offset:{D_H*4} sc1']
    def finish(nst):
        o(f's_lshl_b32 s54, s{S_SIGN}, 2')
        o(f'v_mov_b32 v{V_SIG}, s54')
        o(f's_waitcnt vmcnt({nst})')
        o('s_branch L_bulk_adv')
    o('L_g_tr:')
    body_first(o, S88, True, '', [SIG] + depload())
    body_mid(o, 'L_g_tr', S88, True)
    hook('L_h_tr')
    body_last(o, S88, True)
    o(f's_cmp_eq_u32 s36, {T_UP}')
    o('s_cbranch_scc1 L_e_up')
    finish(epi_blocked(o, 'qk', S_OUT))
    o('L_e_up:')
    finish(epi_up(o, S_OUT))
    o('L_g_v:')
    body_first(o, S88, False, '', [SIG] + depload())
    body_mid(o, 'L_g_v', S88, False)
    hook('L_h_v')
    body_last(o, S88, False)
    finish(epi_blocked(o, 'v', S_OUT))
    o('L_g_db:')
    o(f'v_mov_b32 v{G_ARD}, v{C_RDB}')
    for i in range(8): o(f'v_mov_b32 v{G_BRD+i}, v{C_BRN+i}')
    o(f's_mov_b32 s{S_CNT}, 26')
    s_expr(o, 54, [(S_RB, 8*32*1024), (55, 4*32*1024), (S_CT, 8192), (56, 4096)], const=WS_T2)
    s_add64(o, S_OUT, S_WS, 's54')
    o(f's_mov_b32 s{S_SIGN}, {D_DUMMY}')
    o(f's_lshl_b32 s54, s{S_RB}, 10')
    s_add64(o, 58, S_WS, 's54')
    poll_ge(o, 'L_db_init', V_ZERO, S_DBG, 128, D_INIT*4)
    gl = [f'global_load_dwordx2 {vr(V_GV+2*mt,2)}, v{V_GADDR}, s[58:59] offset:{mt*128} sc1' for mt in range(4)]
    for i in gl: o(i)
    body_first(o, S48, True, 'sc1', [SIG] + depload())
    body_mid(o, 'L_g_db', S48, True, 'sc1')
    hook('L_h_db')
    body_last(o, S48, True)
    finish(epi_db(o, S_OUT, V_GV))
    o('L_bulk_adv:')
    o(f's_mov_b32 s{S_CURI}, s{S_NXTI}')
    s_add64(o, S_TAB, S_TAB, 4)
    o(f's_load_dword s{S_NXTI}, s[{S_TAB}:{S_TAB+1}], 4')
    o('s_waitcnt lgkmcnt(0)')
    o('s_branch L_bulk_item')
    gen_att(o)
    o('L_bulk_bail:')
    o(f'global_atomic_add v{V_ZERO}, v{V_ONE}, s[{S_DBG}:{S_DBG+1}] offset:{D_BAIL*4}')
    o('L_bulk_end:')
    o('s_waitcnt vmcnt(0)')
    o(SIG)
    o('s_waitcnt vmcnt(0)')
    o('s_endpgm')

def gen_att(o):
    T = G_T
    o('L_att:')
    o('s_waitcnt vmcnt(0)')
    o(SIG)
    o(f'v_mov_b32 v{V_SIG}, {D_DUMMY*4}')
    s_expr(o, 36, [(S_CT, 4), (S_W, 1)])
    poll_ge(o, 'L_att_i', V_ZERO, S_DBG, 128, D_INIT*4)
    o(f's_lshr_b32 s54, s{S_RB}, 1')
    o('s_lshl_b32 s54, s54, 2')
    o(f'v_mov_b32 v{T}, s54')
    poll_ge(o, 'L_att_q', T, S_DBG, 64, D_Q*4)
    s_expr(o, 54, [(36, 512)], const=WS_PROG)
    tid_expr(o, T, [(0, 2, 128)], sregs=[54])
    s_expr(o, 37, [(S_RB, 4)], const=4)
    poll_ge(o, 'L_att_p', T, S_WS, 's37')
    s_expr(o, 54, [(S_RB, 4*32*8192), (36, 8192)])
    s_add64(o, 44, S_WS, 's54')
    s_add64(o, 46, 44, WS_K)
    s_add64(o, 48, 44, WS_VT)
    s_expr(o, 54, [(S_RB, 4*32*2048), (36, 2048)], const=WS_KM)
    s_add64(o, 50, S_WS, 's54')
    s_add64(o, 52, 50, WS_VMT - WS_KM)
    s_expr(o, 54, [(S_RB, 8*128*1024), (36, 4096)], const=WS_O)
    s_add64(o, S_OUT, S_WS, 's54')
    VKM = 60; VVM = 61; MSK = 56; SC = 62; ONES = 52
    tid_expr(o, VKM, [(4, 2, 128), (2, 2, 32), (0, 1, 16)])
    tid_expr(o, VVM, [(0, 6, 4)])
    tid_expr(o, T, [(4, 2, 4)])
    o(f'v_and_b32 v{T+1}, 15, v0')
    o(f'v_mov_b32 v{T+2}, 0xff800000')
    for i in range(4):
        o(f'v_add_u32 v{T+3}, {i}, v{T}')
        o(f'v_cmp_le_u32 vcc, v{T+3}, v{T+1}')
        o(f'v_cndmask_b32 v{MSK+i}, v{T+2}, 0, vcc')
        o(f'v_mov_b32 v{ONES+i}, 0x3f803f80')
    o(f'v_mov_b32 v{SC}, {SCALE_LOG2E:#x}')
    o(f'v_mov_b32 v{SC+1}, {SCALE_LOG2E:#x}')
    for b in range(2):
        for et in range(8): o(f'v_accvgpr_write_b32 a{128*b + 112 + 2*et + 1}, 0')
    NL = 8 + 8 + 4 + 8 + 8
    def loads(b):
        B = 128*b
        for k in range(8): o(f'global_load_dwordx4 {ar(B+4*k,4)}, v{G_L16+(k>>2)}, s[44:45] offset:{(k&3)*1024} sc1')
        for k in range(8): o(f'global_load_dwordx4 {ar(B+32+4*k,4)}, v{G_L16+(k>>2)}, s[46:47] offset:{(k&3)*1024} sc1')
        for k in range(4): o(f'global_load_dwordx4 {ar(B+96+4*k,4)}, v{VKM}, s[50:51] offset:{k*512} sc1')
        for k in range(8): o(f'global_load_dwordx4 {ar(B+64+4*k,4)}, v{G_L16+(k>>2)}, s[48:49] offset:{(k&3)*1024} sc1')
        for k in range(8): o(f'global_load_dword a{B+112+2*k}, v{VVM}, s[52:53] offset:{k*256} sc1')
        for r in (44, 46, 48): s_add64(o, r, r, 32*8192)
        for r in (50, 52): s_add64(o, r, r, 32*2048)
    S = 64
    Pp = 84
    Lr = 96
    O = 128
    D = 104
    def compute(b, st, more):
        B = 128*b
        Q = lambda t, e: ar(B + 4*(t*4+e), 4)
        K = lambda t, e: ar(B + 32 + 4*(t*4+e), 4)
        V = lambda et, n=4: ar(B + 64 + 4*et, n)
        KM = lambda e: ar(B + 96 + 4*e, 4)
        VM = lambda et: ar(B + 112 + 2*et, 2)
        o(f's_waitcnt vmcnt({st + 16})')
        if more: loads(b ^ 1)
        for e in range(4):
            for (d, a, q, c0) in ((S, K(0, e), Q(0, e), vr(MSK, 4)), (S+4, KM(e), Q(0, e), '0'), (S+8, K(0, e), Q(1, e), '0'), (S+12, K(1, e), Q(1, e), vr(MSK, 4)), (S+16, KM(e), Q(1, e), '0')):
                o(f'v_mfma_f32_16x16x32_bf16 {vr(d,4)}, {a}, {q}, {c0 if e == 0 else vr(d,4)}')
        for tq in range(2):
            vals = [S, S+1, S+2, S+3, S+4, S+5] if tq == 0 else list(range(S+8, S+18))
            m = T + 2*tq
            o(f'v_max3_f32 v{m}, v{vals[0]}, v{vals[1]}, v{vals[2]}')
            for i in range(3, len(vals)-1, 2): o(f'v_max3_f32 v{m}, v{m}, v{vals[i]}, v{vals[i+1]}')
            o(f'v_max_f32 v{m}, v{m}, v{vals[-1]}')
        for sw in ('32', '16'):
            for tq in range(2): o(f'v_mov_b32 v{T+2*tq+1}, v{T+2*tq}')
            for tq in range(2): o(f'v_permlane{sw}_swap_b32 v{T+2*tq}, v{T+2*tq+1}')
            for tq in range(2): o(f'v_max_f32 v{T+2*tq}, v{T+2*tq}, v{T+2*tq+1}')
        for tq in range(2): o(f'v_mul_f32 v{T+2*tq}, v{SC}, v{T+2*tq}')
        for tq in range(2):
            prs = [S, S+2, S+4] if tq == 0 else [S+8, S+10, S+12, S+14, S+16]
            dst = [Pp, Pp+1, Pp+2] if tq == 0 else [Pp+4, Pp+5, Pp+6, Pp+7, Pp+8]
            for r in prs: o(f'v_pk_fma_f32 {vr(r,2)}, {vr(r,2)}, {vr(SC,2)}, {vr(T+2*tq,2)} op_sel_hi:[1,1,0] neg_lo:[0,0,1] neg_hi:[0,0,1]')
            for r in prs:
                o(f'v_exp_f32 v{r}, v{r}'); o(f'v_exp_f32 v{r+1}, v{r+1}')
            for r, d in zip(prs, dst): o(f'v_cvt_pk_bf16_f32 v{d}, v{r}, v{r+1}')
        o(f's_waitcnt vmcnt({st + (NL if more else 0)})')
        o(f'v_mfma_f32_16x16x32_bf16 {vr(Lr,4)}, {vr(ONES,4)}, {vr(Pp,4)}, 0')
        o(f'v_mfma_f32_16x16x32_bf16 {vr(Lr+4,4)}, {vr(ONES,4)}, {vr(Pp+4,4)}, 0')
        for et in range(8):
            o(f'v_mfma_f32_16x16x16_bf16 {vr(O+4*et,4)}, {V(et,2)}, {vr(Pp,2)}, 0')
        o(f'v_mfma_f32_16x16x16_bf16 {vr(Lr+4,4)}, {vr(ONES,2)}, {vr(Pp+8,2)}, {vr(Lr+4,4)}')
        for et in range(8):
            o(f'v_mfma_f32_16x16x16_bf16 {vr(O+4*et,4)}, {VM(et)}, {vr(Pp+2,2)}, {vr(O+4*et,4)}')
        o(f'v_rcp_f32 v{T}, v{Lr}')
        o(f'v_rcp_f32 v{T+2}, v{Lr+4}')
        for et in range(8):
            o(f'v_mfma_f32_16x16x32_bf16 {vr(O+32+4*et,4)}, {V(et)}, {vr(Pp+4,4)}, 0')
        for et in range(8):
            o(f'v_mfma_f32_16x16x16_bf16 {vr(O+32+4*et,4)}, {VM(et)}, {vr(Pp+8,2)}, {vr(O+32+4*et,4)}')
        for tq in range(2):
            for q in range(4):
                r = O + 32*tq + 8*q
                for i in range(4): o(f'v_pk_mul_f32 {vr(r+2*i,2)}, {vr(r+2*i,2)}, {vr(T+2*tq,2)} op_sel_hi:[1,0]')
                pack8(o, D + 4*q, r)
                o(f'global_store_dwordx4 v{G_L16}, {vr(D+4*q,4)}, s[{S_OUT}:{S_OUT+1}] offset:{q*1024} sc1')
            s_add64(o, S_OUT, S_OUT, 128*1024)
    o(f'v_mov_b32 v{Pp+3}, 0')
    o(f'v_mov_b32 v{Pp+9}, 0')
    loads(0)
    compute(0, 0, True)
    compute(1, 8, True)
    compute(0, 8, True)
    compute(1, 8, False)
    o(f's_add_u32 s54, s{S_RB}, {D_O}')
    o('s_lshl_b32 s54, s54, 2')
    o(f'v_mov_b32 v{V_SIG}, s54')
    o(f's_mov_b32 s{S_PF}, 0')
    o('s_branch L_bulk_adv')

def emit_table(o, tables):
    o.L.append('.p2align 4')
    o.L.append('.type L_table,@object')
    o('L_table:')
    for g in tables:
        for lst in g:
            o.L.append('    .long ' + ', '.join(hex(x) for x in lst))
```

```python
from layout import *
from util import *

SCALE_LOG2E = f2u(128 ** -0.5 * math.log2(math.e))
RS = 144; RED_P = 16 * RS; RO_P = 1280
L_RED = 0; L_RV = 9216; L_RO = 13312; L_VMO = 18432; L_KL = 20480
L_XB = 32768; L_PB = 98304
(V_ARD, V_ORD, V_QKWR, V_QKRD, V_OWR, V_CWQ, V_CRD, V_CRD2, V_CRD3, V_MWR, V_LREDW, V_LREDW1, V_LREDR, V_LREDR2,
 V_LRVW, V_LRVR, V_LROW, V_LROR, V_LROR2, V_LVMO, V_IDX, V_LROQ, V_KMWR) = range(1, 24)
V_T = 24; V_STP = 27; V_PROG = 28; V_LVMO2 = 29; V_L16 = 30
V_SENT = 32; V_LKL = 34; V_LVL = 35; V_ONES = 36
V_A = 40; V_D = 56; V_E = 80; V_R = 88; V_QK = 104; V_S = 120; V_C = 120; V_P = 132; V_PUB = 132; V_SC = 138
V_O = 140; V_L = 144; V_VM = 148; V_KD = 150; V_VD = 151; V_VX = 152; V_KX = 160
S_WS = 4; S_DBG = 6; S_X = 10; S_J = 11; S_HEAD = 12; S_ES = 13; S_W = 14; S_STEP = 15
S_CUR = 16; S_NXT = 18; S_RST = 20; S_KB = 22; S_VB = 24; S_KM = 26; S_VM = 28; S_MODE = 30
S_MQ = 32; S_SCALE = 36; S_NOSENT = 37; S_BUD = 40; S_RING = 42; S_XB = 44; S_CC = 62

def gen_chain(o, nsteps=64, stamp=False, DLY=None):
    D0 = dict(a=1, b=0, o=0, c=6, pa=14, po=14, pb=8, d3=8)
    D0.update(DLY or {}); DLY = D0
    stamps = stamp and not DLY.get('noflush')
    def st(k):
        if stamps: o(f"{'s_memrealtime' if DLY.get('rt') else 's_memtime'} s[{64+2*k}:{65+2*k}]")
    def flush():
        if not stamps: return
        o('s_waitcnt lgkmcnt(0)')
        for k in range(12): o(f'v_writelane_b32 v31, s{64+2*k}, {k}')
        o('s_mov_b64 exec, 0xffff')
        o(f'global_store_dword v{V_STP}, v31, s[4:5]')
        o('s_mov_b64 exec, -1')
        o(f'v_add_u32 v{V_STP}, 64, v{V_STP}')
    def nops(n):
        for _ in range(n // 2): o('s_nop 15')
        if n & 1: o('s_nop 7')
    def emit(l):
        for i in l: o(i)
    X = lambda *a, **k: tid_expr(o, *a, **k)
    LANE16 = (0, 6, 16)

    o('L_chain:')
    for reg, nm in ((64, 'Wq'), (66, 'Wk'), (68, 'Wv'), (70, 'Wo'), (72, 'mem0'), (S_XB, 'x'), (74, 'gate')):
        o(f's_load_dwordx2 s[{reg}:{reg+1}], s[0:1], {KA[nm]}')
    o(f's_lshr_b32 s{S_HEAD}, s{S_J}, 2')
    o(f's_lshl_b32 s54, s{S_X}, 3')
    o(f's_add_u32 s{S_HEAD}, s{S_HEAD}, s54')
    o(f's_and_b32 s{S_ES}, s{S_J}, 3')
    o(f's_mov_b32 s{S_BUD}, 0x200000')
    WQ, WO, WT, TRN, TRO = 128, 129, 130, 131, 132
    s_expr(o, 54, [(S_HEAD, 256), (S_ES, 64)])
    X(WQ, [(6, 2, 1 << 21), (2, 4, 8192), (0, 2, 16)], sregs=[54])
    s_expr(o, 54, [(S_X, 1 << 21), (S_J, 64)])
    X(WO, [(6, 2, 1 << 19), (2, 4, 2048), (0, 2, 16)], sregs=[54])
    o(f's_lshl_b32 s76, s{S_W}, 15')
    o(f's_and_b32 s54, s{S_W}, 1')
    o(f's_lshr_b32 s55, s{S_W}, 1')
    s_expr(o, 77, [(54, 16384), (55, 131072)])
    o('s_waitcnt lgkmcnt(0)')
    def wdma(sb, va, step, sbase, off):
        o(f'v_mov_b32 v{WT}, v{va}')
        for it in range(16):
            o(f's_add_u32 m0, s{sbase}, {off + it*1024}')
            o('s_nop 0')
            o(f'global_load_lds_dwordx4 v{WT}, s[{sb}:{sb+1}]')
            if it < 15: o(f'v_add_u32 v{WT}, {step}, v{WT}')
    wdma(66, WQ, 16*8192, 76, 0)
    wdma(68, WQ, 16*8192, 76, 16384)
    GX = 192; GW = 224
    X(24, [(0, 6, 32)])
    o(f'global_load_dwordx4 {vr(GW,4)}, v24, s[74:75]')
    o(f'global_load_dwordx4 {vr(GW+4,4)}, v24, s[74:75] offset:16')
    s_expr(o, 54, [(S_X, 32*16*2048), (S_J, 16*2048), (S_W, 4*2048)])
    s_add64(o, 56, S_XB, 's54')
    for k in range(4):
        for h in range(2):
            o(f'global_load_dwordx4 {vr(GX+8*k+4*h,4)}, v24, s[56:57] offset:{(k&1)*2048 + h*16}')
        if k == 1: s_add64(o, 56, 56, 4096)
    X(V_L16, [LANE16])
    s_expr(o, 54, [(S_X, 16384)])
    X(V_ARD, [(6, 2, 4096), LANE16], const=R_MEM, sregs=[54])
    o(f'v_add_u32 v{V_ORD}, {R_OB - R_MEM}, v{V_ARD}')
    s_expr(o, 55, [(S_HEAD, 4096)], const=R_QK)
    o(f'v_add_u32 v{V_QKRD}, s55, v{V_L16}')
    s_expr(o, 56, [(S_ES, 1024)])
    X(V_QKWR, [(0, 8, 4)], sregs=[55, 56])
    s_expr(o, 54, [(S_X, 16384), (S_J, 512)])
    X(V_OWR, [(6, 1, 256), (0, 4, 16), (5, 1, 32), (4, 1, 8)], const=R_OB, sregs=[54])
    X(V_MWR, [(0, 6, 8)], const=R_MEM, sregs=[54])
    o(f's_lshr_b32 s54, s{S_J}, 1')
    o(f's_and_b32 s55, s{S_J}, 1')
    s_expr(o, 56, [(54, 16384), (55, 4096), (S_X, 1024)], const=R_C)
    X(V_CWQ, [(0, 8, 4)], sregs=[56])
    o(f'v_add_u32 v{V_CRD3}, s56, v{V_L16}')
    o(f'v_xor_b32 v{V_CRD}, 1024, v{V_CRD3}')
    o(f'v_xor_b32 v{V_CRD2}, 2048, v{V_CRD3}')
    o(f'v_xor_b32 v{V_CRD3}, 3072, v{V_CRD3}')
    X(V_LREDW, [(6, 2, RED_P), (4, 2, 2*RS), (0, 4, 4)], const=L_RED)
    o(f'v_add_u32 v{V_LREDW1}, {8*RS}, v{V_LREDW}')
    X(V_LREDR, [(3, 1, 8*RS), (4, 2, 2*RS), (2, 1, RS), (1, 1, 64), (6, 2, 16), (0, 1, 8)], const=L_RED)
    X(V_LREDR2, [(2, 3, RS), (1, 1, 64), (5, 1, 16), (0, 1, 8)], const=L_RED + 8*RS)
    s_expr(o, 54, [(S_HEAD, 2048), (S_ES, 512)])
    X(V_KMWR, [(0, 6, 4)], sregs=[54])
    X(V_LVMO2, [(0, 6, 4)], const=L_VMO)
    X(V_LRVW, [(6, 2, 1024), (0, 6, 8)], const=L_RV)
    X(V_LRVR, [(6, 1, 512), (0, 6, 8)], const=L_RV)
    X(V_LVMO, [(0, 7, 4)], const=L_VMO)
    X(V_LROW, [(6, 2, RO_P), (4, 2, 2*RS), (0, 4, 4)], const=L_RO)
    X(V_LROR, [(3, 2, 2*RS), (1, 1, RS), (5, 1, 64), (0, 1, 32), (2, 1, 8)], const=L_RO)
    o(f'v_add_u32 v{V_LROR2}, {2*RO_P}, v{V_LROR}')
    X(V_LROQ, [(5, 2, 2*RS), (3, 1, RS), (7, 1, 64), (2, 1, 32), (4, 1, 8), (0, 1, 4), (1, 1, 16)], const=L_RO)
    s_expr(o, 54, [(S_HEAD, 8192)])
    o(f'v_add_u32 v{V_KD}, s54, v{V_L16}')
    s_expr(o, 55, [(S_ES, 2048)])
    o(f'v_add_u32 v{V_VD}, s55, v{V_KD}')
    o(f'v_add_u32 v{V_LKL}, {L_KL}, v{V_L16}')
    X(V_LVL, [(6, 1, 1024), LANE16], const=L_KL + 8192)
    s_expr(o, 54, [(S_HEAD, 512), (S_ES, 128)], const=WS_PROG)
    o(f'v_mov_b32 v{V_PROG}, s54')
    o('v_bfe_u32 v24, v0, 1, 1')
    o('v_cmp_eq_u32 vcc, 0, v24')
    o('v_mov_b32 v24, 0xeeee')
    o('v_mov_b32 v25, 0x4444')
    o(f'v_cndmask_b32 v{V_IDX}, v24, v25, vcc')
    for i in range(2): o(f'v_mov_b32 v{V_SENT+i}, -1')
    for i in range(4): o(f'v_mov_b32 v{V_ONES+i}, 0x3f803f80')
    o(f's_mov_b32 s{S_MQ}, 0x33333333')
    o(f's_mov_b32 s{S_MQ+1}, 0x33333333')
    o(f's_mov_b32 s{S_SCALE}, {SCALE_LOG2E:#x}')
    o(f's_mov_b32 s{S_NOSENT}, 0xfffffffe')
    o(f'v_mov_b32 v{V_SC}, s{S_SCALE}')
    o(f'v_mov_b32 v{V_SC+1}, s{S_SCALE}')
    o(f'v_mov_b32 v{V_VM}, 0')
    s_add64(o, S_RING, S_WS, WS_RING)
    o(f'v_xor_b32 v24, 8192, v{V_CWQ}')
    for sl in range(4):
        s_add64(o, 16, S_RING, sl*RING_SLOT)
        o(f'global_store_dword v{V_QKWR}, v{V_SENT}, s[16:17] sc1')
        o(f'global_store_dword v{V_CWQ}, v{V_SENT}, s[16:17] sc1')
        o(f'global_store_dword v24, v{V_SENT}, s[16:17] sc1')
        o(f'global_store_dwordx2 v{V_MWR}, {vr(V_SENT,2)}, s[16:17] sc1')
        o(f's_mov_b64 exec, s[{S_MQ}:{S_MQ+1}]')
        o(f'global_store_dwordx2 v{V_OWR}, {vr(V_SENT,2)}, s[16:17] sc1')
        o('s_mov_b64 exec, -1')
    o(f'global_store_dword v{V_PROG}, v{V_VM}, s[4:5] sc1')
    X(TRN, [(4, 2, 8*64), (2, 2, 64), (0, 2, 8)])
    X(TRO, [(5, 1, 16*64), (4, 1, 4*64), (2, 1, 64), (3, 1, 8*64), (0, 2, 8)], sregs=[77])
    o(f'v_add_u32 v{TRN+2}, s77, v{TRN}')
    o(f'v_add_u32 v{TRN}, s76, v{TRN}')
    XD = 156; LXR = 134; LPBW = 135; LPBR = 136; BWR = 137
    o('v_mov_b32 v26, 0x78')
    o('v_bfe_u32 v24, v0, 4, 2')
    o('v_lshlrev_b32 v24, 1, v24')
    o('v_lshrrev_b32 v24, v24, v26')
    o('v_xor_b32 v24, v24, v0')
    o('v_and_b32 v24, 3, v24')
    X(XD, [(2, 4, 2048), (6, 2, 512)], const=4096)
    o(f'v_lshl_add_u32 v{XD}, v24, 4, v{XD}')
    for i in range(1, 4): o(f'v_subrev_u32 v{XD+i}, {960*i}, v{XD}')
    o('v_bfe_u32 v24, v0, 2, 2')
    o('v_lshlrev_b32 v24, 1, v24')
    o('v_lshrrev_b32 v24, v24, v26')
    o('v_bfe_u32 v25, v0, 4, 2')
    o('v_xor_b32 v24, v24, v25')
    o('v_and_b32 v24, 3, v24')
    X(LXR, [(0, 4, 64), (6, 2, 16384)], const=L_XB)
    o(f'v_lshl_add_u32 v{LXR}, v24, 4, v{LXR}')
    o(f's_sub_u32 s{S_XB}, s{S_XB}, 4096')
    o(f's_subb_u32 s{S_XB+1}, s{S_XB+1}, 0')
    s_expr(o, 50, [(S_W, 16384)], const=L_XB)
    X(LPBW, [(6, 2, 8192), LANE16], const=L_PB)
    X(LPBR, [(6, 2, 2048), LANE16], const=L_PB)
    s_expr(o, 54, [(S_W, 4096), (S_ES, 1024)], const=WS_K)
    s_expr(o, 55, [(S_W, 1024), (S_ES, 2048)], const=WS_VT - 2048)
    o(f's_cmp_lt_u32 s{S_W}, 2')
    o('s_cselect_b32 s54, s54, s55')
    o(f'v_add_u32 v{BWR}, s54, v{V_KD}')
    def wread(T0, addr, off, natural):
        for t in range(2):
            for c in range(4):
                for m in range(4):
                    row = 64*c + 32*(m >> 1) + (4 if natural else 2)*(m & 1)
                    o(f'ds_read_b64_tr_b16 {ar(((T0+t)*4+c)*8 + 2*m, 2)}, v{addr} offset:{off + row*64 + t*32}')
                o('s_waitcnt lgkmcnt(8)')
    o('s_waitcnt vmcnt(0)')
    wread(2, TRN, 0, True)
    wread(4, TRN, 16384, True)
    o('s_waitcnt lgkmcnt(0)')
    o('s_barrier')
    def xdma():
        for g in range(4):
            o(f's_add_u32 m0, s50, {g*4096}')
            s_add64(o, 56, S_XB, (g >> 1)*32768 + (g & 1)*256)
            for i in range(4): o(f'global_load_lds_dwordx4 v{XD+i}, s[56:57] offset:{i*1024}')
        s_add64(o, S_XB, S_XB, 65536)
    xdma()
    wdma(64, WQ, 16*8192, 77, 0)
    WU = 232
    for k in range(8):
        o(f'v_lshlrev_b32 v{WU+2*k}, 16, v{GW+k}')
        o(f'v_and_b32 v{WU+2*k+1}, 0xffff0000, v{GW+k}')
    for r in range(4):
        A = 88 + 2*r
        for k in range(8):
            x = GX + 8*r + k
            o(f'v_lshlrev_b32 v24, 16, v{x}')
            o(f'v_and_b32 v25, 0xffff0000, v{x}')
            o(f'v_pk_mul_f32 v[24:25], v[24:25], {vr(WU+2*k,2)}')
            o('v_cvt_pk_bf16_f32 v26, v24, v25')
            if k == 0:
                o(f'v_lshlrev_b32 v{A}, 16, v26')
                o(f'v_and_b32 v{A+1}, 0xffff0000, v26')
            else:
                o('v_lshlrev_b32 v24, 16, v26')
                o('v_and_b32 v25, 0xffff0000, v26')
                o(f'v_pk_add_f32 {vr(A,2)}, {vr(A,2)}, v[24:25]')
        o(f'v_add_f32 v{A}, v{A}, v{A+1}')
    for dpp in ('quad_perm:[1,0,3,2]', 'quad_perm:[2,3,0,1]', 'row_half_mirror', 'row_mirror'):
        for r in range(4): o(f'v_add_f32_dpp v{88+2*r}, v{88+2*r}, v{88+2*r} {dpp} row_mask:0xf bank_mask:0xf')
    for sw in ('16', '32'):
        for r in range(4): o(f'v_mov_b32 v{89+2*r}, v{88+2*r}')
        for r in range(4): o(f'v_permlane{sw}_swap_b32 v{88+2*r}, v{89+2*r}')
        for r in range(4): o(f'v_add_f32 v{88+2*r}, v{88+2*r}, v{89+2*r}')
    o(f's_mov_b32 s54, {0xbfb8aa3b:#x}')
    for r in range(4):
        A = 88 + 2*r
        o(f'v_cvt_pk_bf16_f32 v{A}, v{A}, v{A}')
        o(f'v_and_b32 v{A}, 0xffff0000, v{A}')
        o(f'v_mul_f32 v{A}, s54, v{A}')
        o(f'v_exp_f32 v{A}, v{A}')
        o(f'v_add_f32 v{A}, 1.0, v{A}')
        o(f'v_rcp_f32 v{A}, v{A}')
        o(f'v_cvt_pk_bf16_f32 v{A}, v{A}, v{A}')
        o(f'v_and_b32 v{A}, 0xffff0000, v{A}')
        o(f'v_sub_f32 v{A+1}, 1.0, v{A}')
        o(f'v_cvt_pk_bf16_f32 v{A+1}, v{A+1}, v{A+1}')
        o(f'v_and_b32 v{A+1}, 0xffff0000, v{A+1}')
    s_expr(o, 54, [(S_X, 32*128), (S_J, 128), (S_W, 32)], const=WS_G)
    o('v_mov_b32 v24, s54')
    o('s_mov_b64 exec, 1')
    o('global_store_dwordx4 v24, v[88:91], s[4:5] sc1')
    o('global_store_dwordx4 v24, v[92:95], s[4:5] offset:16 sc1')
    o('s_mov_b64 exec, -1')
    XF = 192; AC = 88
    o('s_mov_b32 s51, 0')
    o(f's_mov_b64 s[52:53], s[4:5]')
    o('L_ci_kv:')
    o('s_waitcnt vmcnt(0)')
    for f in range(16): o(f'ds_read_b128 {vr(XF+4*f,4)}, v{LXR} offset:{f*1024}')
    o('s_cmp_eq_u32 s51, 3')
    o('s_cbranch_scc0 L_ci_kv1')
    wread(0, TRN+2, 0, True)
    o('s_waitcnt lgkmcnt(0)')
    wdma(70, WO, 16*2048, 77, 0)
    o('L_ci_kv1:')
    o('s_waitcnt lgkmcnt(0)')
    o('s_cmp_eq_u32 s51, 7')
    o('s_cbranch_scc1 L_ci_kv2')
    xdma()
    o('L_ci_kv2:')
    for ks in range(8):
        for rt in range(2):
            xf = vr(XF + 4*(rt*8+ks), 4)
            for t in range(2):
                for isv in range(2):
                    acc = vr(AC + 4*(isv*4 + (rt*2+t if not isv else t*2+rt)), 4)
                    w = ar(((2+2*isv+t)*4 + (ks >> 1))*8 + 4*(ks & 1), 4)
                    A, B = (xf, w) if isv else (w, xf)
                    o(f'v_mfma_f32_16x16x32_bf16 {acc}, {A}, {B}, {"0" if ks == 0 else acc}')
    o('s_barrier')
    for i in range(8): o(f'ds_write_b128 v{LPBW}, {vr(AC+4*i,4)} offset:{i*1024}')
    o('s_waitcnt lgkmcnt(0)')
    o('s_barrier')
    for tl in range(2):
        for p in range(4): o(f'ds_read_b128 {vr(V_KX + 16*tl + 4*p, 4)}, v{LPBR} offset:{p*8192 + tl*1024}')
    def sum4(R):
        for h in range(2):
            o(f'v_pk_add_f32 {vr(R+2*h,2)}, {vr(R+2*h,2)}, {vr(R+4+2*h,2)}')
            o(f'v_pk_add_f32 {vr(R+8+2*h,2)}, {vr(R+8+2*h,2)}, {vr(R+12+2*h,2)}')
        for h in range(2): o(f'v_pk_add_f32 {vr(R+2*h,2)}, {vr(R+2*h,2)}, {vr(R+8+2*h,2)}')
    for tl in range(2):
        o(f's_waitcnt lgkmcnt({4*(1-tl)})')
        R = V_KX + 16*tl
        sum4(R)
        o(f'v_cvt_pk_bf16_f32 v{V_O+2*tl}, v{R}, v{R+1}')
        o(f'v_cvt_pk_bf16_f32 v{V_O+2*tl+1}, v{R+2}, v{R+3}')
    o(f'global_store_dwordx4 v{BWR}, {vr(V_O,4)}, s[52:53] sc1')
    s_add64(o, 52, 52, 32*8192)
    o('s_add_u32 s51, s51, 1')
    o('s_cmp_lt_u32 s51, 8')
    o('s_cbranch_scc1 L_ci_kv')
    wread(6, TRO, 0, False)
    X(24, [(2, 2, 4096), (0, 1, 2048), (6, 2, 512), (4, 2, 32), (1, 1, 4)])
    for c in range(4):
        for q in range(4): o(f'global_load_dword v{V_A+4*c+q}, v24, s[72:73] offset:{c*128 + q*8}')
    o('s_waitcnt vmcnt(0) lgkmcnt(0)')
    o('s_barrier')
    o(f's_cmp_eq_u32 s{S_W}, 0')
    o('s_cbranch_scc0 L_ci_e')
    o('s_mov_b64 exec, 1')
    o('v_mov_b32 v24, 1')
    o('v_mov_b32 v25, 0')
    o(f'global_atomic_add v25, v24, s[6:7] offset:{D_INIT*4}')
    o('s_mov_b64 exec, -1')
    o('L_ci_e:')
    s_add64(o, S_KB, S_WS, WS_K)
    s_add64(o, S_VB, S_WS, WS_VT)
    s_add64(o, S_KM, S_WS, WS_KM)
    s_add64(o, S_VM, S_WS, WS_VMT)
    o(f'v_mov_b32 v{V_P+4}, 0')
    o('v_mov_b32 v25, 0')
    o('L_ci_wait:')
    o(f'global_load_dword v24, v25, s[6:7] offset:{D_INIT*4} sc1')
    o(f's_sub_u32 s{S_BUD}, s{S_BUD}, 1')
    o('s_cbranch_scc1 L_chain_bail')
    o('s_waitcnt vmcnt(0)')
    o('v_cmp_gt_u32 vcc, 128, v24')
    o('s_cbranch_vccnz L_ci_wait')
    o(f'global_load_dwordx4 {vr(V_R,4)}, v25, s[6:7] offset:{D_MASK*4} sc1')
    o(f'global_load_dword v{V_R+4}, v25, s[6:7] offset:{D_POL*4} sc1')
    o(f'v_add_u32 v24, 4096, v{V_KD}')
    for t in range(2):
        for e in range(4): o(f'global_load_dwordx4 {vr(V_KX + (t*4+e)*4, 4)}, v{V_KD if t == 0 else 24}, s[{S_KB}:{S_KB+1}] offset:{e*1024} sc1')
    X(25, [(6, 1, 1024)])
    o(f'v_add_u32 v25, v25, v{V_VD}')
    o(f'global_load_dwordx4 {vr(V_VX,4)}, v25, s[{S_VB}:{S_VB+1}] sc1')
    s_add64(o, S_KB, S_KB, 32*8192)
    s_add64(o, S_VB, S_VB, 32*8192)
    o('s_waitcnt vmcnt(0)')
    o(f'v_bcnt_u32_b32 v24, v{V_R}, 0')
    for i in range(1, 4): o(f'v_bcnt_u32_b32 v24, v{V_R+i}, v24')
    o(f'v_readfirstlane_b32 s{S_MODE}, v24')
    if 'pol' in DLY:
        o(f'v_mov_b32 v24, {DLY["pol"]*8192}')
    else:
        o(f'v_and_b32 v24, 0xffff, v{V_R+4}')
        o(f'v_lshrrev_b32 v25, 16, v{V_R+4}')
        o('v_cmp_gt_u32 vcc, v25, v24')
        o('v_mov_b32 v25, 8192')
        o('v_cndmask_b32 v24, 0, v25, vcc')
    for r in (V_CWQ, V_CRD, V_CRD2, V_CRD3): o(f'v_xor_b32 v{r}, v24, v{r}')
    o(f's_mov_b32 s{S_STEP}, 0')
    if stamp:
        o('s_memtime s[60:61]')
        s_expr(o, 54, [(S_X, 16384), (S_J, 8*16384)], const=WS_STAMP)
        X(V_STP, [(6, 2, 4096), (0, 6, 4)], sregs=[54])
        for k in range(12): st(k)
    for i in range(16): o(f'v_min_u32 v{V_A+i}, s{S_NOSENT}, v{V_A+i}')
    def prep():
        for i in range(24): o(f'v_mov_b32 v{V_D+i}, 0')
    prep()
    for k, sb in enumerate((S_CUR, S_NXT, S_RST)): s_add64(o, sb, S_RING, k*RING_SLOT)
    o(f's_cmp_eq_u32 s{S_MODE}, 4')
    o('s_cbranch_scc0 L_cs_a_go')
    o('s_branch L_cf_a_go')

    def issue(regs, addr, n=4, pace=0):
        for c in range(n):
            o(f'global_load_dwordx4 {vr(regs+4*c,4)}, {addr(c)} sc1')
            if c < n-1 and pace: o(f's_nop {pace-1}')
    utails = []
    Tm = V_T + 2
    def sstream(P, tag, regs, addr, body, n=4, simple=False):
        L = f'{P}_{tag}'
        def ck(c):
            r = regs + 4*c
            return [f'v_max3_u32 v{Tm}, v{r}, v{r+1}, v{r+2}', f'v_max_u32 v{Tm}, v{Tm}, v{r+3}', f'v_cmp_eq_u32 vcc, -1, v{Tm}']
        def reload(c):
            return ['s_mov_b64 exec, vcc', f'global_load_dwordx4 {vr(regs+4*c,4)}, {addr(c)} sc1', 's_mov_b64 exec, -1']
        o(f'{L}_go:')
        if simple:
            o('s_waitcnt vmcnt(0)')
            rs = list(range(regs, regs + 4*n))
            o(f'v_max3_u32 v{Tm}, v{rs[0]}, v{rs[1]}, v{rs[2]}')
            for i in range(3, len(rs)-1, 2): o(f'v_max3_u32 v{Tm}, v{Tm}, v{rs[i]}, v{rs[i+1]}')
            o(f'v_max_u32 v{Tm}, v{Tm}, v{rs[-1]}')
            o(f'v_cmp_eq_u32 vcc, -1, v{Tm}')
            o(f's_cbranch_vccz {L}_ok')
            issue(regs, addr, n)
            o(f's_sub_u32 s{S_BUD}, s{S_BUD}, 1')
            o(f's_cbranch_scc0 {L}_go')
            o('s_branch L_chain_bail')
            o(f'{L}_ok:')
            for c in range(n): emit(body(c))
            return
        def weave(ins, nxt):
            nxt = list(nxt)
            per = -(-len(nxt) // max(1, len(ins) - 1))
            for i in ins:
                o(i)
                for _ in range(per):
                    if nxt: o(nxt.pop(0))
            emit(nxt)
        def name(q): return f'{L}_q' + ''.join(map(str, q))
        def nextchk(q): return [f's_waitcnt vmcnt({len(q)-1})'] + ck(q[0]) if q else []
        todo = []; seen = set()
        def block(q):
            while True:
                o(f'{name(q)}:')
                seen.add(tuple(q))
                o(f's_cbranch_vccnz {name(q)}x')
                todo.append(list(q))
                c = q[0]; q = q[1:]
                weave(body(c), nextchk(q))
                if not q: return None
                if tuple(q) in seen: return name(q)
        q0 = list(range(n))
        emit(nextchk(q0))
        block(q0)
        o(f'{L}_done:')
        def emit_tail():
            while todo:
                q = todo.pop(0)
                o(f'{name(q)}x:')
                emit(reload(q[0]))
                if q[0] == max(q):
                    o(f's_sub_u32 s{S_BUD}, s{S_BUD}, 1')
                    o('s_cbranch_scc1 L_chain_bail')
                q2 = q[1:] + [q[0]]
                emit(nextchk(q2))
                if tuple(q2) in seen: o(f's_branch {name(q2)}')
                else:
                    tgt = block(q2)
                    o(f's_branch {tgt or L + "_done"}')
        utails.append(emit_tail)
    def sum4x2(R):
        o(f'v_pk_add_f32 {vr(R,2)}, {vr(R,2)}, {vr(R+2,2)}')
        o(f'v_pk_add_f32 {vr(R+4,2)}, {vr(R+4,2)}, {vr(R+6,2)}')
        o(f'v_pk_add_f32 {vr(R,2)}, {vr(R,2)}, {vr(R+4,2)}')
    def smf(D, c, T):
        return f'v_smfmac_f32_16x16x64_bf16 {vr(D,4)}, {vr(V_A+4*c,4)}, {ar((T*4+c)*8,8)}, v{V_IDX}'
    def rotate():
        o(f's_mov_b64 s[{S_CUR}:{S_CUR+1}], s[{S_NXT}:{S_NXT+1}]')
        o(f's_mov_b64 s[{S_NXT}:{S_NXT+1}], s[{S_RST}:{S_RST+1}]')
        o(f's_add_u32 s54, s{S_STEP}, 2')
        o('s_and_b32 s54, s54, 3')
        o('s_lshl_b32 s54, s54, 19')
        s_add64(o, S_RST, S_RING, 's54')
    CUR = sr(S_CUR); RST = sr(S_RST)
    def loop(P, sc):
        simple = sc != ''
        o(f'{P}_top:')
        o('s_barrier')
        st(0)
        nops(DLY['a'])
        aA = lambda c: f'v{V_ARD}, {CUR} offset:{c*1024}'
        issue(V_A, aA, pace=DLY['pa'])
        sstream(P, 'a', V_A, aA, lambda c: [smf(V_D+4*T, c, T) for T in range(4)], simple=simple)
        st(1)
        for T in range(4):
            b = V_D + 4*T
            o(f'v_pk_add_f32 {vr(b,2)}, {vr(b,2)}, {vr(b+2,2)}')
            o(f'ds_write2_b32 v{V_LREDW if T < 2 else V_LREDW1}, v{b}, v{b+1} offset0:{(T&1)*16} offset1:{(T&1)*16+RS//4}')
        vm = [(T, c) for c in range(4) for T in (4, 5)]
        for (T, c) in vm[:3]: o(smf(V_D+4*T, c, T))
        o('s_waitcnt lgkmcnt(0)')
        o('s_barrier')
        for p in range(4): o(f'ds_read_b64 {vr(V_R+2*p,2)}, v{V_LREDR} offset:{p*RED_P}')
        for (T, c) in vm[3:]: o(smf(V_D+4*T, c, T))
        o('s_waitcnt lgkmcnt(0)')
        sum4x2(V_R)
        o(f'v_cvt_pk_bf16_f32 v{V_R}, v{V_R}, v{V_R+1}')
        o(f'v_min_u32 v{V_R}, s{S_NOSENT}, v{V_R}')
        o(f'global_store_dword v{V_QKWR}, v{V_R}, {CUR} {sc}')
        st(2)
        for t in range(2):
            b = V_D + 16 + 4*t
            o(f'v_pk_add_f32 {vr(b,2)}, {vr(b,2)}, {vr(b+2,2)}')
            o(f'ds_write_b64 v{V_LRVW}, {vr(b,2)} offset:{t*512}')
        o(f's_cmp_lt_u32 s{S_W}, 2')
        o(f's_cbranch_scc0 {P}_w23')
        o(f's_cmp_eq_u32 s{S_STEP}, {nsteps-1}')
        o(f's_cbranch_scc1 {P}_last01')
        o('s_waitcnt lgkmcnt(0)')
        o('s_barrier')
        nops(DLY['b'])
        aB = lambda c: f'v{V_QKRD}, {CUR} offset:{c*1024}'
        issue(V_QK, aB, pace=DLY['pb'])
        o('s_barrier')
        o(f'ds_read_b32 v{V_VM+1}, v{V_LVMO}')
        for i in range(12): o(f'v_mov_b32 v{V_S+i}, 0')
        def bodyB(e):
            r = []
            for t in range(3):
                A = vr(V_KX + (t*4+e)*4, 4) if t < 2 else vr(V_QK+4*e, 4)
                r.append(f'v_mfma_f32_16x16x32_bf16 {vr(V_S+4*t,4)}, {A}, {vr(V_QK+4*e,4)}, {vr(V_S+4*t,4)}')
            return r
        sstream(P, 'b', V_QK, aB, bodyB, simple=simple)
        st(3)
        S = V_S
        o(f'v_max3_f32 v{V_T}, v{S}, v{S+1}, v{S+2}')
        o(f'v_max3_f32 v{V_T}, v{V_T}, v{S+3}, v{S+4}')
        o(f'v_max3_f32 v{V_T}, v{V_T}, v{S+5}, v{S+6}')
        o(f'v_max3_f32 v{V_T}, v{V_T}, v{S+7}, v{S+10}')
        o(f'v_max_f32 v{V_T}, v{V_T}, v{S+11}')
        for sw in ('32', '16'):
            o(f'v_mov_b32 v{V_T+1}, v{V_T}')
            o(f'v_permlane{sw}_swap_b32 v{V_T}, v{V_T+1}')
            o(f'v_max_f32 v{V_T}, v{V_T}, v{V_T+1}')
        o(f'v_mul_f32 v{V_T}, s{S_SCALE}, v{V_T}')
        for i in (0, 1, 2, 3, 5):
            o(f'v_pk_fma_f32 {vr(S+2*i,2)}, {vr(S+2*i,2)}, {vr(V_SC,2)}, {vr(V_T,2)} op_sel_hi:[1,1,0] neg_lo:[0,0,1] neg_hi:[0,0,1]')
        for i in range(8): o(f'v_exp_f32 v{S+i}, v{S+i}')
        for i in range(4): o(f'v_cvt_pk_bf16_f32 v{V_P+i}, v{S+2*i}, v{S+2*i+1}')
        for i in (10, 11): o(f'v_exp_f32 v{S+i}, v{S+i}')
        o(f'v_mfma_f32_16x16x32_bf16 {vr(V_L,4)}, {vr(V_ONES,4)}, {vr(V_P,4)}, 0')
        o(f'v_cvt_pk_bf16_f32 v{V_P+5}, v{S+10}, v{S+11}')
        o(f'v_mfma_f32_16x16x32_bf16 {vr(V_O,4)}, {vr(V_VX,4)}, {vr(V_P,4)}, 0')
        o('s_waitcnt lgkmcnt(0)')
        o(f'v_mfma_f32_16x16x16_bf16 {vr(V_L,4)}, {vr(V_ONES,2)}, {vr(V_P+4,2)}, {vr(V_L,4)}')
        o(f'v_mfma_f32_16x16x16_bf16 {vr(V_O,4)}, {vr(V_VM,2)}, {vr(V_P+4,2)}, {vr(V_O,4)}')
        o(f's_mov_b64 exec, s[{S_MQ}:{S_MQ+1}]')
        o(f'v_rcp_f32 v{V_T}, v{V_L}')
        o(f'v_pk_mul_f32 {vr(V_O,2)}, {vr(V_O,2)}, {vr(V_T,2)} op_sel_hi:[1,0]')
        o(f'v_pk_mul_f32 {vr(V_O+2,2)}, {vr(V_O+2,2)}, {vr(V_T,2)} op_sel_hi:[1,0]')
        o(f'v_cvt_pk_bf16_f32 v{V_O}, v{V_O}, v{V_O+1}')
        o(f'v_cvt_pk_bf16_f32 v{V_O+1}, v{V_O+2}, v{V_O+3}')
        o(f'v_min_u32 v{V_O}, s{S_NOSENT}, v{V_O}')
        o(f'v_min_u32 v{V_O+1}, s{S_NOSENT}, v{V_O+1}')
        o(f'global_store_dwordx2 v{V_OWR}, {vr(V_O,2)}, {CUR} {sc}')
        o('s_mov_b64 exec, -1')
        st(4)
        o(f's_branch {P}_po')
        o(f'{P}_last01:')
        o('s_waitcnt lgkmcnt(0)')
        o('s_barrier')
        o('s_barrier')
        o('s_branch L_chain_done')
        o(f'{P}_w23:')
        o('s_waitcnt lgkmcnt(0)')
        o('s_barrier')
        for p in range(4): o(f'ds_read_b64 {vr(V_R+2*p,2)}, v{V_LRVR} offset:{p*1024}')
        o('s_waitcnt lgkmcnt(0)')
        sum4x2(V_R)
        o(f'v_cvt_pk_bf16_f32 v{V_VM+1}, v{V_R}, v{V_R+1}')
        o(f'ds_write_b32 v{V_LVMO}, v{V_VM+1}')
        o(f's_cmp_eq_u32 s{S_W}, 2')
        o('s_waitcnt lgkmcnt(0)')
        o('s_barrier')
        o(f's_cbranch_scc1 {P}_w2a')
        for hf in range(2):
            for p in range(4): o(f'ds_read_b64 {vr(V_R+8*hf+2*p,2)}, v{V_LREDR2} offset:{p*RED_P + hf*32}')
        o(f'ds_read2_b32 {vr(V_PUB+2,2)}, v{V_LVMO2} offset0:0 offset1:64')
        prep()
        o('s_waitcnt lgkmcnt(0)')
        for hf in range(2):
            sum4x2(V_R+8*hf)
            o(f'v_cvt_pk_bf16_f32 v{V_PUB+hf}, v{V_R+8*hf}, v{V_R+8*hf+1}')
        o(f's_cmp_eq_u32 s{S_STEP}, {nsteps-1}')
        o(f's_cbranch_scc1 {P}_last3')
        nops(DLY['d3'])
        for h in range(2):
            o(f's_mov_b32 m0, {L_KL + h*4096}')
            if h: s_add64(o, 56, S_KB, 4096)
            for i in range(4): o(f'global_load_lds_dwordx4 v{V_KD}, s[{56 if h else S_KB}:{57 if h else S_KB+1}] offset:{i*1024} sc1')
        o(f's_mov_b32 m0, {L_KL + 8192}')
        s_add64(o, S_KB, S_KB, 32*8192)
        for i in range(2): o(f'global_load_lds_dwordx4 v{V_VD}, s[{S_VB}:{S_VB+1}] offset:{i*1024} sc1')
        s_add64(o, S_VB, S_VB, 32*8192)
        o(f's_branch {P}_po')
        o(f'{P}_w2a:')
        prep()
        o(f's_cmp_eq_u32 s{S_STEP}, {nsteps-1}')
        o('s_cbranch_scc1 L_chain_done')
        if not DLY.get('nodep'):
            o(f's_add_u32 s54, s{S_STEP}, 2')
            o('s_and_b32 s55, s54, 7')
            o(f's_cbranch_scc1 {P}_po')
            o('s_cmp_ge_u32 s54, 64')
            o(f's_cbranch_scc1 {P}_po')
            o('s_lshr_b32 s54, s54, 1')
            o(f'v_mov_b32 v{V_T}, s54')
            o(f'{P}_kvw:')
            o(f'global_load_dword v{V_T+1}, v{V_T}, s[6:7] offset:{D_KV*4} sc1')
            o(f's_sub_u32 s{S_BUD}, s{S_BUD}, 1')
            o('s_cbranch_scc1 L_chain_bail')
            o('s_waitcnt vmcnt(0)')
            o(f'v_cmp_gt_u32 vcc, 128, v{V_T+1}')
            o(f's_cbranch_vccnz {P}_kvw')
        o(f'{P}_po:')
        o('s_barrier')
        for i in range(8): o(f'v_mov_b32 v{V_E+i}, 0')
        o(f's_add_u32 s{S_STEP}, s{S_STEP}, 1')
        nops(DLY['o'])
        aO = lambda c: f'v{V_ORD}, {CUR} offset:{c*1024}'
        issue(V_A, aO, pace=DLY['po'])
        sstream(P, 'o', V_A, aO, lambda c: [smf(V_E+4*t, c, 6+t) for t in range(2)], simple=simple)
        st(5)
        for t in range(2):
            b = V_E + 4*t
            o(f'v_pk_add_f32 {vr(b,2)}, {vr(b,2)}, {vr(b+2,2)}')
            o(f'ds_write2_b32 v{V_LROW}, v{b}, v{b+1} offset0:{t*16} offset1:{t*16+RS//4}')
        o('s_waitcnt lgkmcnt(0)')
        o('s_barrier')
        st(6)
        o(f'ds_read2st64_b32 {vr(V_E,2)}, v{V_LROQ} offset0:0 offset1:5')
        o(f'ds_read2st64_b32 {vr(V_E+2,2)}, v{V_LROQ} offset0:10 offset1:15')
        o(f's_cmp_lt_u32 s{S_W}, 2')
        o('s_waitcnt lgkmcnt(0)')
        o(f'v_add_f32 v{V_E}, v{V_E}, v{V_E+1}')
        o(f'v_add_f32 v{V_E+2}, v{V_E+2}, v{V_E+3}')
        o(f'v_add_f32 v{V_E}, v{V_E}, v{V_E+2}')
        o(f'v_min_u32 v{V_E}, s{S_NOSENT}, v{V_E}')
        o(f'global_store_dword v{V_CWQ}, v{V_E}, {CUR} sc1')
        st(7)
        o(f'global_store_dword v{V_QKWR}, v{V_SENT}, {RST} {sc}')
        o(f'global_store_dword v{V_CWQ}, v{V_SENT}, {RST} sc1')
        o(f's_cbranch_scc0 {P}_w23c')
        o(f's_mov_b64 exec, s[{S_MQ}:{S_MQ+1}]')
        o(f'global_store_dwordx2 v{V_OWR}, {vr(V_SENT,2)}, {RST} {sc}')
        o('s_mov_b64 exec, -1')
        prep()
        for k in range(8): o(f'ds_read_b128 {vr(V_KX+4*k,4)}, v{V_LKL} offset:{k*1024}')
        o(f'ds_read_b128 {vr(V_VX,4)}, v{V_LVL}')
        rotate()
        flush()
        o(f's_branch {P}_top')
        o(f'{P}_w23c:')
        o(f's_cmp_eq_u32 s{S_W}, 3')
        o(f's_cbranch_scc0 {P}_w2c')
        def prog(sub):
            o(f'v_mov_b32 v{V_T}, s{S_STEP}')
            if sub: o(f'v_add_u32 v{V_T}, {sub}, v{V_T}')
            o('s_mov_b64 exec, 1')
            o(f'global_store_dword v{V_PROG}, v{V_T}, s[4:5] sc1')
            o('s_mov_b64 exec, -1')
        def pub():
            for hf in range(2):
                o(f'global_store_dword v{V_KMWR}, v{V_PUB+hf}, s[{S_KM}:{S_KM+1}] offset:{hf*256} sc1')
                o(f'global_store_dword v{V_KMWR}, v{V_PUB+2+hf}, s[{S_VM}:{S_VM+1}] offset:{hf*256} sc1')
            s_add64(o, S_KM, S_KM, 32*2048)
            s_add64(o, S_VM, S_VM, 32*2048)
        prog(-1)
        pub()
        rotate()
        flush()
        o(f's_branch {P}_top')
        o(f'{P}_last3:')
        pub()
        o('s_waitcnt vmcnt(0)')
        prog(1)
        o('s_branch L_chain_done')
        o(f'{P}_w2c:')
        o(f'ds_read2_b64 {vr(V_R,4)}, v{V_LROR} offset0:0 offset1:2')
        o(f'ds_read2_b64 {vr(V_R+4,4)}, v{V_LROR} offset0:{RO_P//8} offset1:{RO_P//8+2}')
        o(f'ds_read2_b64 {vr(V_R+8,4)}, v{V_LROR2} offset0:0 offset1:2')
        o(f'ds_read2_b64 {vr(V_R+12,4)}, v{V_LROR2} offset0:{RO_P//8} offset1:{RO_P//8+2}')
        o(f'global_store_dwordx2 v{V_MWR}, {vr(V_SENT,2)}, {RST} {sc}')
        o(f's_mov_b64 s[{S_CC}:{S_CC+1}], {CUR}')
        rotate()
        flush()
        o('s_waitcnt lgkmcnt(0)')
        sum4(V_R)
        nops(DLY['c'])
        st(8)
        crd = [V_CRD, V_CRD2, V_CRD3]
        aC = lambda c: f'v{crd[c]}, {sr(S_CC)}'
        issue(V_C, aC, n=3)
        C = V_C
        if not simple:
            o('s_waitcnt vmcnt(2)')
            o(f'v_max3_u32 v{Tm}, v{C}, v{C+1}, v{C+2}')
            for h in range(2): o(f'v_pk_add_f32 {vr(V_R+4+2*h,2)}, {vr(V_R+2*h,2)}, {vr(C+2*h,2)}')
            o('s_waitcnt vmcnt(1)')
            o(f'v_max3_u32 v{Tm}, v{Tm}, v{C+3}, v{C+4}')
            o(f'v_max3_u32 v{Tm}, v{Tm}, v{C+5}, v{C+6}')
            o('s_waitcnt vmcnt(0)')
            o(f'v_max3_u32 v{Tm}, v{Tm}, v{C+7}, v{C+8}')
            o(f'v_max3_u32 v{Tm}, v{Tm}, v{C+9}, v{C+10}')
            o(f'v_max_u32 v{Tm}, v{Tm}, v{C+11}')
            o(f'v_cmp_eq_u32 vcc, -1, v{Tm}')
            for h in range(2): o(f'v_pk_add_f32 {vr(V_R+8+2*h,2)}, {vr(C+4+2*h,2)}, {vr(C+8+2*h,2)}')
            for h in range(2): o(f'v_pk_add_f32 {vr(V_R+4+2*h,2)}, {vr(V_R+4+2*h,2)}, {vr(V_R+8+2*h,2)}')
            for h in range(2): o(f'v_cvt_pk_bf16_f32 v{V_R+4+h}, v{V_R+4+2*h}, v{V_R+5+2*h}')
            for h in range(2): o(f'v_min_u32 v{V_R+4+h}, s{S_NOSENT}, v{V_R+4+h}')
            o(f's_cbranch_vccnz {P}_c_go')
            o(f'global_store_dwordx2 v{V_MWR}, {vr(V_R+4,2)}, {CUR} {sc}')
            st(10)
            o(f's_branch {P}_top')
        sstream(P, 'c', V_C, aC, lambda c: [f'v_pk_add_f32 {vr(V_R+2*h,2)}, {vr(V_R+2*h,2)}, {vr(V_C+2*h,2)}' for h in range(2)] if c == 0 else [], n=3, simple=simple)
        for h in range(2): o(f'v_pk_add_f32 {vr(V_C+4+2*h,2)}, {vr(V_C+4+2*h,2)}, {vr(V_C+8+2*h,2)}')
        for h in range(2): o(f'v_pk_add_f32 {vr(V_R+2*h,2)}, {vr(V_R+2*h,2)}, {vr(V_C+4+2*h,2)}')
        o(f'v_cvt_pk_bf16_f32 v{V_R}, v{V_R}, v{V_R+1}')
        o(f'v_cvt_pk_bf16_f32 v{V_R+1}, v{V_R+2}, v{V_R+3}')
        o(f'v_min_u32 v{V_R}, s{S_NOSENT}, v{V_R}')
        o(f'v_min_u32 v{V_R+1}, s{S_NOSENT}, v{V_R+1}')
        o(f'global_store_dwordx2 v{V_MWR}, {vr(V_R,2)}, {CUR} {sc}')
        st(10)
        o(f's_branch {P}_top')
        for f in utails: f()
        utails.clear()
    loop('L_cf', '')
    loop('L_cs', 'sc1')
    o('L_chain_bail:')
    o('v_mov_b32 v24, 1')
    o('v_mov_b32 v25, 0')
    o(f'global_atomic_add v25, v24, s[6:7] offset:{D_BAIL*4}')
    o('L_chain_done:')
    if stamp:
        o('s_memtime s[90:91]')
        o('s_memrealtime s[92:93]')
        o('s_waitcnt lgkmcnt(0)')
        o('s_sub_u32 s90, s90, s60')
        o(f's_or_b32 s54, s{S_X}, s{S_J}')
        o('s_cbranch_scc1 L_chain_end')
        o('v_mov_b32 v25, s90')
        o(f'v_mov_b32 v24, s{S_BUD}')
        o('v_mov_b32 v26, s92')
        o('v_mov_b32 v27, s94')
        o(f'v_mov_b32 v28, {WS_STAMP - 64}')
        o('global_store_dwordx4 v28, v[24:27], s[4:5]')
        o('L_chain_end:')
    o('s_waitcnt vmcnt(0)')
    o('s_endpgm')
```

```python
from layout import *
from util import *
from gemm2 import *

def gen_da(o):
    T = G_T
    o('s_cmp_ge_u32 s2, 256')
    o('s_cbranch_scc1 L_da_end')
    o(f's_load_dwordx2 s[4:5], s[0:1], {KA["ws"]}')
    o(f's_load_dwordx2 s[6:7], s[0:1], {KA["Wo"]}')
    o(f's_load_dwordx2 s[8:9], s[0:1], {KA["out"]}')
    o('v_lshrrev_b32 v2, 6, v0')
    o('s_and_b32 s10, s2, 7')
    o(f'v_readfirstlane_b32 s{S_W}, v2')
    o('s_lshr_b32 s11, s2, 3')
    o('s_lshr_b32 s12, s10, 1')
    o('s_lshl_b32 s12, s12, 2')
    o('s_and_b32 s54, s11, 3')
    o('s_add_u32 s12, s12, s54')
    o('s_and_b32 s13, s10, 1')
    o('s_lshl_b32 s13, s13, 3')
    o('s_lshr_b32 s54, s11, 2')
    o('s_add_u32 s13, s13, s54')
    tid_expr(o, G_AOFF, [(0, 6, 16), (6, 2, 2*128*1024)])
    o(f'v_add_u32 v{G_AOFF+1}, {128*1024}, v{G_AOFF}')
    o(f'v_bfe_u32 v{T}, v0, 4, 2')
    o(f'v_lshlrev_b32 v{T}, 1, v{T}')
    o(f'v_xor_b32 v{T}, v{T}, v0')
    o(f'v_and_b32 v{T}, 7, v{T}')
    tid_expr(o, G_BOFF, [(3, 3, 2048), (6, 2, 32*2048)])
    o(f'v_lshl_add_u32 v{G_BOFF}, v{T}, 4, v{G_BOFF}')
    for i in range(1, 4): o(f'v_add_u32 v{G_BOFF+i}, {i*(8*2048 - 1024)}, v{G_BOFF}')
    o(f's_lshl_b32 s{S_MA}, s{S_W}, 13')
    o(f's_lshl_b32 s{S_MB}, s{S_W}, 12')
    o(f's_mov_b32 s{S_AST}, 4096')
    o(f's_mov_b32 s{S_BST}, {128*2048}')
    o('s_waitcnt lgkmcnt(0)')
    s_expr(o, 54, [(12, 8*128*1024)], const=WS_O)
    s_add64(o, S_AB, 4, 's54')
    o('s_lshl_b32 s54, s13, 7')
    s_add64(o, S_BB, 6, 's54')
    o(f's_lshr_b32 s55, s{S_W}, 1')
    o(f's_and_b32 s56, s{S_W}, 1')
    tid_expr(o, G_L16, [(0, 6, 16)])
    s_expr(o, 54, [(12, 8*32*1024), (55, 4*32*1024), (13, 2048), (56, 1024)], const=WS_T2)
    s_add64(o, 26, 4, 's54')
    for mt in range(4):
        o(f'global_load_dwordx4 {vr(192+4*mt,4)}, v{G_L16}, s[26:27] sc1')
        if mt < 3: s_add64(o, 26, 26, 32*1024)
    tid_expr(o, 3, [(0, 4, 8), (7, 1, 512)], const=WS_G)
    o('s_lshl_b32 s54, s12, 10')
    s_add64(o, 26, 4, 's54')
    for mt in range(4): o(f'global_load_dwordx2 {vr(208+2*mt,2)}, v3, s[26:27] offset:{mt*128} sc1')
    prologue_dma(o, S42, 'sc1')
    tid_expr(o, G_ARD, [(0, 6, 16), (7, 1, 16384)])
    o(f'v_add_u32 v{G_ARD+1}, 65536, v{G_ARD}')
    tid_expr(o, T, [(3, 2, 32)])
    tid_expr(o, T+2, [(6, 1, 64)])
    o(f'v_xor_b32 v{T}, v{T}, v{T+2}')
    tid_expr(o, T+1, [(2, 4, 128), (0, 2, 8)], const=S42.bbase)
    o(f'v_add_u32 v{G_BRD}, v{T+1}, v{T}')
    o(f'v_xor_b32 v{T}, 32, v{T}')
    o(f'v_add_u32 v{G_BRD+1}, v{T+1}, v{T}')
    tid_expr(o, 3, [(0, 4, 2048), (4, 1, 32), (5, 1, 16), (7, 1, 64*2048), (6, 1, 64)])
    s_expr(o, 54, [(12, 128*2048), (13, 128)])
    s_add64(o, 26, 8, 's54')
    o(f's_mov_b32 s{S_CNT}, 9')
    mainloop42(o, 'L_da')
    for mt in range(4):
        d = G_FA + 4*mt
        rd_acc(o, T, S42.acc(mt, 0), S42.acc(mt, 1))
        pack8(o, T+8, T)
        unpack8(o, T, T+8)
        for i in range(4): o(f'v_pk_mul_f32 {vr(T+2*i,2)}, {vr(T+2*i,2)}, {vr(208+2*mt,2)} op_sel_hi:[1,0]')
        pack8(o, T+8, T)
        unpack8(o, T, T+8)
        unpack8(o, T+16, 192+4*mt)
        for i in range(4): o(f'v_pk_add_f32 {vr(T+2*i,2)}, {vr(T+2*i,2)}, {vr(T+16+2*i,2)}')
        pack8(o, d, T)
        o(f'v_permlane16_swap_b32 v{d}, v{d+2}')
        o(f'v_permlane16_swap_b32 v{d+1}, v{d+3}')
        o(f'global_store_dwordx4 v3, {vr(d,4)}, s[26:27]')
        if mt < 3: s_add64(o, 26, 26, 16*2048)
    o('L_da_end:')
    o('s_endpgm')
```

```python
from layout import *
from util import *

G_AOFF = 4
G_BOFF = 8
G_ARD = 12
G_BRD = 16
G_T = 24
G_FA = 64
G_FB = 96
def fa(s, i): return G_FA + 64*(s & 1) + 4*i
def fb(s, i): return G_FB + 64*(s & 1) + 4*i
S_AB = 16; S_BB = 18; S_AST = 20; S_BST = 21; S_CNT = 22; S_MA = 23; S_MB = 24; S_W = 14

class Shape:
    def __init__(s, MT, NT, KS, NS):
        s.MT, s.NT, s.KS, s.NS = MT, NT, KS, NS
        s.asub = 2*MT*1024
        s.bsub = 32*64*NT
        s.aslot = s.asub*KS; s.bslot = s.bsub*KS
        s.abase = 0; s.bbase = s.aslot*NS
        s.na = s.aslot//4096
        s.nb = s.bslot//4096
        s.nd = s.na + s.nb
        if KS == 1: s.aslot = 16384; s.bbase = 65536
        assert s.bbase + s.bslot*NS <= 163840
    def acc(s, mt, nt): return (mt*s.NT+nt)*4

S88 = Shape(8, 8, 1, 4)
S48 = Shape(4, 8, 1, 4)
S42 = Shape(4, 2, 4, 3)

def dma_group(sh, slot, asc=''):
    r = []
    if sh.KS == 1:
        r.append(f's_add_u32 m0, s{S_MA}, {sh.abase + slot*sh.aslot}')
        r.append(f's_nop 0')
        for i in range(sh.na): r.append(f'global_load_lds_dwordx4 v{G_AOFF+i}, s[{S_AB}:{S_AB+1}] offset:{i*1024} {asc}')
        r.append(f's_add_u32 m0, s{S_MB}, {sh.bbase + slot*sh.bslot}')
        r.append(f's_add_u32 s{S_AB}, s{S_AB}, s{S_AST}')
        r.append(f's_addc_u32 s{S_AB+1}, s{S_AB+1}, 0')
        for i in range(sh.nb): r.append(f'global_load_lds_dwordx4 v{G_BOFF+i}, s[{S_BB}:{S_BB+1}] offset:{i*1024}')
        r.append(f's_add_u32 s{S_BB}, s{S_BB}, s{S_BST}')
        r.append(f's_addc_u32 s{S_BB+1}, s{S_BB+1}, 0')
    else:
        for t in range(2):
            r.append(f's_add_u32 m0, s{S_MA}, {sh.abase + slot*sh.aslot + t*4096}')
            r.append(f's_nop 0')
            for i in range(4): r.append(f'global_load_lds_dwordx4 v{G_AOFF+t}, s[{S_AB}:{S_AB+1}] offset:{i*1024} {asc}')
        r.append(f's_add_u32 m0, s{S_MB}, {sh.bbase + slot*sh.bslot}')
        r.append(f's_add_u32 s{S_AB}, s{S_AB}, s{S_AST}')
        r.append(f's_addc_u32 s{S_AB+1}, s{S_AB+1}, 0')
        for i in range(4): r.append(f'global_load_lds_dwordx4 v{G_BOFF+i}, s[{S_BB}:{S_BB+1}] offset:{i*1024}')
        r.append(f's_add_u32 s{S_BB}, s{S_BB}, s{S_BST}')
        r.append(f's_addc_u32 s{S_BB+1}, s{S_BB+1}, 0')
    return r

def frag_reads(sh, slot, sub, par):
    r = []
    hoff = 4096 if sh.NT == 8 else 2048
    for i in range(max(sh.MT, sh.NT)):
        if i < sh.MT:
            off = slot*sh.aslot + ((i*1024 if sh.MT == 8 else (i >> 1)*4096 + (i & 1)*1024) if sh.KS == 1 else i*4096 + sub*1024)
            r.append(f'ds_read_b128 {vr(fa(par,i),4)}, v{G_ARD + (off >> 16)} offset:{off & 0xffff}')
        if i < sh.NT:
            for h in range(2):
                r.append(f'ds_read_b64_tr_b16 {vr(fb(par,i)+2*h,2)}, v{G_BRD+i} offset:{slot*sh.bslot + sub*sh.bsub + h*hoff}')
    return r

def stage(o, sh, st, transposed, first, dma, last, vm, asc='', extra=None):
    KS = sh.KS
    D = dma_group(sh, (st + sh.NS - (0 if KS == 1 else 1)) % sh.NS, asc) if dma else []
    D = [x for x in D if x != 's_nop 0'] + list(extra or [])
    nm = sh.MT*sh.NT
    for sub in range(KS):
        par = (st*KS + sub) & 1 if KS == 1 else sub & 1
        nxt_in_stage = sub + 1 < KS
        if KS == 1:
            if vm is not None:
                o(f's_waitcnt vmcnt({vm}) lgkmcnt(0)'); o('s_barrier')
            else: o('s_waitcnt lgkmcnt(0)')
        else:
            if sub == KS-1 and vm is not None:
                o(f's_waitcnt vmcnt({vm}) lgkmcnt(0)'); o('s_barrier')
            else: o('s_waitcnt lgkmcnt(0)')
        if nxt_in_stage: R = frag_reads(sh, st, sub+1, par ^ 1)
        elif not last: R = frag_reads(sh, (st+1) % sh.NS, 0, par ^ 1)
        else: R = []
        slots = [[] for _ in range(nm)]
        step = 2 if nm >= 2*len(R) + 8 else 1
        for k, ins in enumerate(R): slots[min(nm-1, step*k)].append(ins)
        if KS == 1:
            pos = 1
            gap = 4 if nm == 64 else 2
            for ins in D:
                slots[min(pos, nm-1)].append(ins)
                pos += gap if ins.startswith('global') else (2 if nm == 64 else 1)
        elif sub < KS-1:
            n = -(-len(D) // (KS-1-sub))
            for k, ins in enumerate(D[:n]): slots[min(nm-1, k)].append(ins)
            D = D[n:]
        k = 0
        for mt in range(sh.MT):
            for nt in range(sh.NT):
                acc = ar(sh.acc(mt, nt), 4)
                A = vr(fa(par, mt), 4); B = vr(fb(par, nt), 4)
                if transposed: A, B = B, A
                o(f'v_mfma_f32_16x16x32_bf16 {acc}, {A}, {B}, {"0" if (first and sub == 0) else acc}')
                for ins in slots[k]: o(ins)
                k += 1

def prologue_dma(o, sh, asc=''):
    n = sh.NS if sh.KS == 1 else sh.NS - 1
    for s in range(n):
        for ins in dma_group(sh, s, asc): o(ins)

def body_first(o, sh, transposed, asc='', sig=None):
    o('s_barrier')
    for ins in frag_reads(sh, 0, 0, 0): o(ins)
    for s in range(4):
        stage(o, sh, s, transposed, s == 0, True, False, 63 if s < 3 else 2*sh.nd, asc, extra=sig if s == 3 else None)

def body_mid(o, P, sh, transposed, asc=''):
    o(f'{P}_mid:')
    for s in range(4): stage(o, sh, s, transposed, False, True, False, 2*sh.nd, asc)
    o(f's_sub_u32 s{S_CNT}, s{S_CNT}, 1')
    o(f's_cmp_lg_u32 s{S_CNT}, 0')
    o(f's_cbranch_scc1 {P}_mid')

def body_last(o, sh, transposed):
    for s in range(4):
        vm = (2-s)*sh.nd + 8*s if s < 3 else 63
        stage(o, sh, s, transposed, False, False, s == 3, vm, extra=[x for x in dma_group(S88, s, 'sc1') if x != 's_nop 0'])

def mainloop42(o, P, asc='sc1'):
    sh = S42; nd = sh.nd
    o(f's_waitcnt vmcnt({nd})')
    o('s_barrier')
    for ins in frag_reads(sh, 0, 0, 0): o(ins)
    for s in range(3): stage(o, sh, s, True, s == 0, True, False, nd, asc)
    o(f'{P}_mid:')
    for s in range(3): stage(o, sh, s, True, False, True, False, nd, asc)
    o(f's_sub_u32 s{S_CNT}, s{S_CNT}, 1')
    o(f's_cmp_lg_u32 s{S_CNT}, 0')
    o(f's_cbranch_scc1 {P}_mid')
    stage(o, sh, 0, True, False, False, False, 0, asc)
    stage(o, sh, 1, True, False, False, True, None, asc)

def swz_f(o, dst, lo, tmp):
    o(f'v_bfe_u32 v{dst}, v0, {lo}, 2')
    o(f'v_lshlrev_b32 v{dst}, 1, v{dst}')
    o(f'v_mov_b32 v{tmp}, 0x78')
    o(f'v_lshrrev_b32 v{dst}, v{dst}, v{tmp}')

def a_nat(o, off, rd, lda=2048):
    T = G_T
    swz_f(o, T, 4, T+1)
    o(f'v_xor_b32 v{T}, v{T}, v0')
    o(f'v_and_b32 v{T}, 3, v{T}')
    tid_expr(o, off, [(2, 4, lda), (6, 2, 64*lda)])
    o(f'v_lshl_add_u32 v{off}, v{T}, 4, v{off}')
    for i in range(1, 4): o(f'v_add_u32 v{off+i}, {i*(16*lda - 1024)}, v{off}')
    swz_f(o, T, 2, T+1)
    o(f'v_bfe_u32 v{T+1}, v0, 4, 2')
    o(f'v_xor_b32 v{T}, v{T}, v{T+1}')
    o(f'v_and_b32 v{T}, 3, v{T}')
    tid_expr(o, rd, [(0, 4, 64), (7, 1, 8192)])
    o(f'v_lshl_add_u32 v{rd}, v{T}, 4, v{rd}')

def a_blk48(o, off, rd, rts):
    tid_expr(o, off, [(0, 6, 16), (6, 2, 2*rts)], const=3072)
    o(f'v_add_u32 v{off+1}, {rts - 1024}, v{off}')
    o(f'v_subrev_u32 v{off+2}, 2048, v{off}')
    o(f'v_add_u32 v{off+3}, {rts - 3072}, v{off}')
    tid_expr(o, rd, [(0, 6, 16), (7, 1, 8192)])

def b_off(o, off, permk, ldb):
    T = G_T
    o(f'v_bfe_u32 v{T}, v0, 4, 2')
    o(f'v_lshlrev_b32 v{T}, 1, v{T}')
    o(f'v_xor_b32 v{T}, v{T}, v0')
    o(f'v_and_b32 v{T}, 15, v{T}')
    o(f'v_lshlrev_b32 v{T}, 4, v{T}')
    o(f'v_xor_b32 v{T+1}, 128, v{T}')
    tid_expr(o, T+2, [(4, 2, ldb), (6, 1, (16 if permk else 4)*ldb)])
    rstep = (4 if permk else 8) * ldb
    o(f'v_add_u32 v{off}, v{T+2}, v{T}')
    o(f'v_add_u32 v{T+1}, v{T+2}, v{T+1}')
    o(f'v_add_u32 v{off+1}, {1*(rstep - 1024)}, v{T+1}')
    o(f'v_add_u32 v{off+2}, {2*(rstep - 1024)}, v{off}')
    o(f'v_add_u32 v{off+3}, {3*(rstep - 1024)}, v{T+1}')

def b_rd(o, rd, split):
    T = G_T
    tid_expr(o, T, [(2, 3, 32)])
    if not split:
        tid_expr(o, T+1, [(2, 4, 256), (0, 2, 8), (6, 1, 8192)], const=65536)
        for t in range(8):
            o(f'v_xor_b32 v{T+2}, {t*32}, v{T}')
            o(f'v_add_u32 v{rd+t}, v{T+1}, v{T+2}')
    else:
        tid_expr(o, T+2, [(6, 1, 128)])
        o(f'v_xor_b32 v{T}, v{T}, v{T+2}')
        tid_expr(o, T+1, [(2, 4, 256), (0, 2, 8)], const=65536)
        for t in range(4):
            o(f'v_xor_b32 v{T+2}, {t*32}, v{T}')
            o(f'v_add_u32 v{rd+t}, v{T+1}, v{T+2}')
            o(f'v_add_u32 v{rd+4+t}, 8192, v{rd+t}')

def rd_acc(o, dst, a0, a1):
    for k, a in enumerate((a0, a1)):
        for i in range(4): o(f'v_accvgpr_read_b32 v{dst+4*k+i}, a{a+i}')
def pack8(o, dst, src):
    for k in range(4): o(f'v_cvt_pk_bf16_f32 v{dst+k}, v{src+2*k}, v{src+2*k+1}')
def unpack8(o, dst, src):
    for k in range(4):
        o(f'v_lshlrev_b32 v{dst+2*k}, 16, v{src+k}')
        o(f'v_and_b32 v{dst+2*k+1}, 0xffff0000, v{src+k}')

G_L16 = 2
G_L16B = 3
def epi_blocked(o, kind, sb):
    T = G_T; sh = S88; n = 0
    for seg in range(4):
        for blk in range(8):
            if kind == 'qk':
                t, e = blk >> 2, blk & 3
                a0, a1 = sh.acc(2*seg+t, 2*e), sh.acc(2*seg+t, 2*e+1)
            else:
                a0, a1 = sh.acc(2*seg, blk), sh.acc(2*seg+1, blk)
            d = G_FA + 4*(n % 16); n += 1
            rd_acc(o, T + 8*(n & 1), a0, a1)
            pack8(o, d, T + 8*(n & 1))
            o(f'global_store_dwordx4 v{G_L16+(blk>>2)}, {vr(d,4)}, s[{sb}:{sb+1}] offset:{(blk&3)*1024} sc1')
        if seg < 3: s_add64(o, sb, sb, 32*8192)
    return 32

def epi_up(o, sb):
    T = G_T; sh = S88; n = 0
    o(f's_mov_b32 s54, {0xbfb8aa3b:#x}')
    for mt in range(8):
        for q in range(2):
            d = G_FA + 4*(n % 16); n += 1
            G = T; U = T + 8; E = T + 16
            rd_acc(o, G, sh.acc(mt, 2*q), sh.acc(mt, 2*q+1))
            for i in range(8): o(f'v_mul_f32 v{E+i}, s54, v{G+i}')
            for i in range(8): o(f'v_exp_f32 v{E+i}, v{E+i}')
            rd_acc(o, U, sh.acc(mt, 4+2*q), sh.acc(mt, 4+2*q+1))
            for i in range(8): o(f'v_add_f32 v{E+i}, 1.0, v{E+i}')
            for i in range(8): o(f'v_rcp_f32 v{E+i}, v{E+i}')
            for i in range(4): o(f'v_pk_mul_f32 {vr(G+2*i,2)}, {vr(G+2*i,2)}, {vr(E+2*i,2)}')
            for i in range(4): o(f'v_pk_mul_f32 {vr(G+2*i,2)}, {vr(G+2*i,2)}, {vr(U+2*i,2)}')
            pack8(o, d, G)
            o(f'global_store_dwordx4 v{G_L16}, {vr(d,4)}, s[{sb}:{sb+1}] offset:{q*1024} sc1')
        if mt < 7: s_add64(o, sb, sb, 112*1024)
    return 16

def epi_db(o, sb, gv):
    T = G_T; sh = S48; n = 0
    for mt in range(4):
        for q in range(4):
            d = G_FA + 4*(n % 16); n += 1
            rd_acc(o, T, sh.acc(mt, 2*q), sh.acc(mt, 2*q+1))
            pack8(o, T+8, T)
            unpack8(o, T, T+8)
            for i in range(4): o(f'v_pk_mul_f32 {vr(T+2*i,2)}, {vr(T+2*i,2)}, {vr(gv+2*mt,2)} op_sel:[0,1] op_sel_hi:[1,1]')
            pack8(o, d, T)
            o(f'global_store_dwordx4 v{G_L16}, {vr(d,4)}, s[{sb}:{sb+1}] offset:{q*1024} sc1')
        if mt < 3: s_add64(o, sb, sb, 32*1024)
    return 16
```

```python
import re

REG_RE = re.compile(r'\b([vas])\[(\d+):(\d+)\]|\b([vas])(\d+)\b|\b(vcc|exec|m0|scc)\b')

def regs_of(op):
    out = set()
    for m in REG_RE.finditer(op):
        if m.group(1):
            for i in range(int(m.group(2)), int(m.group(3)) + 1):
                out.add(m.group(1) + str(i))
        elif m.group(4):
            out.add(m.group(4) + m.group(5))
        else:
            out.add(m.group(6))
    return out

TRANS = ('v_exp_', 'v_log_', 'v_rcp_', 'v_rsq_', 'v_sqrt_', 'v_sin_', 'v_cos_')

class I:
    __slots__ = ('text', 'op', 'ops', 'w', 'r', 'kind', 'passes', 'srcc', 'ab', 'states', 'dpp', 'wide_store', 'sdata')
    def __init__(s, text):
        s.text = text
        t = text.split(';')[0].strip()
        parts = t.split(None, 1)
        s.op = parts[0]
        rest = parts[1] if len(parts) > 1 else ''
        ops = []; depth = 0; cur = ''
        for ch in rest:
            if ch in '[(': depth += 1
            if ch in '])': depth -= 1
            if ch == ',' and depth == 0:
                ops.append(cur.strip()); cur = ''
            else: cur += ch
        if cur.strip(): ops.append(cur.strip())
        s.ops = ops
        op = s.op
        s.w = set(); s.r = set(); s.kind = 'other'; s.passes = 0; s.srcc = set(); s.ab = set()
        s.states = 1; s.dpp = False; s.wide_store = False; s.sdata = set()
        R = [regs_of(o) for o in ops]
        allr = set().union(*R) if R else set()
        if op == 's_nop':
            s.states = int(ops[0], 0) + 1
        elif op.startswith('v_mfma') or op.startswith('v_smfmac'):
            s.kind = 'mfma'
            s.passes = 8 if '32x32' in op else 4
            s.w = R[0]
            if op.startswith('v_smfmac'):
                s.srcc = R[0]; s.ab = R[1] | R[2] | R[3]
            else:
                s.srcc = R[3]; s.ab = R[1] | R[2]
            s.r = s.srcc | s.ab
        elif op.startswith('v_'):
            s.kind = 'valu'
            if op.startswith('v_cmp'):
                s.w = R[0]; s.r = set().union(*R[1:])
                if op.startswith('v_cmpx'): s.w = s.w | {'exec'}
            elif op.startswith('v_permlane') and 'swap' in op:
                s.w = R[0] | R[1]; s.r = R[0] | R[1]
            elif op.startswith('v_swap'):
                s.w = R[0] | R[1]; s.r = R[0] | R[1]
            elif '_co_' in op:
                s.w = R[0] | R[1]; s.r = set().union(*R[2:])
            elif op == 'v_nop':
                pass
            else:
                s.w = R[0]; s.r = set().union(*R[1:]) if len(R) > 1 else set()
                if op.startswith(('v_fmac', 'v_dot2c', 'v_pk_fmac', 'v_writelane')): s.r |= R[0]
                if op.startswith('v_cndmask') and len(ops) == 3: s.r.add('vcc')
            if 'dpp' in op or any(k in rest for k in ('quad_perm', 'row_shr', 'row_shl', 'row_ror', 'row_bcast', 'row_mirror', 'row_half_mirror', 'row_newbcast')):
                s.dpp = True
                s.r |= R[0] if False else set()
        elif op.startswith(('global_', 'buffer_', 'flat_')):
            s.kind = 'vmem'
            lds = op.startswith('global_load_lds') or re.search(r'\blds\b', rest)
            if 'load' in op and not lds:
                s.w = R[0]; s.r = set().union(*R[1:])
                if 'd16' in op: s.r |= R[0]
            elif 'atomic' in op and re.search(r'\bsc0\b', rest) and op.startswith('global'):
                s.w = R[0]; s.r = set().union(*R[1:])
            elif 'atomic' in op and re.search(r'\bsc0\b', rest):
                s.w = R[0]; s.r = allr
            else:
                s.r = allr
                if lds: s.r.add('m0')
                if 'store' in op and (op.endswith('x4') or op.endswith('x3')):
                    s.wide_store = True
                    s.sdata = R[1] if op.startswith(('global', 'flat')) else R[0]
        elif op.startswith('ds_'):
            s.kind = 'ds'
            if op.startswith(('ds_read', 'ds_bpermute', 'ds_permute', 'ds_swizzle')) or '_rtn' in op:
                s.w = R[0]; s.r = set().union(*R[1:])
            else:
                s.r = allr
        elif op.startswith('s_'):
            s.kind = 'salu'
            if op.startswith(('s_cmp', 's_cbranch', 's_branch', 's_waitcnt', 's_barrier', 's_endpgm', 's_sleep', 's_setprio', 's_bitcmp')):
                s.r = allr
            else:
                s.w = R[0] if R else set(); s.r = set().union(*R[1:]) if len(R) > 1 else set()
                if 'saveexec' in op: s.w = s.w | {'exec'}

def isv(x): return x[0] in 'va' and x not in ('vcc',)
def iss(x): return x[0] == 's' or x == 'vcc'

def need(p, c):
    n = 0
    if p.kind == 'valu':
        wv = {x for x in p.w if isv(x)}
        ws = {x for x in p.w if iss(x)}
        if c.kind == 'mfma' and wv & c.r: n = max(n, 2)
        if c.kind == 'valu':
            if c.dpp and wv & c.r: n = max(n, 2)
            if c.op.startswith('v_permlane') and wv & c.r: n = max(n, 2)
            if c.op.startswith(('v_readlane', 'v_readfirstlane')) and wv & c.r: n = max(n, 1)
            if p.op.startswith(TRANS) and wv & c.r: n = max(n, 1)
            if ws & c.r:
                n = max(n, 4 if c.op.startswith(('v_readlane', 'v_writelane')) else 2)
            if 'exec' in p.w: n = max(n, 5 if c.dpp else 4 if c.op.startswith(('v_readlane', 'v_readfirstlane', 'v_writelane', 'v_permlane')) else 2 if 'exec' in c.r else 0)
            if 'op_sel' in p.text or 'sdwa' in p.op:
                if wv & (c.r | c.w): n = max(n, 1)
        if c.kind == 'vmem' and ws & c.r: n = max(n, 5)
        if c.kind == 'mfma' and 'exec' in p.w: n = max(n, 4)
        if c.kind == 'salu' and ws & c.r and not c.op.startswith('s_cbranch'): n = max(n, 1)
    if p.kind == 'mfma':
        P = p.passes
        if c.kind == 'mfma':
            if p.w & c.ab: n = max(n, {4: 8, 8: 12}[P])
            if p.w & c.srcc:
                if not (p.w == c.srcc and p.op == c.op): n = max(n, {4: 6, 8: 10}[P])
            elif p.w & c.w: n = max(n, {4: 6, 8: 10}[P])
        elif c.kind in ('valu', 'vmem', 'ds'):
            if p.w & (c.r | c.w): n = max(n, {4: 8, 8: 12}[P])
            if c.kind == 'valu' and p.srcc & c.w: n = max(n, {4: 3, 8: 7}[P])
    if p.kind == 'vmem' and p.wide_store:
        if p.sdata & c.w: n = max(n, 2 if c.kind == 'valu' else 1)
    if p.kind == 'salu' and 'm0' in p.w:
        if 'm0' in c.r and c.kind in ('vmem', 'ds'): n = max(n, 1)
    return n

MAXD = 13
LABEL_RE = re.compile(r'^\s*([A-Za-z_.$][\w.$]*):\s*(;.*)?$')

def fix(text, verbose=False, relax=True):
    lines = text.split('\n')
    items = []
    for ln in lines:
        t = ln.split(';')[0].strip()
        m = LABEL_RE.match(ln)
        if m: items.append(('l', m.group(1), ln))
        elif not t or t.startswith('.'): items.append(('x', None, ln))
        else: items.append(('i', I(ln), ln))
    def required(hist, c):
        d = 0; worst = 0
        since = None
        for p in reversed(hist):
            dd = d
            if relax and p.kind == 'mfma' and since is not None:
                dd = max(d, since + p.passes - 1)
                d = dd
            n = need(p, c)
            if n > dd: worst = max(worst, n - dd)
            d += p.states
            if p.kind == 'mfma': since = d
            if d >= MAXD: break
        return worst
    changed = True; rounds = 0; total = 0
    while changed:
        changed = False; rounds += 1
        arrive = {}
        hist = []
        for k, it in enumerate(items):
            if it[0] == 'i':
                hist.append(it[1])
                op = it[1].op
                if op.startswith(('s_cbranch', 's_branch')):
                    arrive.setdefault(it[1].ops[0], []).append(hist[-MAXD:])
                if op in ('s_branch', 's_endpgm', 's_setpc_b64'): hist = []
        out = []; hists = [[]]
        for it in items:
            if it[0] == 'l':
                hists = hists + [list(h) for h in arrive.get(it[1], [])]
                out.append(it); continue
            if it[0] == 'x': out.append(it); continue
            c = it[1]
            w = max(required(h, c) for h in hists) if hists else 0
            if w > 0:
                nop = I(f'    s_nop {w-1}')
                out.append(('i', nop, f'    s_nop {w-1}  ; hz'))
                for h in hists: h.append(nop)
                changed = True; total += 1
                if verbose: print('hazard: %d before %s' % (w, c.text.strip()))
            out.append(it)
            for h in hists: h.append(c)
            nh = []
            for h in hists:
                h = h[-MAXD:]
                if not any(len(h) == len(g) and all(a is b for a, b in zip(h, g)) for g in nh): nh.append(h)
            hists = nh
            if c.op in ('s_branch', 's_endpgm', 's_setpc_b64'): hists = [[]]
        items = out
        if rounds > 10: break
    return '\n'.join(it[2] for it in items), total
```

```python
MB = 1 << 20
WS_Q = 0
WS_K = 16 * MB
WS_VT = 32 * MB
WS_H = 48 * MB
WS_O = 64 * MB
WS_KM = 80 * MB
WS_VMT = 84 * MB
WS_RING = 88 * MB
RING_SLOT = 512 * 1024
R_MEM = 0
R_QK = 64 * 1024
R_OB = 192 * 1024
R_C = 4 * MB
WS_PROG = 90 * MB
WS_G = 91 * MB
WS_T2 = 96 * MB
WS_STAMP = 200 * MB
KA = dict(x=0, mem0=8, Wq=16, Wk=24, Wv=32, Wo=40, seg=48, Bx=56, w1=64, w3=72, w2=80, gate=88, out=96, dbg=104, ws=112)
D_INIT = 0; D_MASK = 4; D_TICK = 8; D_BAIL = 16; D_POL = 17; D_DUMMY = 18; D_QUEUE = 20; D_KV = 24; D_Q = 32; D_H = 40; D_O = 48
T_END, T_Q, T_K, T_V, T_UP, T_DB, T_ATT = 0, 1, 2, 3, 4, 5, 6
```

```python
import struct, math
def f2u(f): return struct.unpack('<I', struct.pack('<f', f))[0]
def vr(b, n): return f'v[{b}:{b+n-1}]' if n > 1 else f'v{b}'
def ar(b, n): return f'a[{b}:{b+n-1}]'
def sr(b, n=2): return f's[{b}:{b+n-1}]'

class Out:
    def __init__(s): s.L = []
    def __call__(s, x): s.L.append(x if x.endswith(':') else '    ' + x)
    def text(s): return '\n'.join(s.L) + '\n'

def tid_expr(o, dst, terms, const=0, sregs=(), tmp=31, stmp=59, src=0):
    first = True
    for (lo, n, mult) in terms:
        p2 = mult > 0 and (mult & (mult - 1)) == 0
        o(f'v_bfe_u32 v{tmp}, v{src}, {lo}, {n}')
        if first:
            if p2: o(f'v_lshlrev_b32 v{dst}, {mult.bit_length()-1}, v{tmp}')
            else: o(f'v_mul_u32_u24 v{dst}, {mult}, v{tmp}')
            first = False
        elif p2:
            o(f'v_lshl_add_u32 v{dst}, v{tmp}, {mult.bit_length()-1}, v{dst}')
        else:
            o(f's_mov_b32 s{stmp}, {mult}')
            o(f'v_mad_u32_u24 v{dst}, v{tmp}, s{stmp}, v{dst}')
    if first: o(f'v_mov_b32 v{dst}, 0')
    if const: o(f'v_add_u32 v{dst}, {const}, v{dst}')
    for s in sregs: o(f'v_add_u32 v{dst}, s{s}, v{dst}')

def s_expr(o, dst, terms, const=0, tmp=59):
    first = True
    for (reg, mult) in terms:
        t = dst if first else tmp
        if mult == 1 and not first:
            o(f's_add_u32 s{dst}, s{dst}, s{reg}'); continue
        if (mult & (mult - 1)) == 0: o(f's_lshl_b32 s{t}, s{reg}, {mult.bit_length()-1}')
        else: o(f's_mul_i32 s{t}, s{reg}, {mult}')
        if not first: o(f's_add_u32 s{dst}, s{dst}, s{tmp}')
        first = False
    if first: o(f's_mov_b32 s{dst}, {const}')
    elif const: o(f's_add_u32 s{dst}, s{dst}, {const}')

def s_add64(o, dst, base, off):
    o(f's_add_u32 s{dst}, s{base}, {off}')
    o(f's_addc_u32 s{dst+1}, s{base+1}, 0')
```

```python
import sys; sys.path.insert(0, 'gen')
from layout import *
from util import *
import chain, bulk, da, hazard

NAME = 'gated_mix__memory_aug_recurrent_mem_tr__glu_gated_swiglu__prompt'

def item(t, rb, ct): return t | rb << 4 | ct << 8

def schedule():
    tabs = []
    for g in range(4):
        KV = lambda rb: [item(T_K if c < 4 else T_V, rb, 4*g + (c & 3)) for c in range(8)]
        Q = lambda rb: [item(T_Q, rb, 4*g + c) for c in range(4)]
        UP = lambda rb: [item(T_UP, rb, 7*g + c) for c in range(7)]
        DB = lambda r: [item(T_DB, r, g)]
        AT = lambda rq: [item(T_ATT, rq, 2*g + c) for c in range(2)]
        seq = []
        seq += KV(1) + KV(2) + UP(0) + UP(1) + Q(0)[:2]
        seq += KV(3) + UP(2) + UP(3) + UP(4) + Q(0)[2:] + Q(1)[:1]
        seq += [x for r in range(8) for x in DB(r)] + KV(4) + UP(5) + UP(6) + Q(1)[1:3]
        seq += KV(5) + KV(6) + UP(7) + Q(1)[3:]
        seq += [x for r in range(8, 14) for x in DB(r)] + KV(7) + Q(2) + Q(3)
        seq += [x for r in range(14, 16) for x in DB(r)] + Q(4) + Q(5) + Q(6) + Q(7)
        seq += [x for rq in range(16) for x in AT(rq)]
        dur = {T_Q: 1.0, T_K: 1.0, T_V: 1.0, T_UP: 1.03, T_DB: 1.8, T_ATT: 0.33}
        free = [0.0]*32; lists = [[] for _ in range(32)]
        for it in seq:
            c = min(range(32), key=lambda k: (free[k], k))
            lists[c].append(it); free[c] += dur[it & 15]
        tabs.append(lists)
    n = max(len(l) for t in tabs for l in t) + 2
    return [[l + [0]*(n - len(l)) for l in t] for t in tabs]

def entry(o, stamp):
    o('s_cmp_ge_u32 s2, 256')
    o('s_cbranch_scc1 L_exit')
    if stamp: o('s_memrealtime s[94:95]')
    o(f's_load_dwordx2 s[4:5], s[0:1], {KA["ws"]}')
    o(f's_load_dwordx2 s[6:7], s[0:1], {KA["dbg"]}')
    o('v_lshrrev_b32 v24, 6, v0')
    o('s_getreg_b32 s12, hwreg(HW_REG_XCC_ID)')
    o('v_readfirstlane_b32 s14, v24')
    o('s_and_b32 s12, s12, 7')
    o('v_mov_b32 v25, 1')
    o('v_mov_b32 v27, 0')
    o('s_waitcnt lgkmcnt(0)')
    o('s_cmp_eq_u32 s14, 0')
    o('s_cbranch_scc0 L_en_w1')
    o('s_mov_b64 exec, 1')
    o('s_mov_b32 s13, s12')
    o('L_en_try:')
    o('s_lshl_b32 s54, s13, 2')
    o('v_mov_b32 v24, s54')
    o(f'global_atomic_add v26, v24, v25, s[6:7] offset:{D_TICK*4} sc0')
    o('s_waitcnt vmcnt(0)')
    o('v_readfirstlane_b32 s11, v26')
    o('s_cmp_lt_u32 s11, 32')
    o('s_cbranch_scc1 L_en_got')
    o('s_add_u32 s13, s13, 1')
    o('s_and_b32 s13, s13, 7')
    o('s_cmp_lg_u32 s13, s12')
    o('s_cbranch_scc1 L_en_try')
    o('L_en_got:')
    o('s_lshl_b32 s54, s13, 8')
    o('s_or_b32 s54, s54, s11')
    o('v_mov_b32 v26, s54')
    o('ds_write_b32 v27, v26')
    o('s_cmp_lt_u32 s13, 4')
    o('s_cbranch_scc0 L_en_m')
    o('s_lshl_b32 s54, 1, s12')
    o('v_mov_b32 v26, s54')
    o(f'global_atomic_or v24, v26, s[6:7] offset:{D_MASK*4}')
    o('L_en_m:')
    o('s_mov_b64 exec, -1')
    o('s_branch L_en_j')
    o('L_en_w1:')
    o('s_cmp_eq_u32 s14, 1')
    o('s_cbranch_scc0 L_en_j')
    o('s_cmp_lt_u32 s12, 4')
    o('s_cbranch_scc0 L_en_j')
    o('s_mov_b64 exec, 1')
    o('s_and_b32 s54, s2, 31')
    o('s_lshr_b32 s55, s2, 5')
    o('s_bfe_u32 s56, s2, 0x10003')
    s_expr(o, 13, [(54, 128), (55, 16384), (56, 8192)], const=WS_RING + R_C + 262144)
    o('v_mov_b32 v24, s13')
    o('v_xor_b32 v26, 8192, v24')
    o('global_store_dword v24, v25, s[4:5] sc1')
    o('global_store_dword v26, v25, s[4:5] sc1')
    o('s_waitcnt vmcnt(0)')
    o('s_memtime s[16:17]')
    o('global_store_dword v24, v25, s[4:5] sc1')
    o('s_waitcnt vmcnt(0)')
    o('s_memtime s[18:19]')
    o('global_store_dword v26, v25, s[4:5] sc1')
    o('s_waitcnt vmcnt(0)')
    o('s_memtime s[20:21]')
    o('s_waitcnt lgkmcnt(0)')
    o('s_sub_u32 s20, s20, s18')
    o('s_sub_u32 s18, s18, s16')
    o('s_cmp_lt_u32 s20, s18')
    o('s_cselect_b32 s54, 1, 0')
    o('s_xor_b32 s54, s54, s56')
    o('s_cmp_eq_u32 s54, 1')
    o('s_cselect_b32 s54, 0x10000, 1')
    o('v_mov_b32 v26, s54')
    o(f'global_atomic_add v27, v26, s[6:7] offset:{D_POL*4}')
    o('s_mov_b64 exec, -1')
    o('L_en_j:')
    o('s_waitcnt lgkmcnt(0)')
    o('s_barrier')
    o('ds_read_b32 v26, v27')
    o('s_waitcnt lgkmcnt(0)')
    o('v_readfirstlane_b32 s54, v26')
    o('s_barrier')
    o('s_and_b32 s11, s54, 255')
    o('s_lshr_b32 s10, s54, 8')
    o('s_cmp_ge_u32 s11, 32')
    o('s_cbranch_scc1 L_exit')
    o('s_cmp_lt_u32 s10, 4')
    o('s_cbranch_scc1 L_chain')
    o('s_sub_u32 s10, s10, 4')
    o('s_branch L_bulk')
    o('L_exit:')
    o('s_endpgm')

KD = '''.amdhsa_kernel {n}
  .amdhsa_next_free_vgpr 512
  .amdhsa_next_free_sgpr 102
  .amdhsa_accum_offset 256
  .amdhsa_group_segment_fixed_size 0
  .amdhsa_kernarg_size 120
  .amdhsa_user_sgpr_count 2
  .amdhsa_user_sgpr_kernarg_segment_ptr 1
  .amdhsa_system_sgpr_workgroup_id_x 1
.end_amdhsa_kernel
'''
def compact(t):
    out = []
    for l in t.split('\n'):
        l = l.split(';')[0].strip()
        if l: out.append(l.replace(', ', ','))
    return '\n'.join(out) + '\n'

def build(stamp=False, DLY=None):
    o = Out()
    entry(o, stamp)
    tabs = schedule()
    bulk.gen_bulk(o, tabs)
    chain.gen_chain(o, stamp=stamp, DLY=DLY)
    k1, n1 = hazard.fix(o.text())
    o = Out(); da.gen_da(o)
    k2, n2 = hazard.fix(o.text())
    o = Out(); bulk.emit_table(o, tabs)
    head = open(f'cdna_kernels/{NAME}.s.ref').read().split('; Override launch geometry')[0]
    s = head
    s += f'; @launch kernel={NAME}_kernel grid=(256,1,1) block=(256,1,1) lds=163840\n'
    s += f'; @launch kernel=outproj_kernel grid=(256,1,1) block=(256,1,1) lds=163840\n'
    s += '.amdgcn_target "amdgcn-amd-amdhsa--gfx950"\n.text\n'
    s += f'.globl {NAME}_kernel\n.p2align 8\n.type {NAME}_kernel,@function\n{NAME}_kernel:\n' + compact(k1)
    s += '.globl outproj_kernel\n.p2align 8\n.type outproj_kernel,@function\noutproj_kernel:\n' + compact(k2)
    s += compact(o.text())
    s += '.section .rodata,"a"\n.p2align 6\n' + KD.format(n=NAME + '_kernel') + '.p2align 6\n' + KD.format(n='outproj_kernel')
    return s

if __name__ == '__main__':
    s = build()
    open(f'cdna_kernels/{NAME}.s', 'w').write(s)
    print(len(s), 'bytes', s.count('\n'), 'lines')
```

```python
from layout import *
from util import *
from gemm2 import *
import gemm2

C_ANAT = 192; C_AH = 196; C_AO = 198; C_OUT = 214; C_B8 = 200; C_B7 = 204; C_B2 = 208; C_RDN = 212; C_RDB = 213
C_BRN = 216; C_BRS = 224
V_TK = 232; V_TA = 215; V_SIG = 233; V_ONE = 234; V_ZERO = 235; V_DEP = 236; V_GADDR = 237; V_DADDR = 238; V_LDEP = 239; V_LDEP0 = 231+22; V_GV = 240
S_WS = 4; S_DBG = 6; S_GRP = 10
S_PX = 64; S_PQ = 66; S_PK = 68; S_PV = 70; S_P1 = 72; S_P3 = 74; S_P2 = 76; S_TAB = 78; S_PO = 60; S_POUT = 62
S_CURI = 26; S_NXTI = 27; S_PF = 28; S_OUT = 30; S_SIGN = 32; S_BUD = 40
S_TY = 33; S_RB = 34; S_CT = 35
SCALE_LOG2E = f2u(128 ** -0.5 * math.log2(math.e))

def decode(o, item):
    o(f's_and_b32 s{S_TY}, s{item}, 15')
    o(f's_bfe_u32 s{S_RB}, s{item}, 0x40004')
    o(f's_bfe_u32 s{S_CT}, s{item}, 0x60008')

def set_dma(o, P, small=False):
    o(f's_lshr_b32 s55, s{S_W}, 1')
    o(f's_sub_u32 s54, s{S_TY}, {T_DB}')
    o('s_cmp_lt_u32 s54, 4')
    o(f's_cbranch_scc1 {P}_db')
    o(f's_lshl_b32 s54, s{S_RB}, 19')
    for i in range(4): o(f'v_mov_b32 v{G_AOFF+i}, v{C_ANAT+i}')
    if small:
        o(f's_cmp_lt_u32 s{S_TY}, {T_KS}')
        o(f's_cbranch_scc1 {P}_big')
        a_nat48(o, G_AOFF, C_ANAT)
        o(f's_lshl_b32 s54, s{S_RB}, 18')
        o(f'{P}_big:')
    s_add64(o, S_AB, S_PX, 's54')
    o(f's_mov_b32 s{S_AST}, 64')
    o(f's_cmp_eq_u32 s{S_TY}, {T_UP}')
    o(f's_cbranch_scc1 {P}_up')
    o(f's_cmp_eq_u32 s{S_TY}, {T_Q}')
    o(f's_cselect_b64 s[56:57], s[{S_PQ}:{S_PQ+1}], s[{S_PK}:{S_PK+1}]')
    o(f's_cmp_eq_u32 s{S_TY}, {T_V}')
    o(f's_cselect_b64 s[56:57], s[{S_PV}:{S_PV+1}], s[56:57]')
    if small:
        o(f's_cmp_eq_u32 s{S_TY}, {T_VS}')
        o(f's_cselect_b64 s[56:57], s[{S_PV}:{S_PV+1}], s[56:57]')
    s_expr(o, 54, [(S_CT, 512), (55, 256)])
    s_add64(o, S_BB, 56, 's54')
    o(f's_mov_b32 s{S_BST}, {32*8192}')
    for i in range(4): o(f'v_mov_b32 v{G_BOFF+i}, v{C_B8+i}')
    o(f's_branch {P}_e')
    o(f'{P}_up:')
    o('s_cmp_eq_u32 s55, 1')
    o(f's_cselect_b64 s[56:57], s[{S_P3}:{S_P3+1}], s[{S_P1}:{S_P1+1}]')
    o(f's_lshl_b32 s54, s{S_CT}, 8')
    s_add64(o, S_BB, 56, 's54')
    o(f's_mov_b32 s{S_BST}, {32*7168}')
    for i in range(4): o(f'v_mov_b32 v{G_BOFF+i}, v{C_B7+i}')
    o(f's_branch {P}_e')
    o(f'{P}_db:')
    s_expr(o, 54, [(S_RB, 8*112*1024)], const=WS_H)
    o(f's_lshr_b32 s57, s{S_CT}, 3')
    s_expr(o, 58, [(S_RB, 8*128*1024), (57, 32768)], const=WS_O)
    o(f's_and_b32 s12, s{S_CT}, 7')
    s_expr(o, 12, [(12, 256), (55, 32*2048), (57, 2*MB)])
    o(f's_cmp_eq_u32 s{S_TY}, {T_DB}')
    o('s_cselect_b32 s54, s54, s58')
    o(f's_cselect_b64 s[56:57], s[{S_P2}:{S_P2+1}], s[{S_PO}:{S_PO+1}]')
    o('s_cselect_b64 vcc, -1, 0')
    s_add64(o, S_AB, S_WS, 's54')
    o(f's_mov_b32 s{S_AST}, 2048')
    s_add64(o, S_BB, 56, 's12')
    o(f's_mov_b32 s{S_BST}, {64*2048}')
    for i in range(4):
        o(f'v_cndmask_b32 v{G_AOFF+i}, v{C_AO+(i>>1)}, v{C_AH+(i>>1)}, vcc')
        o(f'v_mov_b32 v{G_BOFF+i}, v{C_B2+i}')
    o(f'{P}_e:')

def poll_ge(o, lbl, addr_v, base, target, off=0, allw=False, sleep=16):
    if not allw:
        o(f's_cmp_lg_u32 s{S_W}, 0')
        o(f's_cbranch_scc1 {lbl}_ok')
    o(f'{lbl}:')
    o(f'global_load_dword v{V_DEP}, v{addr_v}, s[{base}:{base+1}] offset:{off} sc1')
    o(f's_sub_u32 s{S_BUD}, s{S_BUD}, 1')
    o('s_cbranch_scc1 L_bulk_bail')
    o('s_waitcnt vmcnt(0)')
    o(f'v_cmp_gt_u32 vcc, {target}, v{V_DEP}')
    o(f's_cbranch_vccz {lbl}_ok')
    o(f's_sleep {sleep}')
    o(f's_branch {lbl}')
    o(f'{lbl}_ok:')

_n = [0]
def SIG():
    _n[0] += 1
    return (f's_cmp_eq_u32 s39, 0\n    s_cbranch_scc1 L_sig{_n[0]}\n    s_mov_b32 s39, 0\n    s_mov_b64 exec, 1\n    global_atomic_add v{V_SIG}, v{V_ONE}, s[{S_WS}:{S_WS+1}]\n    s_mov_b64 exec, -1\nL_sig{_n[0]}:\n    s_nop 0')
def cnt(i): return WS_CNT + 128*i
def flush_sig(o):
    o('s_waitcnt vmcnt(0)')
    o('s_barrier')
    o(SIG())

def fetch_issue(o):
    pass

def gen_bulk(o, tables, stamp=False):
    o('L_bulk:')
    for reg, nm in ((S_WS, 'ws'), (S_DBG, 'dbg'), (S_PX, 'x'), (S_PQ, 'Wq'), (S_PK, 'Wk'), (S_PV, 'Wv'), (S_P1, 'w1'), (S_P3, 'w3'), (S_P2, 'w2'), (S_PO, 'Wo'), (S_POUT, 'out')):
        o(f's_load_dwordx2 s[{reg}:{reg+1}], s[0:1], {KA[nm]}')
    o('v_lshrrev_b32 v2, 6, v0')
    o(f's_mov_b32 s{S_BUD}, 0x200000')
    o(f'v_readfirstlane_b32 s{S_W}, v2')
    o(f's_getpc_b64 s[{S_TAB}:{S_TAB+1}]')
    o('L_bulk_pc:')
    o(f's_add_u32 s{S_TAB}, s{S_TAB}, L_table-L_bulk_pc')
    o(f's_addc_u32 s{S_TAB+1}, s{S_TAB+1}, 0')
    n = len(tables[0][0])
    s_expr(o, 54, [(S_GRP, 32*n*4), (11, n*4)])
    s_add64(o, S_TAB, S_TAB, 's54')
    o(f's_load_dwordx2 s[{S_CURI}:{S_CURI+1}], s[{S_TAB}:{S_TAB+1}], 0')
    o(f's_lshl_b32 s{S_MA}, s{S_W}, 12')
    tid_expr(o, G_L16, [(0, 6, 16)])
    o(f'v_add_u32 v{G_L16B}, 4096, v{G_L16}')
    a_nat(o, C_ANAT, C_RDN)
    a_blk44(o, C_AH, 112*1024)
    a_blk44(o, C_AO, 128*1024)
    tid_expr(o, C_RDB, [(0, 6, 16), (7, 1, 8192)])
    tid_expr(o, C_OUT, [(0, 4, 2048), (4, 1, 32), (5, 1, 16), (7, 1, 64*2048), (6, 1, 128)])
    b_off(o, C_B8, False, 8192)
    b_off(o, C_B7, False, 7168)
    b_off(o, C_B2, True, 2048)
    b_rd(o, C_BRN, False)
    b_rd(o, C_BRS, True)
    o(f'v_mov_b32 v{V_ONE}, 1')
    o(f'v_mov_b32 v{V_ZERO}, 0')
    o(f'v_mov_b32 v{V_SIG}, {cnt(C_DUMMY)}')
    tid_expr(o, V_GADDR, [(0, 4, 8), (7, 1, 512)], const=WS_G)
    tid_expr(o, V_LDEP, [(6, 2, 4)], const=131072)
    o(f'v_mov_b32 v{V_LDEP0}, 131072')
    o(f's_mov_b32 s{S_PF}, 0')
    o('s_mov_b32 s41, 0')
    o('s_mov_b32 s42, -1')
    o('s_mov_b32 s43, 0')
    o(f'v_mov_b32 v{V_TA}, 0')
    o('s_mov_b32 s39, 0')
    o(f's_cmp_eq_u32 s{S_W}, 0')
    o('s_cselect_b32 s38, 1, 0')
    o('s_waitcnt lgkmcnt(0)')
    o(f's_mov_b64 s[48:49], s[{S_P1}:{S_P1+1}]')
    o(f's_mov_b64 s[8:9], s[{S_P1}:{S_P1+1}]')
    if stamp:
        s_expr(o, 54, [(S_GRP, 32*256), (11, 256)], const=WS_STAMP + 17*MB)
        o('v_mov_b32 v250, s54')
    o('L_bulk_item:')
    if stamp:
        o('s_memrealtime s[90:91]')
        o('s_waitcnt lgkmcnt(0)')
        o('s_sub_u32 s90, s90, s94')
        o('v_mov_b32 v248, s90')
        o(f'v_mov_b32 v249, s{S_CURI}')
        o('s_mov_b64 exec, 1')
        o('global_store_dwordx2 v250, v[248:249], s[4:5]')
        o('s_mov_b64 exec, -1')
        o('v_add_u32 v250, 8, v250')
    decode(o, S_CURI)
    o(f's_cmp_eq_u32 s{S_TY}, {T_END}')
    o('s_cbranch_scc1 L_bulk_end')
    o(f's_cmp_lg_u32 s{S_PF}, 0')
    o('s_cbranch_scc1 L_bulk_go')
    flush_sig(o)
    o(f's_sub_u32 s54, s{S_TY}, {T_DK}')
    o('s_cmp_lt_u32 s54, 2')
    o('s_cbranch_scc0 L_bulk_dep2_ok')
    o(f's_lshr_b32 s54, s{S_RB}, 1')
    s_expr(o, 54, [(54, 128)], const=cnt(C_B))
    o(f'v_mov_b32 v{G_T}, s54')
    poll_ge(o, 'L_bulk_dep2', G_T, S_WS, 16)
    o(f's_bfe_u32 s54, s{S_CURI}, 0x6000e')
    o(f's_bfe_u32 s37, s{S_CURI}, 0x60014')
    s_expr(o, 54, [(54, 128)], const=WS_CNT)
    o(f'v_mov_b32 v{G_T}, s54')
    o('s_cmp_eq_u32 s37, 0')
    o('s_cbranch_scc1 L_bulk_dep_ok')
    poll_ge(o, 'L_bulk_dep', G_T, S_WS, 's37', sleep=6)
    o(f's_cmp_eq_u32 s{S_TY}, {T_ATT}')
    o('s_cbranch_scc1 L_att')
    set_dma(o, 'L_sd0', True)
    o('s_barrier')
    prologue_dma(o, S88, 'sc1')
    o('s_waitcnt vmcnt(0)')
    o('L_bulk_go:')
    o(f's_bfe_u32 s54, s{S_NXTI}, 0x6000e')
    s_expr(o, 54, [(54, 128)], const=WS_CNT)
    o(f'v_mov_b32 v{V_DADDR}, s54')
    o(f's_lshr_b32 s{S_SIGN}, s{S_CURI}, 26')
    o(f's_lshr_b32 s55, s{S_W}, 1')
    o(f's_and_b32 s56, s{S_W}, 1')
    o(f's_sub_u32 s54, s{S_TY}, {T_DB}')
    o('s_cmp_lt_u32 s54, 4')
    o('s_cbranch_scc1 L_g_db')
    o(f'v_mov_b32 v{G_ARD}, v{C_RDN}')
    o(f's_mov_b32 s{S_CNT}, 6')
    o(f's_cmp_eq_u32 s{S_TY}, {T_UP}')
    o('s_cbranch_scc1 L_g_up')
    for i in range(8): o(f'v_mov_b32 v{G_BRD+i}, v{C_BRN+i}')
    o(f's_cmp_ge_u32 s{S_TY}, {T_KS}')
    o('s_cbranch_scc1 L_g_small')
    o(f's_sub_u32 s57, s{S_TY}, 1')
    s_expr(o, 54, [(57, 16*MB), (S_RB, 8*SS), (55, 4*SS), (S_CT, 2*HS), (56, HS)])
    s_add64(o, S_OUT, S_WS, 's54')
    o(f's_cmp_eq_u32 s{S_TY}, {T_V}')
    o('s_cbranch_scc1 L_g_v')
    o('s_branch L_g_tr')
    o('L_g_up:')
    for i in range(8): o(f'v_mov_b32 v{G_BRD+i}, v{C_BRS+i}')
    s_expr(o, 54, [(S_RB, 16*112*1024), (55, 8*112*1024), (S_CT, 4096), (56, 2048)], const=WS_H)
    s_add64(o, S_OUT, S_WS, 's54')
    def hook(P):
        o(f's_mov_b32 s36, s{S_TY}')
        decode(o, S_NXTI)
        o(f's_mov_b32 s{S_PF}, 1')
        o(f's_sub_u32 s54, s{S_TY}, 1')
        o('s_cmp_lt_u32 s54, 4')
        o(f's_cbranch_scc1 {P}_pf')
        o('s_cmp_lt_u32 s54, 6')
        o(f's_cbranch_scc0 {P}_no')
        o(f'ds_read_b128 {vr(G_T,4)}, v{V_LDEP0}')
        o(f's_bfe_u32 s55, s{S_NXTI}, 0x60014')
        o('s_waitcnt lgkmcnt(0)')
        o(f'v_min3_u32 v{G_T}, v{G_T}, v{G_T+1}, v{G_T+2}')
        o(f'v_min_u32 v{G_T}, v{G_T}, v{G_T+3}')
        o(f'v_readfirstlane_b32 s54, v{G_T}')
        o('s_cmp_ge_u32 s54, s55')
        o(f's_cbranch_scc1 {P}_pf')
        o(f'{P}_no:')
        o(f's_mov_b32 s{S_PF}, 0')
        o(f's_mov_b32 s{S_TY}, {T_Q}')
        o(f's_mov_b32 s{S_RB}, 0')
        o(f's_mov_b32 s{S_CT}, 0')
        o(f'{P}_pf:')
        set_dma(o, P + '_sd')
    def depload():
        return [f'global_load_dword v{V_DEP}, v{V_DADDR}, s[{S_WS}:{S_WS+1}] sc1']
    depw = [f'ds_write_b32 v{V_LDEP}, v{V_DEP}']
    def warm(P):
        o('s_add_u32 s42, s42, 1')
        o('s_mov_b32 s43, 0')
        o('s_cmp_ge_u32 s42, 2')
        o(f's_cbranch_scc1 {P}_nw')
        s_expr(o, 54, [(S_GRP, 32*57344), (11, 57344)])
        tid_expr(o, V_TA, [(0, 8, 128)], sregs=[54])
        o('s_cmp_eq_u32 s42, 0')
        o(f's_cselect_b64 s[48:49], s[{S_P1}:{S_P1+1}], s[{S_P2}:{S_P2+1}]')
        o(f's_cselect_b64 s[8:9], s[{S_P3}:{S_P3+1}], s[{S_P2}:{S_P2+1}]')
        o(f's_cmp_eq_u32 s{S_W}, 3')
        o('s_cselect_b32 s43, 1, 2')
        o(f'{P}_nw:')
    def touch(second):
        _n[0] += 1
        adv = f'    s_sub_u32 s43, s43, 1\n    v_add_u32 v{V_TA}, 32768, v{V_TA}\n' if second else ''
        return [f's_cmp_eq_u32 s43, 0\n    s_cbranch_scc1 L_tch{_n[0]}\n    global_load_dword v{V_TK}, v{V_TA}, {"s[8:9]" if second else "s[48:49]"}\n{adv}L_tch{_n[0]}:\n    s_nop 0']
    def tk(k):
        if stamp: o(f's_memtime s[{80+2*k}:{81+2*k}]')
    def finish(nst):
        s_expr(o, 54, [(S_SIGN, 128)], const=WS_CNT)
        o(f'v_mov_b32 v{V_SIG}, s54')
        o(f's_cmp_eq_u32 s{S_SIGN}, {C_DUMMY}')
        o('s_cselect_b32 s39, 0, s38')
        o(f's_waitcnt vmcnt({nst})')
        if stamp:
            tk(4)
            o('s_waitcnt lgkmcnt(0)')
            for k in range(4):
                o(f's_sub_u32 s54, s{82+2*k}, s{80+2*k}')
                o(f'v_mov_b32 v{G_T+k}, s54')
            o('v_lshlrev_b32 v251, 1, v250')
            o(f'v_subrev_u32 v251, {WS_STAMP + 16*MB + 16}, v251')
            o('s_mov_b64 exec, 1')
            o(f'global_store_dwordx4 v251, {vr(G_T,4)}, s[4:5]')
            o('s_mov_b64 exec, -1')
        o('s_branch L_bulk_adv')
    def run(P, sh, tr, asc, pre=None):
        tk(0)
        body_first(o, sh, tr, asc, [SIG()] + depload())
        tk(1)
        body_mid(o, P, sh, tr, asc, depw, depload() + (touch(True) if sh is S88 else []), touch(False) if sh is S88 else None)
        tk(2)
        if pre: pre()
        hook(P + '_h')
        body_last(o, sh, tr)
        tk(3)
    o('L_g_tr:')
    run('L_g_tr', S88, True, '')
    o(f's_cmp_eq_u32 s36, {T_UP}')
    o('s_cbranch_scc1 L_e_up')
    finish(epi_blocked(o, 'qk', S_OUT))
    o('L_e_up:')
    finish(epi_up(o, S_OUT))
    o('L_g_v:')
    run('L_g_v', S88, False, '')
    finish(epi_blocked(o, 'v', S_OUT))
    o('L_g_small:')
    o(f's_sub_u32 s57, s{S_TY}, {T_KS - 1}')
    s_expr(o, 54, [(57, 16*MB), (S_RB, 4*SS), (55, 2*SS), (S_CT, 2*HS), (56, HS)])
    s_add64(o, S_OUT, S_WS, 's54')
    o(f's_cmp_eq_u32 s{S_TY}, {T_VS}')
    o('s_cbranch_scc1 L_g_vs')
    run('L_g_ks', S48, True, '')
    finish(epi_blocked(o, 'qk', S_OUT, S48))
    o('L_g_vs:')
    run('L_g_vs', S48, False, '')
    finish(epi_blocked(o, 'v', S_OUT, S48))
    o('L_g_db:')
    o(f'v_mov_b32 v{G_ARD}, v{C_RDB}')
    for i in range(8): o(f'v_mov_b32 v{G_BRD+i}, v{C_BRS+i}')
    o(f's_lshr_b32 s13, s{S_CT}, 3')
    o(f's_and_b32 s12, s{S_CT}, 7')
    s_expr(o, 54, [(S_RB, 8*32*1024), (55, 4*32*1024), (12, 4096), (56, 2048), (13, 32*1024)], const=WS_T2)
    s_add64(o, S_OUT, S_WS, 's54')
    s_expr(o, 54, [(S_RB, 128*2048), (12, 256), (13, 16*2048)])
    s_add64(o, 44, S_POUT, 's54')
    s_expr(o, 15, [(S_RB, 8), (12, 1)])
    o(f's_cmp_eq_u32 s{S_TY}, {T_DK}')
    o('s_cselect_b32 s54, 2, 14')
    o(f's_cmp_eq_u32 s{S_TY}, {T_DK2}')
    o('s_cselect_b32 s54, 6, s54')
    o(f's_cmp_eq_u32 s{S_TY}, {T_DB}')
    o(f's_cselect_b32 s{S_CNT}, 12, s54')
    o('s_cbranch_scc0 L_g_d2')
    poll_ge(o, 'L_db_init', V_ZERO, S_DBG, 128, D_INIT*4)
    o('s_barrier')
    o('L_g_d2:')
    s_expr(o, 54, [(S_RB, 1024), (13, 128)])
    s_add64(o, 46, S_WS, 's54')
    for mt in range(4): o(f'global_load_dwordx2 {vr(V_GV+2*mt,2)}, v{V_GADDR}, s[46:47] offset:{mt*128} sc1')
    def t2load():
        o(f's_cmp_eq_u32 s{S_TY}, {T_DB}')
        o('s_cbranch_scc1 L_g_d3')
        for mt in range(4):
            for q in range(2): o(f'global_load_dwordx4 {ar(64+8*mt+4*q,4)}, v{G_L16}, s[{S_OUT}:{S_OUT+1}] offset:{q*1024} sc1')
            if mt < 2:
                o(f's_cmp_eq_u32 s{S_TY}, {T_DK + mt}')
                o('s_cbranch_scc1 L_g_d3')
            if mt < 3: s_add64(o, S_OUT, S_OUT, 32*1024)
        o('L_g_d3:')
    run('L_g_d', S44, True, 'sc1', t2load)
    o(f's_cmp_eq_u32 s36, {T_DA}')
    o('s_cbranch_scc1 L_e_da')
    o(f's_cmp_ge_u32 s36, {T_DK}')
    o('s_cbranch_scc1 L_e_dk')
    finish(epi_db(o, S_OUT, V_GV))
    o('L_e_da:')
    o('s_waitcnt vmcnt(32)')
    finish(epi_da(o, S_OUT, V_GV, 44, C_OUT))
    o('L_e_dk:')
    s_expr(o, 54, [(15, 262144), (S_W, 16384)], const=WS_PS)
    s_add64(o, 46, S_WS, 's54')
    o('s_lshl_b32 s54, s13, 16')
    s_add64(o, 50, 46, 's54')
    for k in range(16):
        o(f'global_store_dwordx4 v{G_L16+((k>>2)&1)}, {ar(4*k,4)}, s[50:51] offset:{(k&3)*1024} sc1')
        if k == 7: s_add64(o, 50, 50, 8192)
    s_expr(o, 54, [(15, 128)], const=cnt(C_TILE))
    o(f'v_mov_b32 v{V_SIG}, s54')
    o('s_mov_b32 s39, s38')
    flush_sig(o)
    o(f's_cmp_eq_u32 s36, {T_DK}')
    o('s_cselect_b32 s37, 4, 2')
    poll_ge(o, 'L_dk_w', V_SIG, S_WS, 's37', sleep=2)
    o('s_barrier')
    o('s_lshl_b32 s54, s13, 12')
    s_add64(o, 46, 46, 's54')
    o(f's_cmp_eq_u32 s36, {T_DK}')
    o('s_cbranch_scc1 L_e_dk4')
    for p in range(2):
        for k in range(8): o(f'global_load_dwordx4 {vr(G_FA+64+32*p+4*k,4)}, v{G_L16+(k>>2)}, s[46:47] offset:{(k&3)*1024} sc1')
        if p < 1: s_add64(o, 46, 46, 131072)
    o('s_waitcnt vmcnt(0)')
    for i in range(16): o(f'v_pk_add_f32 {vr(G_FA+64+2*i,2)}, {vr(G_FA+64+2*i,2)}, {vr(G_FA+96+2*i,2)}')
    for i in range(32): o(f'v_accvgpr_write_b32 a{i}, v{G_FA+64+i}')
    finish(epi_da(o, S_OUT, V_GV, 44, C_OUT, 2))
    o('L_e_dk4:')
    for p in range(4):
        for k in range(4): o(f'global_load_dwordx4 {vr(G_FA+64+16*p+4*k,4)}, v{G_L16}, s[46:47] offset:{k*1024} sc1')
        if p < 3: s_add64(o, 46, 46, 65536)
    P0 = G_FA + 64
    o('s_waitcnt vmcnt(8)')
    for i in range(8): o(f'v_pk_add_f32 {vr(P0+2*i,2)}, {vr(P0+2*i,2)}, {vr(P0+16+2*i,2)}')
    o('s_waitcnt vmcnt(0)')
    for i in range(8): o(f'v_pk_add_f32 {vr(P0+32+2*i,2)}, {vr(P0+32+2*i,2)}, {vr(P0+48+2*i,2)}')
    for i in range(8): o(f'v_pk_add_f32 {vr(P0+2*i,2)}, {vr(P0+2*i,2)}, {vr(P0+32+2*i,2)}')
    for i in range(16): o(f'v_accvgpr_write_b32 a{i}, v{P0+i}')
    finish(epi_da(o, S_OUT, V_GV, 44, C_OUT, 1))
    o('L_bulk_adv:')
    o('s_cmp_lg_u32 s41, 0')
    o('s_cbranch_scc1 L_bulk_adv2')
    tid_expr(o, G_T, [(0, 3, 4)])
    poll_ge(o, 'L_bulk_tk', G_T, S_DBG, 32, D_TICK*4)
    o('s_mov_b32 s41, 1')
    flush_sig(o)
    o('L_bulk_adv2:')
    warm('L_w')
    o('L_bulk_adv3:')
    o(f's_mov_b32 s{S_CURI}, s{S_NXTI}')
    s_add64(o, S_TAB, S_TAB, 4)
    o(f's_load_dword s{S_NXTI}, s[{S_TAB}:{S_TAB+1}], 4')
    o('s_waitcnt lgkmcnt(0)')
    o('s_branch L_bulk_item')
    gen_att(o)
    o('L_bulk_bail:')
    o(f'global_atomic_add v{V_ZERO}, v{V_ONE}, s[{S_DBG}:{S_DBG+1}] offset:{D_BAIL*4}')
    o('s_endpgm')
    o('L_bulk_end:')
    flush_sig(o)
    o('s_waitcnt vmcnt(0)')
    o('s_endpgm')

def gen_att(o):
    T = G_T
    o('L_att:')
    s_expr(o, 36, [(S_CT, 4), (S_W, 1)])
    poll_ge(o, 'L_att_i', V_ZERO, S_DBG, 128, D_INIT*4)
    o('s_barrier')
    o('s_lshr_b32 s54, s36, 1')
    s_expr(o, 54, [(54, 1024)], const=WS_PROG)
    tid_expr(o, 51, [(0, 3, 128)], sregs=[54])
    s_expr(o, 37, [(S_RB, 4)], const=1)
    poll_ge(o, 'L_att_p', 51, S_WS, 's37', allw=True)
    s_expr(o, 54, [(S_RB, 4*SS), (36, HS)])
    s_add64(o, 44, S_WS, 's54')
    s_add64(o, 46, 44, WS_K)
    s_add64(o, 16, 44, WS_VT)
    s_expr(o, 54, [(S_RB, SS), (36, HS//4)], const=WS_KM)
    s_add64(o, 50, S_WS, 's54')
    s_add64(o, 52, 50, WS_VMT - WS_KM)
    s_expr(o, 54, [(S_RB, 8*128*1024), (36, 4096)], const=WS_O)
    s_add64(o, S_OUT, S_WS, 's54')
    VKM = 60; VVM = 61; MSK = 56; SC = 62; ONES = 52
    tid_expr(o, VKM, [(4, 2, 128), (2, 2, 32), (0, 1, 16)])
    tid_expr(o, VVM, [(0, 6, 4)])
    tid_expr(o, T, [(4, 2, 4)])
    o(f'v_and_b32 v{T+1}, 15, v0')
    o(f'v_mov_b32 v{T+2}, 0xff800000')
    for i in range(4):
        o(f'v_add_u32 v{T+3}, {i}, v{T}')
        o(f'v_cmp_le_u32 vcc, v{T+3}, v{T+1}')
        o(f'v_cndmask_b32 v{MSK+i}, v{T+2}, 0, vcc')
        o(f'v_mov_b32 v{ONES+i}, 0x3f803f80')
    o(f'v_mov_b32 v{SC}, {SCALE_LOG2E:#x}')
    o(f'v_mov_b32 v{SC+1}, {SCALE_LOG2E:#x}')
    for b in range(2):
        for et in range(8): o(f'v_accvgpr_write_b32 a{128*b + 112 + 2*et + 1}, 0')
    NL = 8 + 8 + 4 + 8 + 8
    def loads(b, part=3):
        B = 128*b
        if part != 3:
            if part == 1:
                for (base, sb) in ((0, 44), (32, 46), (64, 16)):
                    for k in range(8): o(f'global_load_dwordx4 {ar(B+base+4*k,4)}, v{G_L16+(k>>2)}, s[{sb}:{sb+1}] offset:{(k&3)*1024} sc1')
                for r in (44, 46, 16): s_add64(o, r, r, SS)
            else:
                for k in range(4): o(f'global_load_dwordx4 {ar(B+96+4*k,4)}, v{VKM}, s[50:51] offset:{k*512} sc1')
                for k in range(8): o(f'global_load_dword a{B+112+2*k}, v{VVM}, s[52:53] offset:{k*256} sc1')
                for r in (50, 52): s_add64(o, r, r, SS//4)
            return
        for k in range(8): o(f'global_load_dwordx4 {ar(B+4*k,4)}, v{G_L16+(k>>2)}, s[44:45] offset:{(k&3)*1024} sc1')
        for k in range(8): o(f'global_load_dwordx4 {ar(B+32+4*k,4)}, v{G_L16+(k>>2)}, s[46:47] offset:{(k&3)*1024} sc1')
        for k in range(4): o(f'global_load_dwordx4 {ar(B+96+4*k,4)}, v{VKM}, s[50:51] offset:{k*512} sc1')
        for k in range(8): o(f'global_load_dwordx4 {ar(B+64+4*k,4)}, v{G_L16+(k>>2)}, s[16:17] offset:{(k&3)*1024} sc1')
        for k in range(8): o(f'global_load_dword a{B+112+2*k}, v{VVM}, s[52:53] offset:{k*256} sc1')
        for r in (44, 46, 16): s_add64(o, r, r, SS)
        for r in (50, 52): s_add64(o, r, r, SS//4)
    S = 64
    Pp = 84
    Lr = 96
    O = 128
    D = 104
    def compute(b, st, more):
        B = 128*b
        Q = lambda t, e: ar(B + 4*(t*4+e), 4)
        K = lambda t, e: ar(B + 32 + 4*(t*4+e), 4)
        V = lambda et, n=4: ar(B + 64 + 4*et, n)
        KM = lambda e: ar(B + 96 + 4*e, 4)
        VM = lambda et: ar(B + 112 + 2*et, 2)
        o(f's_waitcnt vmcnt({st + 16})')
        if more: loads(b ^ 1)
        for e in range(4):
            for (d, a, q, c0) in ((S, K(0, e), Q(0, e), vr(MSK, 4)), (S+4, KM(e), Q(0, e), '0'), (S+8, K(0, e), Q(1, e), '0'), (S+12, K(1, e), Q(1, e), vr(MSK, 4)), (S+16, KM(e), Q(1, e), '0')):
                o(f'v_mfma_f32_16x16x32_bf16 {vr(d,4)}, {a}, {q}, {c0 if e == 0 else vr(d,4)}')
        for tq in range(2):
            vals = [S, S+1, S+2, S+3, S+4, S+5] if tq == 0 else list(range(S+8, S+18))
            m = T + 2*tq
            o(f'v_max3_f32 v{m}, v{vals[0]}, v{vals[1]}, v{vals[2]}')
            for i in range(3, len(vals)-1, 2): o(f'v_max3_f32 v{m}, v{m}, v{vals[i]}, v{vals[i+1]}')
            o(f'v_max_f32 v{m}, v{m}, v{vals[-1]}')
        for sw in ('32', '16'):
            for tq in range(2): o(f'v_mov_b32 v{T+2*tq+1}, v{T+2*tq}')
            for tq in range(2): o(f'v_permlane{sw}_swap_b32 v{T+2*tq}, v{T+2*tq+1}')
            for tq in range(2): o(f'v_max_f32 v{T+2*tq}, v{T+2*tq}, v{T+2*tq+1}')
        for tq in range(2): o(f'v_mul_f32 v{T+2*tq}, v{SC}, v{T+2*tq}')
        for tq in range(2):
            prs = [S, S+2, S+4] if tq == 0 else [S+8, S+10, S+12, S+14, S+16]
            dst = [Pp, Pp+1, Pp+2] if tq == 0 else [Pp+4, Pp+5, Pp+6, Pp+7, Pp+8]
            for r in prs: o(f'v_pk_fma_f32 {vr(r,2)}, {vr(r,2)}, {vr(SC,2)}, {vr(T+2*tq,2)} op_sel_hi:[1,1,0] neg_lo:[0,0,1] neg_hi:[0,0,1]')
            for r in prs:
                o(f'v_exp_f32 v{r}, v{r}'); o(f'v_exp_f32 v{r+1}, v{r+1}')
            for r, d in zip(prs, dst): o(f'v_cvt_pk_bf16_f32 v{d}, v{r}, v{r+1}')
        o(f's_waitcnt vmcnt({max(0, st + (NL if more else 0))})')
        o(f'v_mfma_f32_16x16x32_bf16 {vr(Lr,4)}, {vr(ONES,4)}, {vr(Pp,4)}, 0')
        o(f'v_mfma_f32_16x16x32_bf16 {vr(Lr+4,4)}, {vr(ONES,4)}, {vr(Pp+4,4)}, 0')
        for et in range(8):
            o(f'v_mfma_f32_16x16x16_bf16 {vr(O+4*et,4)}, {V(et,2)}, {vr(Pp,2)}, 0')
        o(f'v_mfma_f32_16x16x16_bf16 {vr(Lr+4,4)}, {vr(ONES,2)}, {vr(Pp+8,2)}, {vr(Lr+4,4)}')
        for et in range(8):
            o(f'v_mfma_f32_16x16x16_bf16 {vr(O+4*et,4)}, {VM(et)}, {vr(Pp+2,2)}, {vr(O+4*et,4)}')
        o(f'v_rcp_f32 v{T}, v{Lr}')
        o(f'v_rcp_f32 v{T+2}, v{Lr+4}')
        for et in range(8):
            o(f'v_mfma_f32_16x16x32_bf16 {vr(O+32+4*et,4)}, {V(et)}, {vr(Pp+4,4)}, 0')
        for et in range(8):
            o(f'v_mfma_f32_16x16x16_bf16 {vr(O+32+4*et,4)}, {VM(et)}, {vr(Pp+8,2)}, {vr(O+32+4*et,4)}')
        for tq in range(2):
            for q in range(4):
                r = O + 32*tq + 8*q
                for i in range(4): o(f'v_pk_mul_f32 {vr(r+2*i,2)}, {vr(r+2*i,2)}, {vr(T+2*tq,2)} op_sel_hi:[1,0]')
                pack8(o, D + 4*q, r)
                o(f'global_store_dwordx4 v{G_L16}, {vr(D+4*q,4)}, s[{S_OUT}:{S_OUT+1}] offset:{q*1024} sc1')
            s_add64(o, S_OUT, S_OUT, 128*1024)
    o(f'v_mov_b32 v{Pp+3}, 0')
    o(f'v_mov_b32 v{Pp+9}, 0')
    o('s_add_u32 s54, s37, 3')
    o(f'v_cmp_gt_u32 vcc, s54, v{V_DEP}')
    o('s_cbranch_vccnz L_att_slow')
    loads(0)
    compute(0, 0, True)
    compute(1, 8, True)
    compute(0, 8, True)
    compute(1, 8, False)
    o('s_branch L_att_end')
    o('L_att_slow:')
    o('s_add_u32 s12, s37, 4')
    o('L_att_sl:')
    loads(0, 1)
    poll_ge(o, 'L_att_p2', 51, S_WS, 's37', allw=True, sleep=3)
    loads(0, 2)
    compute(0, -8, False)
    o('s_add_u32 s37, s37, 1')
    o('s_cmp_lt_u32 s37, s12')
    o('s_cbranch_scc1 L_att_sl')
    o('L_att_end:')
    o(f's_lshr_b32 s54, s{S_CURI}, 26')
    s_expr(o, 54, [(54, 128)], const=WS_CNT)
    o(f'v_mov_b32 v{V_SIG}, s54')
    o('s_mov_b32 s39, s38')
    o(f's_mov_b32 s{S_PF}, 0')
    o('s_branch L_bulk_adv3')

def emit_table(o, tables):
    o.L.append('.p2align 4')
    o.L.append('.type L_table,@object')
    o('L_table:')
    for g in tables:
        for lst in g:
            o.L.append('    .long ' + ', '.join(hex(x) for x in lst))
```

```python
from layout import *
from util import *

SCALE_LOG2E = f2u(128 ** -0.5 * math.log2(math.e))
RS = 144; RED_P = 16 * RS; RO_P = 1280
L_RED = 0; L_RV = 9216; L_RO = 13312; L_VMO = 18432; L_KL = 20480
L_XB = 32768; L_PB = 0
(V_ARD, V_ORD, V_QKWR, V_QKRD, V_OWR, V_CWQ, V_CRD, V_CRD2, V_CRD3, V_MWR, V_LREDW, V_LREDW1, V_LREDR, V_LREDR2,
 V_LRVW, V_LRVR, V_LROW, V_LROR, V_LROR2, V_LVMO, V_IDX, V_LROQ, V_KMWR) = range(1, 24)
V_T = 24; V_STP = 27; V_PROG = 28; V_LVMO2 = 29; V_L16 = 30
V_SENT = 32; V_LKL = 34; V_LVL = 35; V_ONES = 36
V_A = 40; V_D = 56; V_E = 80; V_R = 88; V_QK = 104; V_S = 120; V_C = 120; V_P = 132; V_PUB = 132; V_SC = 138
V_O = 140; V_L = 144; V_VM = 148; V_KD = 150; V_VD = 151; V_VX = 152; V_KMW2 = 156; V_KD2 = 157; V_VD2 = 158; V_KX = 160
S_WS = 4; S_DBG = 6; S_X = 10; S_J = 11; S_HEAD = 12; S_ES = 13; S_W = 14; S_STEP = 15
S_CUR = 16; S_NXT = 18; S_RST = 20; S_KB = 22; S_VB = 24; S_KM = 26; S_VM = 28; S_MODE = 30
S_MQ = 32; S_SCALE = 36; S_NOSENT = 37; S_BUD = 40; S_RING = 42; S_XB = 44; S_CC = 62; S_JO = 46; S_EK = 47; S_TK = 48; S_TV = 50

def gen_chain(o, nsteps=64, stamp=False, DLY=None):
    D0 = dict(a=1, b=0, o=0, c=9, pa=14, po=14, pb=8, d3=8)
    D0.update(DLY or {}); DLY = D0
    stamps = stamp and not DLY.get('noflush')
    def st(k):
        if stamps: o(f"{'s_memrealtime' if DLY.get('rt') else 's_memtime'} s[{64+2*k}:{65+2*k}]")
    def flush():
        if not stamps: return
        o('s_waitcnt lgkmcnt(0)')
        for k in range(12): o(f'v_writelane_b32 v31, s{64+2*k}, {k}')
        o('s_mov_b64 exec, 0xffff')
        o(f'global_store_dword v{V_STP}, v31, s[4:5]')
        o('s_mov_b64 exec, -1')
        o(f'v_add_u32 v{V_STP}, 64, v{V_STP}')
    def nops(n):
        for _ in range(n // 2): o('s_nop 15')
        if n & 1: o('s_nop 7')
    def emit(l):
        for i in l: o(i)
    X = lambda *a, **k: tid_expr(o, *a, **k)
    def ps(k):
        if stamp:
            o('s_memrealtime s[80:81]')
            o('s_waitcnt lgkmcnt(0)')
            o(f'v_writelane_b32 v127, s80, {k}')
    LANE16 = (0, 6, 16)

    o('L_chain:')
    for reg, nm in ((64, 'Wq'), (66, 'Wk'), (68, 'Wv'), (70, 'Wo'), (72, 'mem0'), (S_XB, 'x'), (74, 'gate')):
        o(f's_load_dwordx2 s[{reg}:{reg+1}], s[0:1], {KA[nm]}')
    o(f's_lshr_b32 s{S_HEAD}, s{S_J}, 2')
    o(f's_lshl_b32 s54, s{S_X}, 3')
    o(f's_add_u32 s{S_HEAD}, s{S_HEAD}, s54')
    o(f's_and_b32 s{S_ES}, s{S_J}, 3')
    o(f's_mov_b32 s{S_BUD}, 0x200000')
    o(f's_xor_b32 s{S_JO}, s{S_J}, 8')
    o(f's_xor_b32 s{S_EK}, s{S_ES}, 2')
    WQ, WO, WT, TRN, TRO = 128, 129, 130, 131, 132
    s_expr(o, 54, [(S_HEAD, 256), (S_ES, 64)])
    X(WQ, [(6, 2, 1 << 21), (2, 4, 8192), (0, 2, 16)], sregs=[54])
    o(f'v_xor_b32 v126, 256, v{WQ}')
    o(f'v_xor_b32 v125, 128, v{WQ}')
    s_expr(o, 54, [(S_X, 1 << 21), (S_JO, 64)])
    X(WO, [(6, 2, 1 << 19), (2, 4, 2048), (0, 2, 16)], sregs=[54])
    s_expr(o, 76, [(S_W, 16384)], const=L_XB)
    o('s_waitcnt lgkmcnt(0)')
    def wdma(sb, va, step, sbase, off):
        o(f'v_mov_b32 v{WT}, v{va}')
        for it in range(16):
            o(f's_add_u32 m0, s{sbase}, {off + it*1024}')
            o('s_nop 0')
            o(f'global_load_lds_dwordx4 v{WT}, s[{sb}:{sb+1}]')
            if it < 15: o(f'v_add_u32 v{WT}, {step}, v{WT}')
    ps(0)
    GX = 192; GW = 224
    X(24, [(0, 6, 32)])
    o(f'global_load_dwordx4 {vr(GW,4)}, v24, s[74:75]')
    o(f'global_load_dwordx4 {vr(GW+4,4)}, v24, s[74:75] offset:16')
    s_expr(o, 54, [(S_X, 32*16*2048), (S_J, 16*2048), (S_W, 4*2048)])
    s_add64(o, 56, S_XB, 's54')
    for k in range(4):
        for h in range(2):
            o(f'global_load_dwordx4 {vr(GX+8*k+4*h,4)}, v24, s[56:57] offset:{(k&1)*2048 + h*16}')
        if k == 1: s_add64(o, 56, 56, 4096)
    X(24, [(2, 2, 4096), (0, 1, 2048), (6, 2, 512), (4, 2, 32), (1, 1, 4)])
    for c in range(4):
        for q in range(4): o(f'global_load_dword v{V_A+4*c+q}, v24, s[72:73] offset:{c*128 + q*8}')
    wdma(66, 126, 16*8192, 76, 0)
    wdma(68, WQ, 16*8192, 76, 65536)
    NT = 0
    ps(1)
    X(V_L16, [LANE16])
    s_expr(o, 54, [(S_X, 16384)])
    X(V_ARD, [(6, 2, 4096), LANE16], const=R_MEM, sregs=[54])
    o(f'v_add_u32 v{V_ORD}, {R_OB - R_MEM}, v{V_ARD}')
    s_expr(o, 55, [(S_HEAD, 4096)], const=R_QK)
    o(f'v_add_u32 v{V_QKRD}, s55, v{V_L16}')
    s_expr(o, 56, [(S_ES, 1024)])
    X(V_QKWR, [(0, 8, 4)], sregs=[55, 56])
    X(24, [(3, 1, 2048)], const=2048)
    o(f'v_xor_b32 v{V_QKWR}, v24, v{V_QKWR}')
    s_expr(o, 54, [(S_X, 16384), (S_J, 512)])
    X(V_OWR, [(6, 1, 256), (0, 4, 16), (5, 1, 32), (4, 1, 8)], const=R_OB, sregs=[54])
    s_expr(o, 54, [(S_X, 16384), (S_JO, 512)])
    X(V_MWR, [(0, 6, 8)], const=R_MEM, sregs=[54])
    o(f's_lshr_b32 s54, s{S_J}, 1')
    o(f's_and_b32 s55, s{S_J}, 1')
    s_expr(o, 56, [(54, 16384), (55, 4096), (S_X, 1024)], const=R_C)
    X(V_CWQ, [(0, 8, 4)], sregs=[56])
    o(f'v_add_u32 v{V_CRD3}, s56, v{V_L16}')
    o(f'v_xor_b32 v{V_CRD}, 1024, v{V_CRD3}')
    o(f'v_xor_b32 v{V_CRD2}, 2048, v{V_CRD3}')
    o(f'v_xor_b32 v{V_CRD3}, 3072, v{V_CRD3}')
    X(V_LREDW, [(6, 2, RED_P), (4, 2, 2*RS), (0, 4, 4)], const=L_RED)
    o(f'v_add_u32 v{V_LREDW1}, {8*RS}, v{V_LREDW}')
    X(V_LREDR, [(3, 1, 8*RS), (4, 2, 2*RS), (2, 1, RS), (1, 1, 64), (6, 2, 16), (0, 1, 8)], const=L_RED)
    X(V_LREDR2, [(2, 3, RS), (1, 1, 64), (5, 1, 16), (0, 1, 8)], const=L_RED + 8*RS)
    s_expr(o, 54, [(S_HEAD, HS//4), (S_ES, 512)])
    X(V_KMWR, [(0, 6, 4)], sregs=[54])
    o(f'v_xor_b32 v{V_KMW2}, {HS//4}, v{V_KMWR}')
    X(V_LVMO2, [(0, 6, 4)], const=L_VMO)
    X(V_LRVW, [(6, 2, 1024), (0, 6, 8)], const=L_RV)
    X(V_LRVR, [(6, 1, 512), (0, 6, 8)], const=L_RV)
    X(V_LVMO, [(0, 7, 4)], const=L_VMO)
    X(V_LROW, [(6, 2, RO_P), (4, 2, 2*RS), (0, 4, 4)], const=L_RO)
    X(V_LROR, [(3, 2, 2*RS), (1, 1, RS), (5, 1, 64), (0, 1, 32), (2, 1, 8)], const=L_RO)
    o(f'v_add_u32 v{V_LROR2}, {2*RO_P}, v{V_LROR}')
    X(V_LROQ, [(5, 2, 2*RS), (3, 1, RS), (7, 1, 64), (2, 1, 32), (4, 1, 8), (0, 1, 4), (1, 1, 16)], const=L_RO)
    s_expr(o, 54, [(S_HEAD, HS)])
    o(f'v_add_u32 v{V_KD}, s54, v{V_L16}')
    s_expr(o, 55, [(S_ES, 2048)])
    o(f'v_add_u32 v{V_VD}, s55, v{V_KD}')
    o(f'v_add_u32 v{V_LKL}, {L_KL}, v{V_L16}')
    X(V_KD2, [(6, 2, 2048)])
    o(f'v_add_u32 v{V_KD2}, v{V_KD2}, v{V_KD}')
    X(V_VD2, [(6, 1, 1024)], const=WS_VT - WS_K)
    o(f'v_add_u32 v{V_VD2}, v{V_VD2}, v{V_VD}')
    s_expr(o, 52, [(S_W, 2048)], const=L_KL)
    o(f's_and_b32 s53, s{S_W}, 1')
    s_expr(o, 53, [(53, 1024)], const=L_KL + 8192)
    X(V_LVL, [(6, 1, 1024), LANE16], const=L_KL + 8192)
    s_expr(o, 54, [(S_HEAD, 512), (S_ES, 128)], const=WS_PROG)
    o(f'v_mov_b32 v{V_PROG}, s54')
    o('v_bfe_u32 v24, v0, 1, 1')
    o('v_cmp_eq_u32 vcc, 0, v24')
    o('v_mov_b32 v24, 0xeeee')
    o('v_mov_b32 v25, 0x4444')
    o(f'v_cndmask_b32 v{V_IDX}, v24, v25, vcc')
    for i in range(2): o(f'v_mov_b32 v{V_SENT+i}, -1')
    for i in range(4): o(f'v_mov_b32 v{V_ONES+i}, 0x3f803f80')
    o(f's_mov_b32 s{S_MQ}, 0x33333333')
    o(f's_mov_b32 s{S_MQ+1}, 0x33333333')
    o(f's_mov_b32 s{S_SCALE}, {SCALE_LOG2E:#x}')
    o(f's_mov_b32 s{S_NOSENT}, 0xfffffffe')
    o(f'v_mov_b32 v{V_SC}, s{S_SCALE}')
    o(f'v_mov_b32 v{V_SC+1}, s{S_SCALE}')
    o(f'v_mov_b32 v{V_VM}, 0')
    s_add64(o, S_RING, S_WS, WS_RING)
    X(TRN, [(4, 2, 8*64), (2, 2, 64), (0, 2, 8)])
    X(TRO, [(5, 1, 16*64), (4, 1, 4*64), (2, 1, 64), (3, 1, 8*64), (0, 2, 8)], const=65536, sregs=[76])
    o(f'v_add_u32 v{TRN}, s76, v{TRN}')
    o(f'v_add_u32 v{TRN+2}, 65536, v{TRN}')
    def wread(T0, addr, off, natural):
        for t in range(2):
            for c in range(4):
                for m in range(4):
                    row = 64*c + 32*(m >> 1) + (4 if natural else 2)*(m & 1)
                    o(f'ds_read_b64_tr_b16 {ar(((T0+t)*4+c)*8 + 2*m, 2)}, v{addr} offset:{off + row*64 + t*32}')
                o('s_waitcnt lgkmcnt(8)')
    o(f'v_xor_b32 v24, 8192, v{V_CWQ}')
    for sl in range(4):
        s_add64(o, 16, S_RING, sl*RING_SLOT)
        o(f'global_store_dword v{V_QKWR}, v{V_SENT}, s[16:17] sc1')
        o(f'global_store_dword v{V_CWQ}, v{V_SENT}, s[16:17] sc1')
        o(f'global_store_dword v24, v{V_SENT}, s[16:17] sc1')
        o(f'global_store_dwordx2 v{V_MWR}, {vr(V_SENT,2)}, s[16:17] sc1')
        o(f's_mov_b64 exec, s[{S_MQ}:{S_MQ+1}]')
        o(f'global_store_dwordx2 v{V_OWR}, {vr(V_SENT,2)}, s[16:17] sc1')
        o('s_mov_b64 exec, -1')
    o(f'global_store_dword v{V_PROG}, v{V_VM}, s[4:5] sc1')
    NT += 21
    ps(2)
    o(f's_waitcnt vmcnt({32+NT})')
    ps(3)
    WU = 232
    for k in range(8):
        o(f'v_lshlrev_b32 v{WU+2*k}, 16, v{GW+k}')
        o(f'v_and_b32 v{WU+2*k+1}, 0xffff0000, v{GW+k}')
    for r in range(4):
        A = 88 + 2*r
        for k in range(8):
            x = GX + 8*r + k
            o(f'v_lshlrev_b32 v24, 16, v{x}')
            o(f'v_and_b32 v25, 0xffff0000, v{x}')
            o(f'v_pk_mul_f32 v[24:25], v[24:25], {vr(WU+2*k,2)}')
            o('v_cvt_pk_bf16_f32 v26, v24, v25')
            if k == 0:
                o(f'v_lshlrev_b32 v{A}, 16, v26')
                o(f'v_and_b32 v{A+1}, 0xffff0000, v26')
            else:
                o('v_lshlrev_b32 v24, 16, v26')
                o('v_and_b32 v25, 0xffff0000, v26')
                o(f'v_pk_add_f32 {vr(A,2)}, {vr(A,2)}, v[24:25]')
        o(f'v_add_f32 v{A}, v{A}, v{A+1}')
    for dpp in ('quad_perm:[1,0,3,2]', 'quad_perm:[2,3,0,1]', 'row_half_mirror', 'row_mirror'):
        for r in range(4): o(f'v_add_f32_dpp v{88+2*r}, v{88+2*r}, v{88+2*r} {dpp} row_mask:0xf bank_mask:0xf')
    for sw in ('16', '32'):
        for r in range(4): o(f'v_mov_b32 v{89+2*r}, v{88+2*r}')
        for r in range(4): o(f'v_permlane{sw}_swap_b32 v{88+2*r}, v{89+2*r}')
        for r in range(4): o(f'v_add_f32 v{88+2*r}, v{88+2*r}, v{89+2*r}')
    o(f's_mov_b32 s54, {0xbfb8aa3b:#x}')
    for r in range(4):
        A = 88 + 2*r
        o(f'v_cvt_pk_bf16_f32 v{A}, v{A}, v{A}')
        o(f'v_and_b32 v{A}, 0xffff0000, v{A}')
        o(f'v_mul_f32 v{A}, s54, v{A}')
        o(f'v_exp_f32 v{A}, v{A}')
        o(f'v_add_f32 v{A}, 1.0, v{A}')
        o(f'v_rcp_f32 v{A}, v{A}')
        o(f'v_cvt_pk_bf16_f32 v{A}, v{A}, v{A}')
        o(f'v_and_b32 v{A}, 0xffff0000, v{A}')
        o(f'v_sub_f32 v{A+1}, 1.0, v{A}')
        o(f'v_cvt_pk_bf16_f32 v{A+1}, v{A+1}, v{A+1}')
        o(f'v_and_b32 v{A+1}, 0xffff0000, v{A+1}')
    ps(4)
    o(f's_waitcnt vmcnt({16+NT})')
    ps(5)
    wread(2, TRN, 0, True)
    o('s_waitcnt lgkmcnt(0)')
    wdma(64, 125, 16*8192, 76, 0)
    o(f's_waitcnt vmcnt({16+NT})')
    ps(6)
    wread(4, TRN+2, 0, True)
    o('s_waitcnt lgkmcnt(0)')
    wdma(70, WO, 16*2048, 76, 65536)
    o('s_waitcnt vmcnt(16)')
    ps(7)
    o('v_mov_b32 v124, 127')
    o(f's_cmp_eq_u32 s{S_W}, 1')
    o('s_cbranch_scc0 L_ci_v')
    o('v_mov_b32 v24, 1')
    o('s_mov_b64 exec, 1')
    o(f'global_atomic_add v124, v{V_VM}, v24, s[6:7] offset:{D_DEC*4} sc0')
    o('s_mov_b64 exec, -1')
    o('L_ci_v:')
    wread(0, TRN, 0, True)
    s_expr(o, 54, [(S_X, 32*128), (S_J, 128), (S_W, 32)], const=WS_G)
    o('v_mov_b32 v24, s54')
    o('s_mov_b64 exec, 1')
    o('global_store_dwordx4 v24, v[88:91], s[4:5] sc1')
    o('global_store_dwordx4 v24, v[92:95], s[4:5] offset:16 sc1')
    o('s_mov_b64 exec, -1')
    o('s_waitcnt vmcnt(2)')
    ps(8)
    wread(6, TRO, 0, False)
    def sum4(R):
        for h in range(2):
            o(f'v_pk_add_f32 {vr(R+2*h,2)}, {vr(R+2*h,2)}, {vr(R+4+2*h,2)}')
            o(f'v_pk_add_f32 {vr(R+8+2*h,2)}, {vr(R+8+2*h,2)}, {vr(R+12+2*h,2)}')
        for h in range(2): o(f'v_pk_add_f32 {vr(R+2*h,2)}, {vr(R+2*h,2)}, {vr(R+8+2*h,2)}')
    ps(10)
    o('s_waitcnt vmcnt(0) lgkmcnt(0)')
    o('v_readfirstlane_b32 s54, v124')
    o('s_cmp_lt_u32 s54, 64')
    o('s_cbranch_scc0 L_ci_nc')
    o('s_mov_b64 exec, 1')
    o(f's_and_b32 s58, s{S_J}, 1')
    s_expr(o, 54, [(S_J, 128), (S_X, 16384), (58, 8192)], const=WS_RING + R_C + 262144)
    o('v_mov_b32 v24, s54')
    o('v_xor_b32 v26, 8192, v24')
    o('s_mov_b32 s54, -1')
    o('s_mov_b32 s55, -1')
    o('s_mov_b32 s59, 0')
    o('L_ci_cal:')
    o('s_memtime s[16:17]')
    o(f'global_store_dword v24, v{V_VM}, s[4:5] sc1')
    o('s_waitcnt vmcnt(0)')
    o('s_memtime s[18:19]')
    o(f'global_store_dword v26, v{V_VM}, s[4:5] sc1')
    o('s_waitcnt vmcnt(0)')
    o('s_memtime s[20:21]')
    o('s_waitcnt lgkmcnt(0)')
    o('s_sub_u32 s56, s18, s16')
    o('s_sub_u32 s57, s20, s18')
    o('s_min_u32 s54, s54, s56')
    o('s_min_u32 s55, s55, s57')
    o('s_add_u32 s59, s59, 1')
    o('s_cmp_lt_u32 s59, 5')
    o('s_cbranch_scc1 L_ci_cal')
    o('s_sub_i32 s56, s54, s55')
    o('s_sub_i32 s57, s55, s54')
    o('s_cmp_eq_u32 s58, 1')
    o('s_cselect_b32 s54, s57, s56')
    o('s_max_i32 s54, s54, -400')
    o('s_min_i32 s54, s54, 400')
    o('v_mov_b32 v24, s54')
    o(f'global_atomic_add v{V_VM}, v24, s[6:7] offset:{D_POL*4}')
    o('s_waitcnt vmcnt(0)')
    o('s_mov_b64 exec, -1')
    o('L_ci_nc:')
    o('s_barrier')
    o(f's_cmp_eq_u32 s{S_W}, 0')
    o('s_cbranch_scc0 L_ci_e')
    o('s_mov_b64 exec, 1')
    o('v_mov_b32 v24, 1')
    o('v_mov_b32 v25, 0')
    o(f'global_atomic_add v25, v24, s[6:7] offset:{D_INIT*4}')
    o('s_mov_b64 exec, -1')
    o('L_ci_e:')
    ps(11)
    s_add64(o, S_KB, S_WS, WS_K)
    s_add64(o, S_VB, S_WS, WS_VT)
    s_add64(o, S_KM, S_WS, WS_KM)
    s_expr(o, 54, [(S_HEAD, HS), (S_ES, 2048)], const=WS_K + 2*SS)
    s_add64(o, S_TK, S_WS, 's54')
    s_add64(o, S_TV, S_TK, WS_VT - WS_K)
    s_add64(o, S_VM, S_WS, WS_VMT)
    o(f'v_mov_b32 v{V_P+4}, 0')
    o('v_mov_b32 v25, 0')
    o(f's_cmp_lg_u32 s{S_W}, 0')
    o('s_cbranch_scc1 L_ci_ok')
    X(26, [(0, 3, 4)])
    o('L_ci_wait:')
    o(f'global_load_dword v{V_R+4}, v25, s[6:7] offset:{D_INIT*4} sc1')
    o(f'global_load_dword v{V_R+6}, v26, s[6:7] offset:{D_TICK*4} sc1')
    o(f's_sub_u32 s{S_BUD}, s{S_BUD}, 1')
    o('s_cbranch_scc1 L_chain_bail')
    o('s_waitcnt vmcnt(0)')
    o(f'v_cmp_gt_u32 vcc, 128, v{V_R+4}')
    o(f'v_cmp_gt_u32 s[56:57], 32, v{V_R+6}')
    o('s_or_b64 vcc, vcc, s[56:57]')
    o('s_cbranch_vccz L_ci_ok1')
    o('s_sleep 2')
    o('s_branch L_ci_wait')
    o('L_ci_ok1:')
    o(f'v_mov_b32 v26, {WS_CNT + 128*C_KV}')
    ps(9)
    o('L_ci_wkv:')
    o(f'global_load_dword v{V_R+4}, v26, s[4:5] sc1')
    o(f's_sub_u32 s{S_BUD}, s{S_BUD}, 1')
    o('s_cbranch_scc1 L_chain_bail')
    o('s_waitcnt vmcnt(0)')
    o(f'v_cmp_gt_u32 vcc, 128, v{V_R+4}')
    o('s_cbranch_vccz L_ci_ok')
    o('s_sleep 2')
    o('s_branch L_ci_wkv')
    o('L_ci_ok:')
    o('s_barrier')
    o(f'global_load_dword v{V_R+5}, v25, s[6:7] offset:{D_POL*4} sc1')
    o(f'global_load_dwordx4 {vr(V_R,4)}, v25, s[6:7] offset:{D_MASK*4} sc1')
    o(f'v_add_u32 v24, 4096, v{V_KD}')
    for t in range(2):
        for e in range(4): o(f'global_load_dwordx4 {vr(V_KX + (t*4+e)*4, 4)}, v{V_KD if t == 0 else 24}, s[{S_KB}:{S_KB+1}] offset:{e*1024} sc1')
    X(25, [(6, 1, 1024)])
    o(f'v_add_u32 v25, v25, v{V_VD}')
    o(f'global_load_dwordx4 {vr(V_VX,4)}, v25, s[{S_VB}:{S_VB+1}] sc1')
    if DLY.get('late', 2):
        o('s_waitcnt vmcnt(0)')
        for k in range(8): o(f'ds_write_b128 v{V_LKL}, {vr(V_KX+4*k,4)} offset:{k*1024}')
        o(f'ds_write_b128 v{V_LVL}, {vr(V_VX,4)}')
    s_add64(o, S_KB, S_KB, SS)
    s_add64(o, S_VB, S_VB, SS)
    o('s_waitcnt vmcnt(0)')
    o(f'v_bcnt_u32_b32 v24, v{V_R}, 0')
    for i in range(1, 4): o(f'v_bcnt_u32_b32 v24, v{V_R+i}, v24')
    o(f'v_readfirstlane_b32 s{S_MODE}, v24')
    if 'pol' in DLY:
        o(f'v_mov_b32 v24, {DLY["pol"]*8192}')
    else:
        o(f'v_cmp_lt_i32 vcc, 0, v{V_R+5}')
        o('v_mov_b32 v25, 8192')
        o('v_cndmask_b32 v24, 0, v25, vcc')
    for r in (V_CWQ, V_CRD, V_CRD2, V_CRD3): o(f'v_xor_b32 v{r}, v24, v{r}')
    o(f's_mov_b32 s{S_STEP}, 0')
    if stamp:
        o('s_memtime s[60:61]')
        ps(12)
        o('v_writelane_b32 v127, s94, 13')
        s_expr(o, 54, [(S_X, 32*512), (S_J, 512), (S_W, 128)], const=WS_STAMP + 16*MB)
        X(24, [(0, 6, 4)], sregs=[54])
        o('s_mov_b64 exec, 0xffffffff')
        o('global_store_dword v24, v127, s[4:5]')
        o('s_mov_b64 exec, -1')
        s_expr(o, 54, [(S_X, 16384), (S_J, 8*16384)], const=WS_STAMP)
        X(V_STP, [(6, 2, 4096), (0, 6, 4)], sregs=[54])
        for k in range(12): st(k)
    for i in range(16): o(f'v_min_u32 v{V_A+i}, s{S_NOSENT}, v{V_A+i}')
    def prep():
        for i in range(24): o(f'v_mov_b32 v{V_D+i}, 0')
    prep()
    for k, sb in enumerate((S_CUR, S_NXT, S_RST)): s_add64(o, sb, S_RING, k*RING_SLOT)
    o(f's_cmp_eq_u32 s{S_MODE}, 4')
    o('s_cbranch_scc0 L_cs_a_go')
    o('s_branch L_cf_a_go')

    def issue(regs, addr, n=4, pace=0):
        for c in range(n):
            o(f'global_load_dwordx4 {vr(regs+4*c,4)}, {addr(c)} sc1')
            if c < n-1 and pace: o(f's_nop {pace-1}')
    utails = []
    Tm = V_T + 2
    def sstream(P, tag, regs, addr, body, n=4, simple=False):
        L = f'{P}_{tag}'
        def ck(c):
            r = regs + 4*c
            return [f'v_max3_u32 v{Tm}, v{r}, v{r+1}, v{r+2}', f'v_max_u32 v{Tm}, v{Tm}, v{r+3}', f'v_cmp_eq_u32 vcc, -1, v{Tm}']
        def reload(c):
            return ['s_mov_b64 exec, vcc', f'global_load_dwordx4 {vr(regs+4*c,4)}, {addr(c)} sc1', 's_mov_b64 exec, -1']
        o(f'{L}_go:')
        if simple:
            o('s_waitcnt vmcnt(0)')
            rs = list(range(regs, regs + 4*n))
            o(f'v_max3_u32 v{Tm}, v{rs[0]}, v{rs[1]}, v{rs[2]}')
            for i in range(3, len(rs)-1, 2): o(f'v_max3_u32 v{Tm}, v{Tm}, v{rs[i]}, v{rs[i+1]}')
            o(f'v_max_u32 v{Tm}, v{Tm}, v{rs[-1]}')
            o(f'v_cmp_eq_u32 vcc, -1, v{Tm}')
            o(f's_cbranch_vccz {L}_ok')
            issue(regs, addr, n)
            o(f's_sub_u32 s{S_BUD}, s{S_BUD}, 1')
            o(f's_cbranch_scc0 {L}_go')
            o('s_branch L_chain_bail')
            o(f'{L}_ok:')
            for c in range(n): emit(body(c))
            return
        def weave(ins, nxt):
            nxt = list(nxt)
            per = -(-len(nxt) // max(1, len(ins) - 1))
            for i in ins:
                o(i)
                for _ in range(per):
                    if nxt: o(nxt.pop(0))
            emit(nxt)
        def name(q): return f'{L}_q' + ''.join(map(str, q))
        def nextchk(q): return [f's_waitcnt vmcnt({len(q)-1})'] + ck(q[0]) if q else []
        todo = []; seen = set()
        def block(q):
            while True:
                o(f'{name(q)}:')
                seen.add(tuple(q))
                o(f's_cbranch_vccnz {name(q)}x')
                todo.append(list(q))
                c = q[0]; q = q[1:]
                weave(body(c), nextchk(q))
                if not q: return None
                if tuple(q) in seen: return name(q)
        q0 = list(range(n))
        emit(nextchk(q0))
        block(q0)
        o(f'{L}_done:')
        def emit_tail():
            while todo:
                q = todo.pop(0)
                o(f'{name(q)}x:')
                emit(reload(q[0]))
                if q[0] == max(q):
                    o(f's_sub_u32 s{S_BUD}, s{S_BUD}, 1')
                    o('s_cbranch_scc1 L_chain_bail')
                q2 = q[1:] + [q[0]]
                emit(nextchk(q2))
                if tuple(q2) in seen: o(f's_branch {name(q2)}')
                else:
                    tgt = block(q2)
                    o(f's_branch {tgt or L + "_done"}')
        utails.append(emit_tail)
    def sum4x2(R):
        o(f'v_pk_add_f32 {vr(R,2)}, {vr(R,2)}, {vr(R+2,2)}')
        o(f'v_pk_add_f32 {vr(R+4,2)}, {vr(R+4,2)}, {vr(R+6,2)}')
        o(f'v_pk_add_f32 {vr(R,2)}, {vr(R,2)}, {vr(R+4,2)}')
    def smf(D, c, T):
        return f'v_smfmac_f32_16x16x64_bf16 {vr(D,4)}, {vr(V_A+4*c,4)}, {ar((T*4+c)*8,8)}, v{V_IDX}'
    def rotate():
        o(f's_mov_b64 s[{S_CUR}:{S_CUR+1}], s[{S_NXT}:{S_NXT+1}]')
        o(f's_mov_b64 s[{S_NXT}:{S_NXT+1}], s[{S_RST}:{S_RST+1}]')
        o(f's_add_u32 s54, s{S_STEP}, 2')
        o('s_and_b32 s54, s54, 3')
        o('s_lshl_b32 s54, s54, 19')
        s_add64(o, S_RST, S_RING, 's54')
        if DLY.get('late', 2) == 2: s_add64(o, S_KB, S_KB, SS)
    CUR = sr(S_CUR); RST = sr(S_RST)
    def loop(P, sc):
        simple = sc != ''
        LATE = DLY.get('late', 2)
        def stouch(sel, lbl, lim):
            if not DLY.get('spf', 0): return
            tl = [(S_TK, q) for q in range(0, 2048, 128)] + [(S_TV, q) for q in range(0, 2048, 128)]
            o(f's_cmp_ge_u32 s{S_STEP}, {lim}')
            o(f's_cbranch_scc1 {lbl}')
            for (sb, off) in tl[sel]: o(f's_load_dword s41, s[{sb}:{sb+1}], {off}')
            s_add64(o, S_TK, S_TK, SS)
            s_add64(o, S_TV, S_TV, SS)
            o(f'{lbl}:')
        def kvread():
            for k in range(8): o(f'ds_read_b128 {vr(V_KX+4*k,4)}, v{V_LKL} offset:{k*1024}')
            o(f'ds_read_b128 {vr(V_VX,4)}, v{V_LVL}')
        o(f'{P}_top:')
        o('s_barrier')
        st(0)
        nops(DLY['a'])
        aA = lambda c: f'v{V_ARD}, {CUR} offset:{c*1024}'
        issue(V_A, aA, pace=DLY['pa'])
        sstream(P, 'a', V_A, aA, lambda c: [smf(V_D+4*T, c, T) for T in range(4)], simple=simple)
        st(1)
        for T in range(4):
            b = V_D + 4*T
            o(f'v_pk_add_f32 {vr(b,2)}, {vr(b,2)}, {vr(b+2,2)}')
            o(f'ds_write2_b32 v{V_LREDW if T < 2 else V_LREDW1}, v{b}, v{b+1} offset0:{(T&1)*16} offset1:{(T&1)*16+RS//4}')
        vm = [(T, c) for c in range(4) for T in (4, 5)]
        for (T, c) in vm[:3]: o(smf(V_D+4*T, c, T))
        o('s_waitcnt lgkmcnt(0)')
        o('s_barrier')
        for p in range(4): o(f'ds_read_b64 {vr(V_R+2*p,2)}, v{V_LREDR} offset:{p*RED_P}')
        for (T, c) in vm[3:]: o(smf(V_D+4*T, c, T))
        o('s_waitcnt lgkmcnt(0)')
        sum4x2(V_R)
        o(f'v_cvt_pk_bf16_f32 v{V_R}, v{V_R}, v{V_R+1}')
        o(f'v_min_u32 v{V_R}, s{S_NOSENT}, v{V_R}')
        o(f'global_store_dword v{V_QKWR}, v{V_R}, {CUR} {sc}')
        st(2)
        for t in range(2):
            b = V_D + 16 + 4*t
            o(f'v_pk_add_f32 {vr(b,2)}, {vr(b,2)}, {vr(b+2,2)}')
            o(f'ds_write_b64 v{V_LRVW}, {vr(b,2)} offset:{t*512}')
        o(f's_cmp_lt_u32 s{S_W}, 2')
        o(f's_cbranch_scc0 {P}_w23')
        o(f's_cmp_eq_u32 s{S_STEP}, {nsteps-1}')
        o(f's_cbranch_scc1 {P}_last01')
        o('s_waitcnt lgkmcnt(0)')
        o('s_barrier')
        if LATE: kvread()
        nops(DLY['b'])
        aB = lambda c: f'v{V_QKRD}, {CUR} offset:{c*1024}'
        issue(V_QK, aB, pace=DLY['pb'])
        o('s_barrier')
        o(f'ds_read_b32 v{V_VM+1}, v{V_LVMO}')
        for i in range(12): o(f'v_mov_b32 v{V_S+i}, 0')
        if LATE: o('s_waitcnt lgkmcnt(1)')
        def bodyB(e):
            r = []
            for t in range(3):
                A = vr(V_KX + (t*4+e)*4, 4) if t < 2 else vr(V_QK+4*e, 4)
                r.append(f'v_mfma_f32_16x16x32_bf16 {vr(V_S+4*t,4)}, {A}, {vr(V_QK+4*e,4)}, {vr(V_S+4*t,4)}')
            return r
        sstream(P, 'b', V_QK, aB, bodyB, simple=simple)
        st(3)
        S = V_S
        o(f'v_max3_f32 v{V_T}, v{S}, v{S+1}, v{S+2}')
        o(f'v_max3_f32 v{V_T}, v{V_T}, v{S+3}, v{S+4}')
        o(f'v_max3_f32 v{V_T}, v{V_T}, v{S+5}, v{S+6}')
        o(f'v_max3_f32 v{V_T}, v{V_T}, v{S+7}, v{S+10}')
        o(f'v_max_f32 v{V_T}, v{V_T}, v{S+11}')
        for sw in ('32', '16'):
            o(f'v_mov_b32 v{V_T+1}, v{V_T}')
            o(f'v_permlane{sw}_swap_b32 v{V_T}, v{V_T+1}')
            o(f'v_max_f32 v{V_T}, v{V_T}, v{V_T+1}')
        o(f'v_mul_f32 v{V_T}, s{S_SCALE}, v{V_T}')
        for i in (0, 1, 2, 3, 5):
            o(f'v_pk_fma_f32 {vr(S+2*i,2)}, {vr(S+2*i,2)}, {vr(V_SC,2)}, {vr(V_T,2)} op_sel_hi:[1,1,0] neg_lo:[0,0,1] neg_hi:[0,0,1]')
        for i in range(8): o(f'v_exp_f32 v{S+i}, v{S+i}')
        for i in range(4): o(f'v_cvt_pk_bf16_f32 v{V_P+i}, v{S+2*i}, v{S+2*i+1}')
        for i in (10, 11): o(f'v_exp_f32 v{S+i}, v{S+i}')
        o(f'v_mfma_f32_16x16x32_bf16 {vr(V_L,4)}, {vr(V_ONES,4)}, {vr(V_P,4)}, 0')
        o(f'v_cvt_pk_bf16_f32 v{V_P+5}, v{S+10}, v{S+11}')
        o(f'v_mfma_f32_16x16x32_bf16 {vr(V_O,4)}, {vr(V_VX,4)}, {vr(V_P,4)}, 0')
        o('s_waitcnt lgkmcnt(0)')
        o(f'v_mfma_f32_16x16x16_bf16 {vr(V_L,4)}, {vr(V_ONES,2)}, {vr(V_P+4,2)}, {vr(V_L,4)}')
        o(f'v_mfma_f32_16x16x16_bf16 {vr(V_O,4)}, {vr(V_VM,2)}, {vr(V_P+4,2)}, {vr(V_O,4)}')
        o(f's_mov_b64 exec, s[{S_MQ}:{S_MQ+1}]')
        o(f'v_rcp_f32 v{V_T}, v{V_L}')
        o(f'v_pk_mul_f32 {vr(V_O,2)}, {vr(V_O,2)}, {vr(V_T,2)} op_sel_hi:[1,0]')
        o(f'v_pk_mul_f32 {vr(V_O+2,2)}, {vr(V_O+2,2)}, {vr(V_T,2)} op_sel_hi:[1,0]')
        o(f'v_cvt_pk_bf16_f32 v{V_O}, v{V_O}, v{V_O+1}')
        o(f'v_cvt_pk_bf16_f32 v{V_O+1}, v{V_O+2}, v{V_O+3}')
        o(f'v_min_u32 v{V_O}, s{S_NOSENT}, v{V_O}')
        o(f'v_min_u32 v{V_O+1}, s{S_NOSENT}, v{V_O+1}')
        o(f'global_store_dwordx2 v{V_OWR}, {vr(V_O,2)}, {CUR} {sc}')
        o('s_mov_b64 exec, -1')
        st(4)
        o(f's_branch {P}_po')
        o(f'{P}_last01:')
        o('s_waitcnt lgkmcnt(0)')
        o('s_barrier')
        o('s_barrier')
        o('s_branch L_chain_done')
        o(f'{P}_w23:')
        o('s_waitcnt lgkmcnt(0)')
        o('s_barrier')
        for p in range(4): o(f'ds_read_b64 {vr(V_R+2*p,2)}, v{V_LRVR} offset:{p*1024}')
        o('s_waitcnt lgkmcnt(0)')
        sum4x2(V_R)
        o(f'v_cvt_pk_bf16_f32 v{V_VM+1}, v{V_R}, v{V_R+1}')
        o(f'ds_write_b32 v{V_LVMO}, v{V_VM+1}')
        o(f's_cmp_eq_u32 s{S_W}, 2')
        o('s_waitcnt lgkmcnt(0)')
        o('s_barrier')
        o(f's_cbranch_scc1 {P}_w2a')
        for hf in range(2):
            for p in range(4): o(f'ds_read_b64 {vr(V_R+8*hf+2*p,2)}, v{V_LREDR2} offset:{p*RED_P + hf*32}')
        o(f'ds_read2_b32 {vr(V_PUB+2,2)}, v{V_LVMO2} offset0:0 offset1:64')
        prep()
        o('s_waitcnt lgkmcnt(0)')
        for hf in range(2):
            sum4x2(V_R+8*hf)
            o(f'v_cvt_pk_bf16_f32 v{V_PUB+hf}, v{V_R+8*hf}, v{V_R+8*hf+1}')
        o(f's_cmp_eq_u32 s{S_STEP}, {nsteps-1}')
        o(f's_cbranch_scc1 {P}_last3')
        def kvdma():
            for h in range(2):
                o(f's_mov_b32 m0, {L_KL + h*4096}')
                if h: s_add64(o, 56, S_KB, 4096)
                for i in range(4): o(f'global_load_lds_dwordx4 v{V_KD}, s[{56 if h else S_KB}:{57 if h else S_KB+1}] offset:{i*1024} {DLY.get("ksc", "sc1")}')
            o(f's_mov_b32 m0, {L_KL + 8192}')
            s_add64(o, S_KB, S_KB, SS)
            for i in range(2): o(f'global_load_lds_dwordx4 v{V_VD}, s[{S_VB}:{S_VB+1}] offset:{i*1024} {DLY.get("ksc", "sc1")}')
            s_add64(o, S_VB, S_VB, SS)
        stouch(slice(15, 30), f'{P}_t3', nsteps-2)
        if not LATE:
            nops(DLY['d3'])
            kvdma()
        o(f's_branch {P}_po')
        o(f'{P}_w2a:')
        prep()
        o(f's_cmp_eq_u32 s{S_STEP}, {nsteps-1}')
        o('s_cbranch_scc1 L_chain_done')
        if not DLY.get('nodep'):
            stouch(slice(0, 15), f'{P}_t2', nsteps-2)
            o(f's_add_u32 s54, s{S_STEP}, {3 if DLY.get("spf") else 1 if LATE else 2}')
            o('s_and_b32 s55, s54, 7')
            o(f's_cbranch_scc1 {P}_po')
            o('s_sub_u32 s55, s54, 16')
            o('s_cmp_ge_u32 s55, 48')
            o(f's_cbranch_scc1 {P}_po')
            s_expr(o, 54, [(54, 16)], const=WS_CNT + 128*C_KV)
            o(f'v_mov_b32 v{V_T}, s54')
            o(f'{P}_kvw:')
            o(f'global_load_dword v{V_T+1}, v{V_T}, s[4:5] sc1')
            o(f's_sub_u32 s{S_BUD}, s{S_BUD}, 1')
            o('s_cbranch_scc1 L_chain_bail')
            o('s_waitcnt vmcnt(0)')
            o(f'v_cmp_gt_u32 vcc, 32, v{V_T+1}')
            o(f's_cbranch_vccnz {P}_kvw')
        o(f'{P}_po:')
        o('s_barrier')
        for i in range(8): o(f'v_mov_b32 v{V_E+i}, 0')
        o(f's_add_u32 s{S_STEP}, s{S_STEP}, 1')
        if LATE == 2: o('s_mov_b32 m0, s52')
        nops(DLY['o'])
        aO = lambda c: f'v{V_ORD}, {CUR} offset:{c*1024}'
        issue(V_A, aO, pace=DLY['po'])
        sstream(P, 'o', V_A, aO, lambda c: [smf(V_E+4*t, c, 6+t) for t in range(2)], simple=simple)
        st(5)
        for t in range(2):
            b = V_E + 4*t
            o(f'v_pk_add_f32 {vr(b,2)}, {vr(b,2)}, {vr(b+2,2)}')
            o(f'ds_write2_b32 v{V_LROW}, v{b}, v{b+1} offset0:{t*16} offset1:{t*16+RS//4}')
        if LATE == 2:
            for i in range(2): o(f'global_load_lds_dwordx4 v{V_KD2}, s[{S_KB}:{S_KB+1}] offset:{i*1024} sc1')
            o('s_mov_b32 m0, s53')
            o('s_nop 0')
            o(f'global_load_lds_dwordx4 v{V_VD2}, s[{S_KB}:{S_KB+1}] sc1')
        o('s_waitcnt lgkmcnt(0)')
        o('s_barrier')
        st(6)
        o(f'ds_read2st64_b32 {vr(V_E,2)}, v{V_LROQ} offset0:0 offset1:5')
        o(f'ds_read2st64_b32 {vr(V_E+2,2)}, v{V_LROQ} offset0:10 offset1:15')
        o(f's_cmp_lt_u32 s{S_W}, 2')
        o('s_waitcnt lgkmcnt(0)')
        o(f'v_add_f32 v{V_E}, v{V_E}, v{V_E+1}')
        o(f'v_add_f32 v{V_E+2}, v{V_E+2}, v{V_E+3}')
        o(f'v_add_f32 v{V_E}, v{V_E}, v{V_E+2}')
        o(f'v_min_u32 v{V_E}, s{S_NOSENT}, v{V_E}')
        o(f'global_store_dword v{V_CWQ}, v{V_E}, {CUR} sc1')
        st(7)
        o(f'global_store_dword v{V_QKWR}, v{V_SENT}, {RST} {sc}')
        o(f'global_store_dword v{V_CWQ}, v{V_SENT}, {RST} sc1')
        o(f's_cbranch_scc0 {P}_w23c')
        o(f's_mov_b64 exec, s[{S_MQ}:{S_MQ+1}]')
        o(f'global_store_dwordx2 v{V_OWR}, {vr(V_SENT,2)}, {RST} {sc}')
        o('s_mov_b64 exec, -1')
        prep()
        if not LATE: kvread()
        rotate()
        flush()
        stouch(slice(30, 32), f'{P}_t0', nsteps-1)
        o(f's_branch {P}_top')
        o(f'{P}_w23c:')
        o(f's_cmp_eq_u32 s{S_W}, 3')
        o(f's_cbranch_scc0 {P}_w2c')
        def prog(sub):
            o(f'v_mov_b32 v{V_T}, s{S_STEP}')
            if sub: o(f'v_add_u32 v{V_T}, {sub}, v{V_T}')
            o('s_mov_b64 exec, 1')
            o(f'global_store_dword v{V_PROG}, v{V_T}, s[4:5] sc1')
            o('s_mov_b64 exec, -1')
        def pub():
            for hf in range(2):
                o(f'global_store_dword v{V_KMW2}, v{V_PUB+hf}, s[{S_KM}:{S_KM+1}] offset:{hf*256} sc1')
                o(f'global_store_dword v{V_KMWR}, v{V_PUB+2+hf}, s[{S_VM}:{S_VM+1}] offset:{hf*256} sc1')
            s_add64(o, S_KM, S_KM, SS//4)
            s_add64(o, S_VM, S_VM, SS//4)
        if LATE == 1:
            st(9)
            kvdma()
            if DLY.get('kvlat'):
                o('s_waitcnt vmcnt(0)')
                st(11)
        prog(-1)
        pub()
        rotate()
        flush()
        o(f's_branch {P}_top')
        o(f'{P}_last3:')
        pub()
        o('s_waitcnt vmcnt(0)')
        prog(1)
        o('s_branch L_chain_done')
        o(f'{P}_w2c:')
        o(f'ds_read2_b64 {vr(V_R,4)}, v{V_LROR} offset0:0 offset1:2')
        o(f'ds_read2_b64 {vr(V_R+4,4)}, v{V_LROR} offset0:{RO_P//8} offset1:{RO_P//8+2}')
        o(f'ds_read2_b64 {vr(V_R+8,4)}, v{V_LROR2} offset0:0 offset1:2')
        o(f'ds_read2_b64 {vr(V_R+12,4)}, v{V_LROR2} offset0:{RO_P//8} offset1:{RO_P//8+2}')
        o(f'global_store_dwordx2 v{V_MWR}, {vr(V_SENT,2)}, {RST} {sc}')
        o(f's_mov_b64 s[{S_CC}:{S_CC+1}], {CUR}')
        rotate()
        flush()
        o('s_waitcnt lgkmcnt(0)')
        sum4(V_R)
        nops(DLY['c'])
        st(8)
        crd = [V_CRD, V_CRD2, V_CRD3]
        aC = lambda c: f'v{crd[c]}, {sr(S_CC)}'
        issue(V_C, aC, n=3)
        C = V_C
        if not simple:
            o('s_waitcnt vmcnt(2)')
            o(f'v_max3_u32 v{Tm}, v{C}, v{C+1}, v{C+2}')
            for h in range(2): o(f'v_pk_add_f32 {vr(V_R+4+2*h,2)}, {vr(V_R+2*h,2)}, {vr(C+2*h,2)}')
            o('s_waitcnt vmcnt(1)')
            o(f'v_max3_u32 v{Tm}, v{Tm}, v{C+3}, v{C+4}')
            o(f'v_max3_u32 v{Tm}, v{Tm}, v{C+5}, v{C+6}')
            o('s_waitcnt vmcnt(0)')
            o(f'v_max3_u32 v{Tm}, v{Tm}, v{C+7}, v{C+8}')
            o(f'v_max3_u32 v{Tm}, v{Tm}, v{C+9}, v{C+10}')
            o(f'v_max_u32 v{Tm}, v{Tm}, v{C+11}')
            o(f'v_cmp_eq_u32 vcc, -1, v{Tm}')
            for h in range(2): o(f'v_pk_add_f32 {vr(V_R+8+2*h,2)}, {vr(C+4+2*h,2)}, {vr(C+8+2*h,2)}')
            for h in range(2): o(f'v_pk_add_f32 {vr(V_R+4+2*h,2)}, {vr(V_R+4+2*h,2)}, {vr(V_R+8+2*h,2)}')
            for h in range(2): o(f'v_cvt_pk_bf16_f32 v{V_R+4+h}, v{V_R+4+2*h}, v{V_R+5+2*h}')
            for h in range(2): o(f'v_min_u32 v{V_R+4+h}, s{S_NOSENT}, v{V_R+4+h}')
            o(f's_cbranch_vccnz {P}_c_go')
            o(f'global_store_dwordx2 v{V_MWR}, {vr(V_R+4,2)}, {CUR} {sc}')
            st(10)
            o(f's_branch {P}_top')
        sstream(P, 'c', V_C, aC, lambda c: [f'v_pk_add_f32 {vr(V_R+2*h,2)}, {vr(V_R+2*h,2)}, {vr(V_C+2*h,2)}' for h in range(2)] if c == 0 else [], n=3, simple=simple)
        for h in range(2): o(f'v_pk_add_f32 {vr(V_C+4+2*h,2)}, {vr(V_C+4+2*h,2)}, {vr(V_C+8+2*h,2)}')
        for h in range(2): o(f'v_pk_add_f32 {vr(V_R+2*h,2)}, {vr(V_R+2*h,2)}, {vr(V_C+4+2*h,2)}')
        o(f'v_cvt_pk_bf16_f32 v{V_R}, v{V_R}, v{V_R+1}')
        o(f'v_cvt_pk_bf16_f32 v{V_R+1}, v{V_R+2}, v{V_R+3}')
        o(f'v_min_u32 v{V_R}, s{S_NOSENT}, v{V_R}')
        o(f'v_min_u32 v{V_R+1}, s{S_NOSENT}, v{V_R+1}')
        o(f'global_store_dwordx2 v{V_MWR}, {vr(V_R,2)}, {CUR} {sc}')
        st(10)
        o(f's_branch {P}_top')
        for f in utails: f()
        utails.clear()
    loop('L_cf', '')
    loop('L_cs', 'sc1')
    o('L_chain_bail:')
    o('v_mov_b32 v24, 1')
    o('v_mov_b32 v25, 0')
    o(f'global_atomic_add v25, v24, s[6:7] offset:{D_BAIL*4}')
    o('s_endpgm')
    o('L_chain_done:')
    if stamp:
        o('s_memtime s[90:91]')
        o('s_memrealtime s[92:93]')
        o('s_waitcnt lgkmcnt(0)')
        o('s_sub_u32 s90, s90, s60')
        o(f's_or_b32 s54, s{S_X}, s{S_J}')
        o('s_cbranch_scc1 L_chain_end')
        o('v_mov_b32 v25, s90')
        o(f'v_mov_b32 v24, s{S_BUD}')
        o('v_mov_b32 v26, s92')
        o('v_mov_b32 v27, s94')
        o(f'v_mov_b32 v28, {WS_STAMP - 64}')
        o('global_store_dwordx4 v28, v[24:27], s[4:5]')
        o('L_chain_end:')
    o('s_waitcnt vmcnt(0) lgkmcnt(0)')
    o(f's_add_u32 s10, s{S_X}, 4')
    o('s_branch L_bulk')
```

```python
from layout import *
from util import *

G_AOFF = 4
G_BOFF = 8
G_ARD = 12
G_BRD = 16
G_T = 24
G_FA = 64
G_FB = 96
def fa(s, i): return G_FA + 64*(s & 1) + 4*i
def fb(s, i): return G_FB + 64*(s & 1) + 4*i
S_AB = 16; S_BB = 18; S_AST = 20; S_BST = 21; S_CNT = 22; S_MA = 23; S_MB = 24; S_W = 14

class Shape:
    def __init__(s, MT, NT, nfa, na, pairs):
        s.MT, s.NT, s.nfa, s.na, s.pairs = MT, NT, nfa, na, pairs
        s.nd = na + 4
    def acc(s, mt, nt): return (mt*s.NT+nt)*4

S88 = Shape(8, 8, 8, 4, [(mt, nt, mt, nt, True) for mt in range(8) for nt in range(8)])
S48 = Shape(4, 8, 4, 2, [(mt, nt, mt, nt, True) for mt in range(4) for nt in range(8)])
S44 = Shape(4, 4, 8, 4, [(mt, nt, 2*mt+sub, 4*sub+nt, sub == 0) for sub in range(2) for mt in range(4) for nt in range(4)])

def dma_group(sh, slot, asc=''):
    r = [f's_add_u32 m0, s{S_MA}, {slot*16384}', 's_nop 0']
    for i in range(sh.na): r.append(f'global_load_lds_dwordx4 v{G_AOFF+i}, s[{S_AB}:{S_AB+1}] offset:{i*1024} {asc}')
    r.append(f's_add_u32 m0, s{S_MA}, {65536 + slot*16384}')
    r.append(f's_add_u32 s{S_AB}, s{S_AB}, s{S_AST}')
    r.append(f's_addc_u32 s{S_AB+1}, s{S_AB+1}, 0')
    for i in range(4): r.append(f'global_load_lds_dwordx4 v{G_BOFF+i}, s[{S_BB}:{S_BB+1}] offset:{i*1024}')
    r.append(f's_add_u32 s{S_BB}, s{S_BB}, s{S_BST}')
    r.append(f's_addc_u32 s{S_BB+1}, s{S_BB+1}, 0')
    return r

def frag_reads(sh, slot, sub, par):
    r = []
    for i in range(8):
        if i < sh.nfa:
            off = slot*16384 + (i*1024 if sh.nfa == 8 else (i >> 1)*4096 + (i & 1)*1024)
            r.append(f'ds_read_b128 {vr(fa(par,i),4)}, v{G_ARD} offset:{off}')
        for h in range(2):
            r.append(f'ds_read_b64_tr_b16 {vr(fb(par,i)+2*h,2)}, v{G_BRD+i} offset:{slot*16384 + h*4096}')
    return r

def stage(o, sh, st, transposed, first, dma, last, vm, asc='', extra=None):
    D = dma_group(sh, st, asc) if dma else []
    D = [x for x in D if x != 's_nop 0'] + list(extra or [])
    nm = len(sh.pairs); par = st & 1
    o(f's_waitcnt vmcnt({vm}) lgkmcnt(0)'); o('s_barrier')
    R = [] if last else frag_reads(sh, (st+1) % 4, 0, par ^ 1)
    slots = [[] for _ in range(nm)]
    step = 2 if nm == 64 else 1
    for k, ins in enumerate(R): slots[step*k].append(ins)
    pos = 1
    for ins in D:
        slots[min(pos, nm-1)].append(ins)
        pos += (4 if nm == 64 else 2) if ins.startswith('global') else (2 if nm == 64 else 1)
    for k, (mt, nt, ia, ib, f0) in enumerate(sh.pairs):
        acc = ar(sh.acc(mt, nt), 4)
        A = vr(fa(par, ia), 4); B = vr(fb(par, ib), 4)
        if transposed: A, B = B, A
        o(f'v_mfma_f32_16x16x32_bf16 {acc}, {A}, {B}, {"0" if (first and f0) else acc}')
        for ins in slots[k]: o(ins)

def prologue_dma(o, sh, asc=''):
    for s in range(4):
        for ins in dma_group(sh, s, asc): o(ins)

def body_first(o, sh, transposed, asc='', sig=None):
    o('s_barrier')
    for ins in frag_reads(sh, 0, 0, 0): o(ins)
    for s in range(4):
        stage(o, sh, s, transposed, s == 0, True, False, 63 if s < 3 else 2*sh.nd, asc, extra=sig if s == 3 else None)

def body_mid(o, P, sh, transposed, asc='', ex2=None, ex3=None, ex1=None):
    o(f'{P}_mid:')
    for s in range(4): stage(o, sh, s, transposed, False, True, False, 2*sh.nd, asc, extra={1: ex1, 2: ex2, 3: ex3}.get(s))
    o(f's_sub_u32 s{S_CNT}, s{S_CNT}, 1')
    o(f's_cmp_lg_u32 s{S_CNT}, 0')
    o(f's_cbranch_scc1 {P}_mid')

def body_last(o, sh, transposed):
    for s in range(4):
        vm = (2-s)*sh.nd + 8*s if s < 3 else 63
        stage(o, sh, s, transposed, False, False, s == 3, vm, extra=[x for x in dma_group(S88, s, 'sc1') if x != 's_nop 0'])

def swz_f(o, dst, lo, tmp):
    o(f'v_bfe_u32 v{dst}, v0, {lo}, 2')
    o(f'v_lshlrev_b32 v{dst}, 1, v{dst}')
    o(f'v_mov_b32 v{tmp}, 0x78')
    o(f'v_lshrrev_b32 v{dst}, v{dst}, v{tmp}')

def a_nat(o, off, rd, lda=2048):
    T = G_T
    swz_f(o, T, 4, T+1)
    o(f'v_xor_b32 v{T}, v{T}, v0')
    o(f'v_and_b32 v{T}, 3, v{T}')
    tid_expr(o, off, [(2, 4, lda), (6, 2, 64*lda)])
    o(f'v_lshl_add_u32 v{off}, v{T}, 4, v{off}')
    for i in range(1, 4): o(f'v_add_u32 v{off+i}, {i*(16*lda - 1024)}, v{off}')
    swz_f(o, T, 2, T+1)
    o(f'v_bfe_u32 v{T+1}, v0, 4, 2')
    o(f'v_xor_b32 v{T}, v{T}, v{T+1}')
    o(f'v_and_b32 v{T}, 3, v{T}')
    tid_expr(o, rd, [(0, 4, 64), (7, 1, 8192)])
    o(f'v_lshl_add_u32 v{rd}, v{T}, 4, v{rd}')

def a_nat48(o, off, src, lda=2048):
    tid_expr(o, off, [(6, 2, 32*lda)])
    o(f'v_sub_u32 v{off}, v{src}, v{off}')
    o(f'v_add_u32 v{off+1}, {16*lda - 1024}, v{off}')
    o(f'v_add_u32 v{off+2}, {16*lda - 2048}, v{off}')
    o(f'v_add_u32 v{off+3}, {16*lda - 3072}, v{off}')

def a_blk44(o, off, rts):
    tid_expr(o, off, [(0, 6, 16), (6, 2, 2*rts)])
    o(f'v_add_u32 v{off+1}, {rts - 2048}, v{off}')

def b_off(o, off, permk, ldb):
    T = G_T
    o(f'v_bfe_u32 v{T}, v0, 4, 2')
    o(f'v_lshlrev_b32 v{T}, 1, v{T}')
    o(f'v_xor_b32 v{T}, v{T}, v0')
    o(f'v_and_b32 v{T}, 15, v{T}')
    o(f'v_lshlrev_b32 v{T}, 4, v{T}')
    o(f'v_xor_b32 v{T+1}, 128, v{T}')
    tid_expr(o, T+2, [(4, 2, ldb), (6, 1, (16 if permk else 4)*ldb)])
    rstep = (4 if permk else 8) * ldb
    o(f'v_add_u32 v{off}, v{T+2}, v{T}')
    o(f'v_add_u32 v{T+1}, v{T+2}, v{T+1}')
    o(f'v_add_u32 v{off+1}, {1*(rstep - 1024)}, v{T+1}')
    o(f'v_add_u32 v{off+2}, {2*(rstep - 1024)}, v{off}')
    o(f'v_add_u32 v{off+3}, {3*(rstep - 1024)}, v{T+1}')

def b_rd(o, rd, split):
    T = G_T
    tid_expr(o, T, [(2, 3, 32)])
    if not split:
        tid_expr(o, T+1, [(2, 4, 256), (0, 2, 8), (6, 1, 8192)], const=65536)
        for t in range(8):
            o(f'v_xor_b32 v{T+2}, {t*32}, v{T}')
            o(f'v_add_u32 v{rd+t}, v{T+1}, v{T+2}')
    else:
        tid_expr(o, T+2, [(6, 1, 128)])
        o(f'v_xor_b32 v{T}, v{T}, v{T+2}')
        tid_expr(o, T+1, [(2, 4, 256), (0, 2, 8)], const=65536)
        for t in range(4):
            o(f'v_xor_b32 v{T+2}, {t*32}, v{T}')
            o(f'v_add_u32 v{rd+t}, v{T+1}, v{T+2}')
            o(f'v_add_u32 v{rd+4+t}, 8192, v{rd+t}')

def rd_acc(o, dst, a0, a1):
    for k, a in enumerate((a0, a1)):
        for i in range(4): o(f'v_accvgpr_read_b32 v{dst+4*k+i}, a{a+i}')
def pack8(o, dst, src):
    for k in range(4): o(f'v_cvt_pk_bf16_f32 v{dst+k}, v{src+2*k}, v{src+2*k+1}')
def unpack8(o, dst, src):
    for k in range(4):
        o(f'v_lshlrev_b32 v{dst+2*k}, 16, v{src+k}')
        o(f'v_and_b32 v{dst+2*k+1}, 0xffff0000, v{src+k}')

G_L16 = 2
G_L16B = 3
def epi_blocked(o, kind, sb, sh=S88):
    T = G_T; n = 0
    for seg in range(sh.MT//2):
        for blk in range(8):
            if kind == 'qk':
                t, e = blk >> 2, blk & 3
                a0, a1 = sh.acc(2*seg+t, 2*e), sh.acc(2*seg+t, 2*e+1)
            else:
                a0, a1 = sh.acc(2*seg, blk), sh.acc(2*seg+1, blk)
            d = G_FA + 4*(n % 16); n += 1
            rd_acc(o, T + 8*(n & 1), a0, a1)
            pack8(o, d, T + 8*(n & 1))
            o(f'global_store_dwordx4 v{G_L16+(blk>>2)}, {vr(d,4)}, s[{sb}:{sb+1}] offset:{(blk&3)*1024} sc1')
        if seg < sh.MT//2 - 1: s_add64(o, sb, sb, SS)
    return n

def epi_up(o, sb, mid=None):
    T = G_T; sh = S88; n = 0
    o(f's_mov_b32 s29, {0xbfb8aa3b:#x}')
    for mt in range(8):
        for q in range(2):
            d = G_FA + 4*(n % 16); n += 1
            G = T; U = T + 8; E = T + 16
            rd_acc(o, G, sh.acc(mt, 2*q), sh.acc(mt, 2*q+1))
            for i in range(8): o(f'v_mul_f32 v{E+i}, s29, v{G+i}')
            for i in range(8): o(f'v_exp_f32 v{E+i}, v{E+i}')
            rd_acc(o, U, sh.acc(mt, 4+2*q), sh.acc(mt, 4+2*q+1))
            for i in range(8): o(f'v_add_f32 v{E+i}, 1.0, v{E+i}')
            for i in range(8): o(f'v_rcp_f32 v{E+i}, v{E+i}')
            for i in range(4): o(f'v_pk_mul_f32 {vr(G+2*i,2)}, {vr(G+2*i,2)}, {vr(E+2*i,2)}')
            for i in range(4): o(f'v_pk_mul_f32 {vr(G+2*i,2)}, {vr(G+2*i,2)}, {vr(U+2*i,2)}')
            pack8(o, d, G)
            o(f'global_store_dwordx4 v{G_L16}, {vr(d,4)}, s[{sb}:{sb+1}] offset:{q*1024} sc1')
        if mt < 7: s_add64(o, sb, sb, 112*1024)
        if mt == 1 and mid: mid(4)
    return 16

def epi_db(o, sb, gv):
    T = G_T; sh = S44; n = 0
    for mt in range(4):
        for q in range(2):
            d = G_FA + 4*n; n += 1
            rd_acc(o, T, sh.acc(mt, 2*q), sh.acc(mt, 2*q+1))
            pack8(o, T+8, T)
            unpack8(o, T, T+8)
            for i in range(4): o(f'v_pk_mul_f32 {vr(T+2*i,2)}, {vr(T+2*i,2)}, {vr(gv+2*mt,2)} op_sel:[0,1] op_sel_hi:[1,1]')
            pack8(o, d, T)
            o(f'global_store_dwordx4 v{G_L16}, {vr(d,4)}, s[{sb}:{sb+1}] offset:{q*1024} sc1')
        if mt < 3: s_add64(o, sb, sb, 32*1024)
    return 8

def epi_da(o, sb, gv, so, vo, nmt=4):
    T = G_T; sh = S44; n = 0
    for mt in range(nmt):
        for q in range(2):
            d = G_FA + 4*n
            rd_acc(o, T, sh.acc(mt, 2*q), sh.acc(mt, 2*q+1))
            for i in range(4): o(f'v_accvgpr_read_b32 v{T+24+i}, a{64+4*n+i}')
            n += 1
            pack8(o, T+8, T)
            unpack8(o, T, T+8)
            for i in range(4): o(f'v_pk_mul_f32 {vr(T+2*i,2)}, {vr(T+2*i,2)}, {vr(gv+2*mt,2)} op_sel_hi:[1,0]')
            pack8(o, T+8, T)
            unpack8(o, T, T+8)
            unpack8(o, T+16, T+24)
            for i in range(4): o(f'v_pk_add_f32 {vr(T+2*i,2)}, {vr(T+2*i,2)}, {vr(T+16+2*i,2)}')
            pack8(o, d, T)
            o(f'v_permlane16_swap_b32 v{d}, v{d+2}')
            o(f'v_permlane16_swap_b32 v{d+1}, v{d+3}')
            o(f'global_store_dwordx4 v{vo}, {vr(d,4)}, s[{so}:{so+1}] offset:{q*64}')
        if mt < nmt-1: s_add64(o, so, so, 16*2048)
    return 2*nmt
```

```python
MB = 1 << 20
WS_Q = 0
WS_K = 16 * MB
WS_VT = 32 * MB
WS_H = 48 * MB
WS_O = 64 * MB
WS_KM = 80 * MB
WS_VMT = 84 * MB
WS_RING = 88 * MB
RING_SLOT = 512 * 1024
R_MEM = 0
R_QK = 64 * 1024
R_OB = 192 * 1024
R_C = 4 * MB
WS_PROG = 90 * MB
WS_G = 91 * MB
WS_T2 = 96 * MB
WS_STAMP = 200 * MB
KA = dict(x=0, mem0=8, Wq=16, Wk=24, Wv=32, Wo=40, seg=48, Bx=56, w1=64, w3=72, w2=80, gate=88, out=96, dbg=104, ws=112)
D_INIT = 32; D_MASK = 4; D_TICK = 8; D_BAIL = 16; D_POL = 17; D_DEC = 1; D_DUMMY = 18;
WS_CNT = 90 * MB + 65536
C_KV = 0; C_Q = 8; C_H = 16; C_O = 24; C_B = 40; C_DUMMY = 63
T_END, T_Q, T_K, T_V, T_UP, T_DB, T_DA, T_DK, T_DK2, T_KS, T_VS, T_ATT = 0, 1, 2, 3, 4, 5, 6, 7, 8, 9, 10, 11
HS = 64*8192; SS = 8192
C_TILE = 64
WS_PS = 104 * MB
```

```python
import sys; sys.path.insert(0, 'gen')
from layout import *
from util import *
import chain, bulk, hazard

NAME = 'gated_mix__memory_aug_recurrent_mem_tr__glu_gated_swiglu__prompt'

def item(t, rb, ct, dep=C_DUMMY-1, tgt=0, sig=C_DUMMY): return t | rb << 4 | ct << 8 | dep << 14 | tgt << 20 | sig << 26

def SCHED(KS, KV, KL, UP, Q, DB, DA, DK, AT):
    return [
        [KS(0), KV(0), UP(0,0), Q(0,1), KL(0), DB(0), DA(0), DK(4, 7, 0)],
        [KS(1), KV(1), UP(0,1), Q(0,2), KL(1), DB(1), DA(1), DK(4, 7, 1)],
        [KS(2), KV(2), UP(0,2), Q(0,3), KL(2), DB(2), DA(2), DK(4, 7, 2)],
        [KS(3), KV(3), UP(0,3), UP(1,0), KL(3), DB(3), DB(6), DK(4, 7, 3)],
        [KS(4), KV(4), UP(0,4), UP(1,1), UP(1,5), AT(0), AT(2), DB(4)],
        [KS(5), KV(5), UP(0,5), UP(1,2), UP(1,6), AT(1), AT(3), DB(5)],
        [KS(6), KV(6), UP(0,6), UP(1,3), Q(1,0), Q(1,2), AT(4), AT(5), AT(6)],
        [KS(7), KV(7), Q(0,0), UP(1,4), Q(1,1), Q(1,3), DB(7), AT(7)],
    ] + [[DK(2, 3 + (i & 3), 2*(i >> 2))] for i in range(8)]

def schedule():
    R = range
    def kv(p, rb): return item(T_K if p < 16 else T_V, rb, p & 15, sig=C_KV + rb)
    KS = lambda l: [item(T_KS if l < 4 else T_VS, r, (4*l + c) & 15, sig=C_KV) for c in R(4) for r in R(4)]
    KV = lambda l: [kv(4*l + c, rb) for c in R(4) for rb in R(2, 6)]
    KL = lambda i: [kv(8*i + c, rb) for c in R(8) for rb in (6, 7)]
    UP = lambda h, i: [item(T_UP, 4*h + r, 4*i + c, sig=C_H + 4*h + r) for c in R(4) for r in R(4)]
    Q = lambda h, i: [item(T_Q, 4*h + r, 4*i + c, sig=C_Q + 4*h + i) for c in R(4) for r in R(4)]
    DB = lambda p: [item(T_DB, 2*p + r, c, dep=C_H + p, tgt=28, sig=C_B + p) for r in R(2) for c in R(8)]
    DA = lambda p: [item(T_DA, 2*p + r, c, dep=C_O + 2*p + r, tgt=8) for r in R(2) for c in R(8)]
    DK = lambda n, p, q: [item(T_DK if n == 4 else T_DK2, 2*p + r, c + 8*q, dep=C_O + 2*p + r, tgt=8) for r in R(2) for c in R(8)]
    AT = lambda p: [item(T_ATT, 2*p + r, c, dep=C_Q + 4*(p//4) + c//2, tgt=16, sig=C_O + 2*p + r) for r in R(2) for c in R(8)]
    lanes = SCHED(KS, KV, KL, UP, Q, DB, DA, DK, AT)
    tabs = []
    for g in range(8):
        tabs.append([[b[c & 15] for b in lanes[2*g + (c >> 4)]] for c in range(32)])
    n = max(len(l) for t in tabs for l in t) + 2
    return [[l + [item(0, 0, 0)]*(n - len(l)) for l in t] for t in tabs]

WARMCODE = True
TOUCH = True
def entry(o, stamp):
    o('s_cmp_ge_u32 s2, 256')
    o('s_cbranch_scc1 L_exit')
    if stamp: o('s_memrealtime s[94:95]')
    o(f's_load_dwordx2 s[4:5], s[0:1], {KA["ws"]}')
    o(f's_load_dwordx2 s[6:7], s[0:1], {KA["dbg"]}')
    if WARMCODE:
        o('s_getpc_b64 s[16:17]')
        o('L_entry_pc:')
        o('s_lshr_b32 s54, s2, 3')
        o('s_and_b32 s54, s54, 3')
        o('s_lshl_b32 s54, s54, 15')
        o('v_lshl_add_u32 v24, v0, 7, s54')
        o('v_min_u32 v24, L_code_end-L_entry_pc-4, v24')
        o('global_load_dword v28, v24, s[16:17]')
    o('v_lshrrev_b32 v24, 6, v0')
    o('s_getreg_b32 s12, hwreg(HW_REG_XCC_ID)')
    o('v_readfirstlane_b32 s14, v24')
    o('s_and_b32 s12, s12, 7')
    o('v_mov_b32 v25, 1')
    o('s_mov_b32 s15, 0')
    o('v_mov_b32 v27, 0')
    o('s_waitcnt lgkmcnt(0)')
    o('s_cmp_eq_u32 s14, 0')
    o('s_cbranch_scc0 L_en_w1')
    o('s_lshl_b32 s54, s2, 7')
    o(f's_add_u32 s54, s54, {WS_CNT}')
    o('v_lshl_add_u32 v24, v0, 2, s54')
    o('s_mov_b64 exec, 1')
    o('global_store_dword v24, v27, s[4:5] sc1')
    o('s_waitcnt vmcnt(0)')
    o('s_mov_b64 exec, 1')
    o('s_mov_b32 s13, s12')
    o('L_en_try:')
    o('s_lshl_b32 s54, s13, 2')
    o('v_mov_b32 v24, s54')
    o(f'global_atomic_add v26, v24, v25, s[6:7] offset:{D_TICK*4} sc0')
    o('s_waitcnt vmcnt(0)')
    o('v_readfirstlane_b32 s11, v26')
    o('s_cmp_lt_u32 s11, 32')
    o('s_cbranch_scc1 L_en_got')
    o('s_add_u32 s13, s13, 1')
    o('s_and_b32 s13, s13, 7')
    o('s_cmp_lg_u32 s13, s12')
    o('s_cbranch_scc1 L_en_try')
    o('L_en_got:')
    o('s_lshl_b32 s54, s13, 8')
    o('s_or_b32 s54, s54, s11')
    o('v_mov_b32 v26, s54')
    o('ds_write_b32 v27, v26')
    o('s_cmp_lt_u32 s13, 4')
    o('s_cbranch_scc0 L_en_m')
    o('s_lshl_b32 s54, 1, s12')
    o('v_mov_b32 v26, s54')
    o(f'global_atomic_or v24, v26, s[6:7] offset:{D_MASK*4}')
    o('L_en_m:')
    o('s_mov_b64 exec, -1')
    o('s_branch L_en_j')
    o('L_en_w1:')
    o('L_en_j:')
    o('s_waitcnt lgkmcnt(0)')
    o('s_barrier')
    o('ds_read_b32 v26, v27')
    o('s_waitcnt lgkmcnt(0)')
    o('v_readfirstlane_b32 s54, v26')
    o('s_barrier')
    o('s_and_b32 s11, s54, 255')
    o('s_lshr_b32 s10, s54, 8')
    o('s_cmp_ge_u32 s11, 32')
    o('s_cbranch_scc1 L_exit')
    o('s_cmp_lt_u32 s10, 4')
    o('s_cbranch_scc1 L_chain')
    o('s_sub_u32 s10, s10, 4')
    o('s_branch L_bulk')
    o('L_exit:')
    o('s_endpgm')

KD = '''.amdhsa_kernel {n}
  .amdhsa_next_free_vgpr 512
  .amdhsa_next_free_sgpr 102
  .amdhsa_accum_offset 256
  .amdhsa_group_segment_fixed_size 0
  .amdhsa_kernarg_size 120
  .amdhsa_user_sgpr_count 2
  .amdhsa_user_sgpr_kernarg_segment_ptr 1
  .amdhsa_system_sgpr_workgroup_id_x 1
.end_amdhsa_kernel
'''
def compact(t):
    out = []
    for l in t.split('\n'):
        l = l.split(';')[0].strip()
        if l: out.append(l.replace(', ', ','))
    return '\n'.join(out) + '\n'

def build(stamp=False, DLY=None):
    global WARMCODE, TOUCH
    TOUCH = (DLY or {}).get('touch', 0)
    WARMCODE = (DLY or {}).get('wc', 1)
    o = Out()
    entry(o, stamp)
    tabs = schedule()
    bulk.gen_bulk(o, tabs, stamp)
    chain.gen_chain(o, stamp=stamp, DLY=DLY)
    o('L_code_end:')
    k1, n1 = hazard.fix(o.text())
    o = Out(); bulk.emit_table(o, tabs)
    head = open(f'cdna_kernels/{NAME}.s.ref').read().split('; Override launch geometry')[0]
    s = head
    s += f'; @launch grid=(256,1,1) block=(256,1,1) lds=163840\n'
    s += '.amdgcn_target "amdgcn-amd-amdhsa--gfx950"\n.text\n'
    s += f'.globl {NAME}_kernel\n.p2align 8\n.type {NAME}_kernel,@function\n{NAME}_kernel:\n' + compact(k1)
    s += compact(o.text())
    s += '.section .rodata,"a"\n.p2align 6\n' + KD.format(n=NAME + '_kernel')
    return s

if __name__ == '__main__':
    s = build()
    open(f'cdna_kernels/{NAME}.s', 'w').write(s)
    print(len(s), 'bytes', s.count('\n'), 'lines')
```

```python
from layout import *
from util import *
from gemm2 import *
import gemm2

C_ANAT = 192; C_AH = 196; C_AO = 198; C_OUT = 214; C_B8 = 200; C_B7 = 204; C_B2 = 208; C_RDN = 212; C_RDB = 213
C_AN2 = 244+8; C_BRN = 216; C_BRS = 224
V_TK = 232; V_TA = 215; V_SIG = 233; V_ONE = 234; V_ZERO = 235; V_DEP = 236; V_GADDR = 237; V_DADDR = 238; V_LDEP = 239; V_LDEP0 = 15; V_GV = 240
S_WS = 4; S_DBG = 6; S_GRP = 10
S_PX = 64; S_PQ = 66; S_PK = 68; S_PV = 70; S_P1 = 72; S_P3 = 74; S_P2 = 76; S_TAB = 78; S_PO = 60; S_POUT = 62
S_CURI = 26; S_NXTI = 27; S_PF = 28; S_OUT = 30; S_SIGN = 32; S_BUD = 40
S_TY = 33; S_RB = 34; S_CT = 35
SCALE_LOG2E = f2u(128 ** -0.5 * math.log2(math.e))

def decode(o, item):
    o(f's_and_b32 s{S_TY}, s{item}, 15')
    o(f's_bfe_u32 s{S_RB}, s{item}, 0x40004')
    o(f's_bfe_u32 s{S_CT}, s{item}, 0x60008')

def set_dma(o, P, item, small=False):
    o(f's_lshr_b32 s55, s{S_W}, 1')
    o(f's_cmp_eq_u32 s{S_TY}, {T_DB}')
    o(f's_cbranch_scc1 {P}_d8')
    o(f's_sub_u32 s54, s{S_TY}, {T_DA}')
    o('s_cmp_lt_u32 s54, 3')
    o(f's_cbranch_scc1 {P}_db')
    s_expr(o, 54, [(S_RB, 1 << 19)], const=WS_XB)
    s_add64(o, S_AB, S_WS, 's54')
    o(f's_mov_b32 s{S_AST}, 1024')
    for i in range(4): o(f'v_mov_b32 v{G_AOFF+i}, v{C_ANAT+i}')
    o(f's_bfe_u32 s54, s{item}, 0x60014')
    o(f's_cbranch_scc1 {P}_big')
    for i in range(4): o(f'v_mov_b32 v{G_AOFF+i}, v{C_AN2+i}')
    o(f's_lshl_b32 s54, s{S_RB}, 19')
    if small:
        o(f's_cmp_lt_u32 s{S_TY}, {T_KS}')
        o(f's_cbranch_scc1 {P}_n88')
        a_nat48(o, G_AOFF, C_AN2)
        o(f's_lshl_b32 s54, s{S_RB}, 18')
        o(f'{P}_n88:')
    s_add64(o, S_AB, S_PX, 's54')
    o(f's_mov_b32 s{S_AST}, 64')
    o(f'{P}_big:')
    o(f's_cmp_eq_u32 s{S_TY}, {T_UP}')
    o(f's_cbranch_scc1 {P}_up')
    o(f's_cmp_eq_u32 s{S_TY}, {T_Q}')
    o(f's_cselect_b64 s[56:57], s[{S_PQ}:{S_PQ+1}], s[{S_PK}:{S_PK+1}]')
    o(f's_cmp_eq_u32 s{S_TY}, {T_V}')
    o(f's_cselect_b64 s[56:57], s[{S_PV}:{S_PV+1}], s[56:57]')
    if small:
        o(f's_cmp_eq_u32 s{S_TY}, {T_VS}')
        o(f's_cselect_b64 s[56:57], s[{S_PV}:{S_PV+1}], s[56:57]')
    s_expr(o, 54, [(S_CT, 512), (55, 256)])
    s_add64(o, S_BB, 56, 's54')
    o(f's_mov_b32 s{S_BST}, {32*8192}')
    for i in range(4): o(f'v_mov_b32 v{G_BOFF+i}, v{C_B8+i}')
    o(f's_branch {P}_e')
    o(f'{P}_up:')
    o('s_cmp_eq_u32 s55, 1')
    o(f's_cselect_b64 s[56:57], s[{S_P3}:{S_P3+1}], s[{S_P1}:{S_P1+1}]')
    o(f's_lshl_b32 s54, s{S_CT}, 8')
    s_add64(o, S_BB, 56, 's54')
    o(f's_mov_b32 s{S_BST}, {32*7168}')
    for i in range(4): o(f'v_mov_b32 v{G_BOFF+i}, v{C_B7+i}')
    o(f's_branch {P}_e')
    o(f'{P}_d8:')
    s_expr(o, 54, [(S_RB, 16*112*1024)], const=WS_H)
    s_add64(o, S_AB, S_WS, 's54')
    o(f's_mov_b32 s{S_AST}, 1024')
    s_expr(o, 54, [(S_CT, 512), (55, 256)])
    s_add64(o, S_BB, S_P2, 's54')
    o(f's_mov_b32 s{S_BST}, {32*2048}')
    o(f'v_mov_b32 v{G_AOFF}, v{C_AH}')
    for i in range(1, 4): o(f'v_add_u32 v{G_AOFF+i}, {i*111*1024}, v{C_AH}')
    for i in range(4): o(f'v_mov_b32 v{G_BOFF+i}, v{C_B2+i}')
    o(f's_branch {P}_e')
    o(f'{P}_db:')
    o(f's_lshr_b32 s57, s{S_CT}, 3')
    s_expr(o, 54, [(S_RB, 8*128*1024), (57, 32768)], const=WS_O)
    o(f's_and_b32 s12, s{S_CT}, 7')
    s_expr(o, 12, [(12, 256), (55, 32*2048), (57, 2*MB)])
    s_add64(o, S_AB, S_WS, 's54')
    o(f's_mov_b32 s{S_AST}, 2048')
    s_add64(o, S_BB, S_PO, 's12')
    o(f's_mov_b32 s{S_BST}, {64*2048}')
    for i in range(4):
        o(f'v_mov_b32 v{G_AOFF+i}, v{C_AO+(i>>1)}')
        o(f'v_mov_b32 v{G_BOFF+i}, v{C_B2+i}')
    o(f'{P}_e:')

def poll_ge(o, lbl, addr_v, base, target, off=0, allw=False, sleep=16):
    if not allw:
        o(f's_cmp_lg_u32 s{S_W}, 0')
        o(f's_cbranch_scc1 {lbl}_ok')
    o(f'{lbl}:')
    o(f'global_load_dword v{V_DEP}, v{addr_v}, s[{base}:{base+1}] offset:{off} sc1')
    o(f's_sub_u32 s{S_BUD}, s{S_BUD}, 1')
    o('s_cbranch_scc1 L_bulk_bail')
    o('s_waitcnt vmcnt(0)')
    o(f'v_cmp_gt_u32 vcc, {target}, v{V_DEP}')
    o(f's_cbranch_vccz {lbl}_ok')
    o(f's_sleep {sleep}')
    o(f's_branch {lbl}')
    o(f'{lbl}_ok:')

_n = [0]
def SIG():
    _n[0] += 1
    return (f's_cmp_eq_u32 s39, 0\n    s_cbranch_scc1 L_sig{_n[0]}\n    s_mov_b32 s39, 0\n    s_mov_b64 exec, 1\n    global_atomic_add v{V_SIG}, v{V_ONE}, s[{S_WS}:{S_WS+1}]\n    s_mov_b64 exec, -1\nL_sig{_n[0]}:\n    s_nop 0')
def cnt(i): return WS_CNT + 128*i
def flush_sig(o):
    o('s_waitcnt vmcnt(0)')
    o('s_barrier')
    o(SIG())

def fetch_issue(o):
    pass

def gen_bulk(o, tables, stamp=False):
    o('L_bulk:')
    for reg, nm in ((S_WS, 'ws'), (S_DBG, 'dbg'), (S_PX, 'x'), (S_PQ, 'Wq'), (S_PK, 'Wk'), (S_PV, 'Wv'), (S_P1, 'w1'), (S_P3, 'w3'), (S_P2, 'w2'), (S_PO, 'Wo'), (S_POUT, 'out')):
        o(f's_load_dwordx2 s[{reg}:{reg+1}], s[0:1], {KA[nm]}')
    o('v_lshrrev_b32 v2, 6, v0')
    o(f's_mov_b32 s{S_BUD}, 0x200000')
    o(f'v_readfirstlane_b32 s{S_W}, v2')
    o(f's_getpc_b64 s[{S_TAB}:{S_TAB+1}]')
    o('L_bulk_pc:')
    o(f's_add_u32 s{S_TAB}, s{S_TAB}, L_table-L_bulk_pc')
    o(f's_addc_u32 s{S_TAB+1}, s{S_TAB+1}, 0')
    n = len(tables[0][0])
    s_expr(o, 54, [(S_GRP, 32*n*4), (11, n*4)])
    s_add64(o, S_TAB, S_TAB, 's54')
    o(f's_load_dwordx2 s[{S_CURI}:{S_CURI+1}], s[{S_TAB}:{S_TAB+1}], 0')
    o(f's_lshl_b32 s{S_MA}, s{S_W}, 12')
    tid_expr(o, G_L16, [(0, 6, 16)])
    o(f'v_add_u32 v{G_L16B}, 4096, v{G_L16}')
    tid_expr(o, C_ANAT, [(0, 6, 16), (6, 2, 4*32768)])
    for i in range(1, 4): o(f'v_add_u32 v{C_ANAT+i}, {i*(32768-1024)}, v{C_ANAT}')
    a_nat(o, C_AN2, C_RDN)
    tid_expr(o, C_AH, [(0, 6, 16), (6, 2, 4*112*1024)])
    a_blk44(o, C_AO, 128*1024)
    tid_expr(o, C_RDB, [(0, 6, 16), (7, 1, 8192)])
    tid_expr(o, C_OUT, [(0, 4, 2048), (4, 1, 32), (5, 1, 16), (7, 1, 64*2048), (6, 1, 128)])
    b_off(o, C_B8, False, 8192)
    b_off(o, C_B7, False, 7168)
    b_off(o, C_B2, True, 2048)
    b_rd(o, C_BRN, False)
    b_rd(o, C_BRS, True)
    o(f'v_mov_b32 v{V_ONE}, 1')
    o(f'v_mov_b32 v{V_ZERO}, 0')
    o(f'v_mov_b32 v{V_SIG}, {cnt(C_DUMMY)}')
    tid_expr(o, V_GADDR, [(0, 4, 8), (7, 1, 512)], const=WS_G)
    tid_expr(o, V_LDEP, [(6, 2, 4)], const=131072)
    o(f'v_mov_b32 v{V_LDEP0}, 131072')
    o(f's_mov_b32 s{S_PF}, 0')
    o('s_mov_b32 s41, 0')
    o('s_mov_b32 s42, -1')
    o('s_mov_b32 s43, 0')
    o(f'v_mov_b32 v{V_TA}, 0')
    o('s_mov_b32 s39, 0')
    o(f's_cmp_eq_u32 s{S_W}, 0')
    o('s_cselect_b32 s38, 1, 0')
    o('s_waitcnt lgkmcnt(0)')
    o(f's_mov_b64 s[48:49], s[{S_P1}:{S_P1+1}]')
    o(f's_mov_b64 s[8:9], s[{S_P1}:{S_P1+1}]')
    o(f's_mov_b64 s[44:45], s[{S_WS}:{S_WS+1}]')
    if stamp:
        s_expr(o, 54, [(S_GRP, 32*256), (11, 256)], const=WS_STAMP + 17*MB)
        o('v_mov_b32 v250, s54')
    o('L_bulk_item:')
    if stamp:
        o('s_memrealtime s[90:91]')
        o('s_waitcnt lgkmcnt(0)')
        o('s_sub_u32 s90, s90, s94')
        o('v_mov_b32 v248, s90')
        o(f'v_mov_b32 v249, s{S_CURI}')
        o('s_mov_b64 exec, 1')
        o('global_store_dwordx2 v250, v[248:249], s[4:5]')
        o('s_mov_b64 exec, -1')
        o('v_add_u32 v250, 8, v250')
    decode(o, S_CURI)
    o(f's_cmp_eq_u32 s{S_TY}, {T_END}')
    o('s_cbranch_scc1 L_bulk_end')
    o(f's_cmp_lg_u32 s{S_PF}, 0')
    o('s_cbranch_scc1 L_bulk_go')
    flush_sig(o)
    o(f's_bfe_u32 s54, s{S_CURI}, 0x6000e')
    o(f's_bfe_u32 s37, s{S_CURI}, 0x60014')
    s_expr(o, 54, [(54, 128)], const=WS_CNT)
    o(f'v_mov_b32 v{G_T}, s54')
    o('s_cmp_eq_u32 s37, 0')
    o('s_cbranch_scc1 L_bulk_dep_ok')
    poll_ge(o, 'L_bulk_dep', G_T, S_WS, 's37', sleep=6)
    o(f's_cmp_ge_u32 s{S_TY}, {T_ATT}')
    o('s_cbranch_scc1 L_att')
    set_dma(o, 'L_sd0', S_CURI, True)
    o('s_barrier')
    prologue_dma(o, S88, 'sc1')
    o('s_cmp_lg_u32 s41, 0')
    o('s_cbranch_scc1 L_bulk_tk_ok')
    tid_expr(o, G_T, [(0, 3, 4)])
    poll_ge(o, 'L_bulk_tk', G_T, S_DBG, 32, D_TICK*4)
    o('s_waitcnt vmcnt(0)')
    o('L_bulk_go:')
    o(f's_bfe_u32 s54, s{S_NXTI}, 0x6000e')
    s_expr(o, 54, [(54, 128)], const=WS_CNT)
    o(f'v_mov_b32 v{V_DADDR}, s54')
    o(f's_lshr_b32 s{S_SIGN}, s{S_CURI}, 26')
    o(f's_lshr_b32 s55, s{S_W}, 1')
    o(f's_and_b32 s56, s{S_W}, 1')
    o(f's_sub_u32 s54, s{S_TY}, {T_DA}')
    o('s_cmp_lt_u32 s54, 3')
    o('s_cbranch_scc1 L_g_db')
    o(f's_bfe_u32 s54, s{S_CURI}, 0x60014')
    o('s_cselect_b64 vcc, -1, 0')
    o(f'v_cndmask_b32 v{G_ARD}, v{C_RDN}, v{C_RDB}, vcc')
    o(f's_mov_b32 s{S_CNT}, 6')
    o(f's_cmp_eq_u32 s{S_TY}, {T_UP}')
    o('s_cbranch_scc1 L_g_up')
    for i in range(8): o(f'v_mov_b32 v{G_BRD+i}, v{C_BRN+i}')
    o(f's_cmp_ge_u32 s{S_TY}, {T_KS}')
    o('s_cbranch_scc1 L_g_small')
    o(f's_cmp_eq_u32 s{S_TY}, {T_DB}')
    o('s_cbranch_scc0 L_g_qkv')
    o(f's_mov_b32 s{S_CNT}, 26')
    s_expr(o, 54, [(S_RB, 16*32*1024), (55, 8*32*1024), (S_CT, 8192), (56, 4096)], const=WS_T2)
    s_add64(o, S_OUT, S_WS, 's54')
    s_expr(o, 54, [(S_RB, 2048), (55, 512)])
    s_add64(o, 44, S_WS, 's54')
    o('s_branch L_g_tr')
    o('L_g_qkv:')
    o(f's_sub_u32 s57, s{S_TY}, 1')
    s_expr(o, 54, [(57, 16*MB), (S_RB, 8*SS), (55, 4*SS), (S_CT, 2*HS), (56, HS)])
    s_add64(o, S_OUT, S_WS, 's54')
    o(f's_cmp_eq_u32 s{S_TY}, {T_V}')
    o('s_cbranch_scc1 L_g_v')
    o('s_branch L_g_tr')
    o('L_g_up:')
    for i in range(8): o(f'v_mov_b32 v{G_BRD+i}, v{C_BRS+i}')
    s_expr(o, 54, [(S_RB, 16*112*1024), (55, 8*112*1024), (S_CT, 4096), (56, 2048)], const=WS_H)
    s_add64(o, S_OUT, S_WS, 's54')
    def hook(P):
        o(f's_mov_b32 s36, s{S_TY}')
        decode(o, S_NXTI)
        o(f's_mov_b32 s{S_PF}, 1')
        o(f's_sub_u32 s54, s{S_TY}, 1')
        o('s_cmp_lt_u32 s54, 6')
        o(f's_cbranch_scc0 {P}_no')
        o(f'ds_read_b128 {vr(G_T,4)}, v{V_LDEP0}')
        o(f's_bfe_u32 s55, s{S_NXTI}, 0x60014')
        o('s_waitcnt lgkmcnt(0)')
        o(f'v_min3_u32 v{G_T}, v{G_T}, v{G_T+1}, v{G_T+2}')
        o(f'v_min_u32 v{G_T}, v{G_T}, v{G_T+3}')
        o(f'v_readfirstlane_b32 s54, v{G_T}')
        o('s_cmp_ge_u32 s54, s55')
        o(f's_cbranch_scc1 {P}_pf')
        o(f'{P}_no:')
        o(f's_mov_b32 s{S_PF}, 0')
        o(f's_mov_b32 s{S_TY}, {T_Q}')
        o(f's_mov_b32 s{S_RB}, 0')
        o(f's_mov_b32 s{S_CT}, 0')
        o(f'{P}_pf:')
        set_dma(o, P + '_sd', S_NXTI)
        o(f's_cmp_eq_u32 s{S_PF}, 0')
        o(f's_cselect_b64 s[{S_AB}:{S_AB+1}], s[{S_PX}:{S_PX+1}], s[{S_AB}:{S_AB+1}]')
    def depload():
        return [f'global_load_dword v{V_DEP}, v{V_DADDR}, s[{S_WS}:{S_WS+1}] sc1']
    depw = [f'ds_write_b32 v{V_LDEP}, v{V_DEP}']
    def warm(P):
        o('s_add_u32 s42, s42, 1')
        o('s_mov_b32 s43, 0')
        o('s_cmp_ge_u32 s42, 2')
        o(f's_cbranch_scc1 {P}_nw')
        s_expr(o, 54, [(S_GRP, 32*57344), (11, 57344)])
        tid_expr(o, V_TA, [(0, 4, 128), (6, 2, 14336)], sregs=[54])
        o('s_cmp_eq_u32 s42, 0')
        o(f's_cselect_b64 s[48:49], s[{S_P1}:{S_P1+1}], s[{S_P2}:{S_P2+1}]')
        o(f's_cselect_b64 s[8:9], s[{S_P3}:{S_P3+1}], s[{S_P2}:{S_P2+1}]')
        o('s_mov_b32 s43, 7')
        o(f'{P}_nw:')
    def touch(second):
        _n[0] += 1
        adv = f'    s_sub_u32 s43, s43, 1\n    v_add_u32 v{V_TA}, 2048, v{V_TA}\n' if second else ''
        return [f's_cmp_eq_u32 s43, 0\n    s_cbranch_scc1 L_tch{_n[0]}\n    global_load_dword v{V_TK}, v{V_TA}, {"s[8:9]" if second else "s[48:49]"}\n{adv}L_tch{_n[0]}:\n    s_nop 0']
    def tk(k):
        if stamp: o(f's_memtime s[{80+2*k}:{81+2*k}]')
    def finish(nst):
        s_expr(o, 54, [(S_SIGN, 128)], const=WS_CNT)
        o(f'v_mov_b32 v{V_SIG}, s54')
        o(f's_cmp_eq_u32 s{S_SIGN}, {C_DUMMY}')
        o('s_cselect_b32 s39, 0, s38')
        o(f's_waitcnt vmcnt({nst})')
        if stamp:
            tk(4)
            o('s_waitcnt lgkmcnt(0)')
            for k in range(4):
                o(f's_sub_u32 s54, s{82+2*k}, s{80+2*k}')
                o(f'v_mov_b32 v{G_T+k}, s54')
            o('v_lshlrev_b32 v251, 1, v250')
            o(f'v_subrev_u32 v251, {WS_STAMP + 16*MB + 16}, v251')
            o('s_mov_b64 exec, 1')
            o(f'global_store_dwordx4 v251, {vr(G_T,4)}, s[4:5]')
            o('s_mov_b64 exec, -1')
        o('s_branch L_bulk_adv')
    def run(P, sh, tr, asc, pre=None):
        tk(0)
        body_first(o, sh, tr, asc, [SIG()] + depload())
        tk(1)
        T_ = (lambda s: touch(s)) if (sh is S88 and gemm2.EXP.get('btouch')) else (lambda s: [])
        body_mid(o, P, sh, tr, asc, depw + T_(False), depload() + T_(True), T_(True), T_(False))
        tk(2)
        if pre: pre()
        hook(P + '_h')
        body_last(o, sh, tr)
        tk(3)
    o('L_g_tr:')
    run('L_g_tr', S88, True, 'sc1')
    o(f's_cmp_eq_u32 s36, {T_UP}')
    o('s_cbranch_scc1 L_e_up')
    o(f's_cmp_eq_u32 s36, {T_DB}')
    o('s_cbranch_scc1 L_e_db')
    finish(epi_blocked(o, 'qk', S_OUT))
    o('L_e_up:')
    finish(epi_up(o, S_OUT))
    o('L_e_db:')
    poll_ge(o, 'L_db_init', V_ZERO, S_DBG, 128, D_INIT*4, allw=True)
    for mt in range(8): o(f'global_load_dwordx2 {vr(160+2*mt,2)}, v{V_GADDR}, s[44:45] offset:{mt*128} sc1')
    o('s_waitcnt vmcnt(0)')
    finish(epi_db(o, S_OUT, 160))
    o('L_g_v:')
    run('L_g_v', S88, False, 'sc1')
    finish(epi_blocked(o, 'v', S_OUT))
    o('L_g_small:')
    o(f's_sub_u32 s57, s{S_TY}, {T_KS - 1}')
    s_expr(o, 54, [(57, 16*MB), (S_RB, 4*SS), (55, 2*SS), (S_CT, 2*HS), (56, HS)])
    s_add64(o, S_OUT, S_WS, 's54')
    o(f's_cmp_eq_u32 s{S_TY}, {T_VS}')
    o('s_cbranch_scc1 L_g_vs')
    run('L_g_ks', S48, True, '')
    finish(epi_blocked(o, 'qk', S_OUT, S48))
    o('L_g_vs:')
    run('L_g_vs', S48, False, '')
    finish(epi_blocked(o, 'v', S_OUT, S48))
    o('L_g_db:')
    o(f'v_mov_b32 v{G_ARD}, v{C_RDB}')
    for i in range(8): o(f'v_mov_b32 v{G_BRD+i}, v{C_BRS+i}')
    o(f's_lshr_b32 s13, s{S_CT}, 3')
    o(f's_and_b32 s12, s{S_CT}, 7')
    s_expr(o, 54, [(S_RB, 8*32*1024), (55, 4*32*1024), (12, 4096), (56, 2048), (13, 32*1024)], const=WS_T2)
    s_add64(o, S_OUT, S_WS, 's54')
    s_expr(o, 54, [(S_RB, 128*2048), (12, 256), (13, 16*2048)])
    s_add64(o, 44, S_POUT, 's54')
    s_expr(o, 15, [(S_RB, 8), (12, 1)])
    o(f's_cmp_eq_u32 s{S_TY}, {T_DK}')
    o('s_cselect_b32 s54, 2, 14')
    o(f's_cmp_eq_u32 s{S_TY}, {T_DK2}')
    o('s_cselect_b32 s54, 6, s54')
    o(f's_mov_b32 s{S_CNT}, s54')
    s_expr(o, 54, [(S_RB, 1024), (13, 128)])
    s_add64(o, 46, S_WS, 's54')
    for mt in range(4): o(f'global_load_dwordx2 {vr(V_GV+2*mt,2)}, v{V_GADDR}, s[46:47] offset:{mt*128} sc1')
    def t2load():
        o(f's_lshr_b32 s54, s{S_RB}, 1')
        s_expr(o, 54, [(54, 128)], const=cnt(C_B))
        o(f'v_mov_b32 v{G_T}, s54')
        poll_ge(o, 'L_bulk_dep2', G_T, S_WS, 4, allw=True, sleep=4)
        for mt in range(4):
            for q in range(2): o(f'global_load_dwordx4 {ar(64+8*mt+4*q,4)}, v{G_L16}, s[{S_OUT}:{S_OUT+1}] offset:{q*1024} sc1')
            if mt < 2:
                o(f's_cmp_eq_u32 s{S_TY}, {T_DK + mt}')
                o('s_cbranch_scc1 L_g_d3')
            if mt < 3: s_add64(o, S_OUT, S_OUT, 32*1024)
        o('L_g_d3:')
    run('L_g_d', S44, True, 'sc1', t2load)
    o(f's_cmp_eq_u32 s36, {T_DA}')
    o('s_cbranch_scc1 L_e_da')
    o('s_branch L_e_dk')
    o('L_e_da:')
    o('s_waitcnt vmcnt(32)')
    finish(epi_da(o, S_OUT, V_GV, 44, C_OUT))
    o('L_e_dk:')
    s_expr(o, 54, [(15, 262144), (S_W, 16384)], const=WS_PS)
    s_add64(o, 46, S_WS, 's54')
    o('s_lshl_b32 s54, s13, 16')
    s_add64(o, 50, 46, 's54')
    for k in range(16):
        o(f'global_store_dwordx4 v{G_L16+((k>>2)&1)}, {ar(4*k,4)}, s[50:51] offset:{(k&3)*1024} sc1')
        if k == 7: s_add64(o, 50, 50, 8192)
    s_expr(o, 54, [(15, 128)], const=cnt(C_TILE))
    o(f'v_mov_b32 v{V_SIG}, s54')
    o('s_mov_b32 s39, s38')
    flush_sig(o)
    o(f's_cmp_eq_u32 s36, {T_DK}')
    o('s_cselect_b32 s37, 4, 2')
    poll_ge(o, 'L_dk_w', V_SIG, S_WS, 's37', sleep=2)
    o('s_barrier')
    o('s_lshl_b32 s54, s13, 12')
    s_add64(o, 46, 46, 's54')
    o(f's_cmp_eq_u32 s36, {T_DK}')
    o('s_cbranch_scc1 L_e_dk4')
    for p in range(2):
        for k in range(8): o(f'global_load_dwordx4 {vr(G_FA+64+32*p+4*k,4)}, v{G_L16+(k>>2)}, s[46:47] offset:{(k&3)*1024} sc1')
        if p < 1: s_add64(o, 46, 46, 131072)
    o('s_waitcnt vmcnt(0)')
    for i in range(16): o(f'v_pk_add_f32 {vr(G_FA+64+2*i,2)}, {vr(G_FA+64+2*i,2)}, {vr(G_FA+96+2*i,2)}')
    for i in range(32): o(f'v_accvgpr_write_b32 a{i}, v{G_FA+64+i}')
    finish(epi_da(o, S_OUT, V_GV, 44, C_OUT, 2))
    o('L_e_dk4:')
    for p in range(4):
        for k in range(4): o(f'global_load_dwordx4 {vr(G_FA+64+16*p+4*k,4)}, v{G_L16}, s[46:47] offset:{k*1024} sc1')
        if p < 3: s_add64(o, 46, 46, 65536)
    P0 = G_FA + 64
    o('s_waitcnt vmcnt(8)')
    for i in range(8): o(f'v_pk_add_f32 {vr(P0+2*i,2)}, {vr(P0+2*i,2)}, {vr(P0+16+2*i,2)}')
    o('s_waitcnt vmcnt(0)')
    for i in range(8): o(f'v_pk_add_f32 {vr(P0+32+2*i,2)}, {vr(P0+32+2*i,2)}, {vr(P0+48+2*i,2)}')
    for i in range(8): o(f'v_pk_add_f32 {vr(P0+2*i,2)}, {vr(P0+2*i,2)}, {vr(P0+32+2*i,2)}')
    for i in range(16): o(f'v_accvgpr_write_b32 a{i}, v{P0+i}')
    finish(epi_da(o, S_OUT, V_GV, 44, C_OUT, 1))
    o('L_bulk_adv:')
    o('s_cmp_lg_u32 s41, 0')
    o('s_cbranch_scc1 L_bulk_adv2')
    o('s_mov_b32 s41, 1')
    flush_sig(o)
    o('L_bulk_adv2:')
    warm('L_w')
    o('L_bulk_adv3:')
    o(f's_mov_b32 s{S_CURI}, s{S_NXTI}')
    s_add64(o, S_TAB, S_TAB, 4)
    o(f's_load_dword s{S_NXTI}, s[{S_TAB}:{S_TAB+1}], 4')
    o('s_waitcnt lgkmcnt(0)')
    o('s_branch L_bulk_item')
    gen_att(o)
    o('L_bulk_bail:')
    o(f'global_atomic_add v{V_ZERO}, v{V_ONE}, s[{S_DBG}:{S_DBG+1}] offset:{D_BAIL*4}')
    o('s_endpgm')
    o('L_bulk_end:')
    flush_sig(o)
    if gemm2.EXP.get('diag'): diag(o, 0)
    o('s_waitcnt vmcnt(0)')
    o('s_endpgm')

def gen_att(o):
    T = G_T
    o('L_att:')
    o(f's_cmp_eq_u32 s{S_TY}, {T_WARM}')
    o('s_cbranch_scc0 L_att0')
    s_expr(o, 54, [(S_CT, 229376)])
    tid_expr(o, T, [(0, 8, 128)], sregs=[54])
    for k in range(7):
        o(f'global_load_dword v{V_TK}, v{T}, s[{S_P2}:{S_P2+1}]')
        if k < 6: o(f'v_add_u32 v{T}, 32768, v{T}')
    o(f's_mov_b32 s{S_PF}, 0')
    o('s_branch L_bulk_adv3')
    o('L_att0:')
    o(f's_lshr_b32 s13, s{S_CT}, 3')
    s_expr(o, 13, [(13, 1), (S_RB, 4)])
    o(f's_and_b32 s36, s{S_CT}, 7')
    s_expr(o, 36, [(36, 4), (S_W, 1)])
    poll_ge(o, 'L_att_i', V_ZERO, S_DBG, 128, D_INIT*4)
    o('s_barrier')
    o('s_lshr_b32 s54, s36, 1')
    s_expr(o, 54, [(54, 1024)], const=WS_PROG)
    tid_expr(o, 51, [(0, 3, 128)], sregs=[54])
    o('s_and_b32 s37, s13, 0xf8')
    o('s_add_u32 s37, s37, 1')
    poll_ge(o, 'L_att_p', 51, S_WS, 's37', allw=True)
    o('s_add_u32 s37, s13, 1')
    s_expr(o, 54, [(13, SS), (36, HS)])
    s_add64(o, 44, S_WS, 's54')
    s_add64(o, 46, 44, WS_K)
    s_add64(o, 16, 44, WS_VT)
    s_expr(o, 54, [(13, SS//4), (36, HS//4)], const=WS_KM)
    s_add64(o, 50, S_WS, 's54')
    s_add64(o, 52, 50, WS_VMT - WS_KM)
    s_expr(o, 54, [(13, 2*128*1024), (36, 4096)], const=WS_O)
    s_add64(o, S_OUT, S_WS, 's54')
    VKM = 60; VVM = 61; MSK = 56; SC = 62; ONES = 52
    tid_expr(o, VKM, [(4, 2, 128), (2, 2, 32), (0, 1, 16)])
    tid_expr(o, VVM, [(0, 6, 4)])
    tid_expr(o, T, [(4, 2, 4)])
    o(f'v_and_b32 v{T+1}, 15, v0')
    o(f'v_mov_b32 v{T+2}, 0xff800000')
    for i in range(4):
        o(f'v_add_u32 v{T+3}, {i}, v{T}')
        o(f'v_cmp_le_u32 vcc, v{T+3}, v{T+1}')
        o(f'v_cndmask_b32 v{MSK+i}, v{T+2}, 0, vcc')
        o(f'v_mov_b32 v{ONES+i}, 0x3f803f80')
    o(f'v_mov_b32 v{SC}, {SCALE_LOG2E:#x}')
    o(f'v_mov_b32 v{SC+1}, {SCALE_LOG2E:#x}')
    for b in range(2):
        for et in range(8): o(f'v_accvgpr_write_b32 a{128*b + 112 + 2*et + 1}, 0')
    NL = 8 + 8 + 4 + 8 + 8
    def loads(b, part=3):
        B = 128*b
        if part != 3:
            if part == 1:
                for (base, sb) in ((0, 44), (32, 46), (64, 16)):
                    for k in range(8): o(f'global_load_dwordx4 {ar(B+base+4*k,4)}, v{G_L16+(k>>2)}, s[{sb}:{sb+1}] offset:{(k&3)*1024} sc1')
                for r in (44, 46, 16): s_add64(o, r, r, SS)
            else:
                for k in range(4): o(f'global_load_dwordx4 {ar(B+96+4*k,4)}, v{VKM}, s[50:51] offset:{k*512} sc1')
                for k in range(8): o(f'global_load_dword a{B+112+2*k}, v{VVM}, s[52:53] offset:{k*256} sc1')
                for r in (50, 52): s_add64(o, r, r, SS//4)
            return
        for k in range(8): o(f'global_load_dwordx4 {ar(B+4*k,4)}, v{G_L16+(k>>2)}, s[44:45] offset:{(k&3)*1024} sc1')
        for k in range(8): o(f'global_load_dwordx4 {ar(B+32+4*k,4)}, v{G_L16+(k>>2)}, s[46:47] offset:{(k&3)*1024} sc1')
        for k in range(4): o(f'global_load_dwordx4 {ar(B+96+4*k,4)}, v{VKM}, s[50:51] offset:{k*512} sc1')
        for k in range(8): o(f'global_load_dwordx4 {ar(B+64+4*k,4)}, v{G_L16+(k>>2)}, s[16:17] offset:{(k&3)*1024} sc1')
        for k in range(8): o(f'global_load_dword a{B+112+2*k}, v{VVM}, s[52:53] offset:{k*256} sc1')
        for r in (44, 46, 16): s_add64(o, r, r, SS)
        for r in (50, 52): s_add64(o, r, r, SS//4)
    S = 64
    Pp = 84
    Lr = 96
    O = 128
    D = 104
    def compute(b, st, more):
        B = 128*b
        Q = lambda t, e: ar(B + 4*(t*4+e), 4)
        K = lambda t, e: ar(B + 32 + 4*(t*4+e), 4)
        V = lambda et, n=4: ar(B + 64 + 4*et, n)
        KM = lambda e: ar(B + 96 + 4*e, 4)
        VM = lambda et: ar(B + 112 + 2*et, 2)
        o(f's_waitcnt vmcnt({st + 16})')
        if more: loads(b ^ 1)
        for e in range(4):
            for (d, a, q, c0) in ((S, K(0, e), Q(0, e), vr(MSK, 4)), (S+4, KM(e), Q(0, e), '0'), (S+8, K(0, e), Q(1, e), '0'), (S+12, K(1, e), Q(1, e), vr(MSK, 4)), (S+16, KM(e), Q(1, e), '0')):
                o(f'v_mfma_f32_16x16x32_bf16 {vr(d,4)}, {a}, {q}, {c0 if e == 0 else vr(d,4)}')
        for tq in range(2):
            vals = [S, S+1, S+2, S+3, S+4, S+5] if tq == 0 else list(range(S+8, S+18))
            m = T + 2*tq
            o(f'v_max3_f32 v{m}, v{vals[0]}, v{vals[1]}, v{vals[2]}')
            for i in range(3, len(vals)-1, 2): o(f'v_max3_f32 v{m}, v{m}, v{vals[i]}, v{vals[i+1]}')
            o(f'v_max_f32 v{m}, v{m}, v{vals[-1]}')
        for sw in ('32', '16'):
            for tq in range(2): o(f'v_mov_b32 v{T+2*tq+1}, v{T+2*tq}')
            for tq in range(2): o(f'v_permlane{sw}_swap_b32 v{T+2*tq}, v{T+2*tq+1}')
            for tq in range(2): o(f'v_max_f32 v{T+2*tq}, v{T+2*tq}, v{T+2*tq+1}')
        for tq in range(2): o(f'v_mul_f32 v{T+2*tq}, v{SC}, v{T+2*tq}')
        for tq in range(2):
            prs = [S, S+2, S+4] if tq == 0 else [S+8, S+10, S+12, S+14, S+16]
            dst = [Pp, Pp+1, Pp+2] if tq == 0 else [Pp+4, Pp+5, Pp+6, Pp+7, Pp+8]
            for r in prs: o(f'v_pk_fma_f32 {vr(r,2)}, {vr(r,2)}, {vr(SC,2)}, {vr(T+2*tq,2)} op_sel_hi:[1,1,0] neg_lo:[0,0,1] neg_hi:[0,0,1]')
            for r in prs:
                o(f'v_exp_f32 v{r}, v{r}'); o(f'v_exp_f32 v{r+1}, v{r+1}')
            for r, d in zip(prs, dst): o(f'v_cvt_pk_bf16_f32 v{d}, v{r}, v{r+1}')
        o(f's_waitcnt vmcnt({max(0, st + (NL if more else 0))})')
        o(f'v_mfma_f32_16x16x32_bf16 {vr(Lr,4)}, {vr(ONES,4)}, {vr(Pp,4)}, 0')
        o(f'v_mfma_f32_16x16x32_bf16 {vr(Lr+4,4)}, {vr(ONES,4)}, {vr(Pp+4,4)}, 0')
        for et in range(8):
            o(f'v_mfma_f32_16x16x16_bf16 {vr(O+4*et,4)}, {V(et,2)}, {vr(Pp,2)}, 0')
        o(f'v_mfma_f32_16x16x16_bf16 {vr(Lr+4,4)}, {vr(ONES,2)}, {vr(Pp+8,2)}, {vr(Lr+4,4)}')
        for et in range(8):
            o(f'v_mfma_f32_16x16x16_bf16 {vr(O+4*et,4)}, {VM(et)}, {vr(Pp+2,2)}, {vr(O+4*et,4)}')
        o(f'v_rcp_f32 v{T}, v{Lr}')
        o(f'v_rcp_f32 v{T+2}, v{Lr+4}')
        for et in range(8):
            o(f'v_mfma_f32_16x16x32_bf16 {vr(O+32+4*et,4)}, {V(et)}, {vr(Pp+4,4)}, 0')
        for et in range(8):
            o(f'v_mfma_f32_16x16x16_bf16 {vr(O+32+4*et,4)}, {VM(et)}, {vr(Pp+8,2)}, {vr(O+32+4*et,4)}')
        for tq in range(2):
            for q in range(4):
                r = O + 32*tq + 8*q
                for i in range(4): o(f'v_pk_mul_f32 {vr(r+2*i,2)}, {vr(r+2*i,2)}, {vr(T+2*tq,2)} op_sel_hi:[1,0]')
                pack8(o, D + 4*q, r)
                o(f'global_store_dwordx4 v{G_L16}, {vr(D+4*q,4)}, s[{S_OUT}:{S_OUT+1}] offset:{q*1024} sc1')
            s_add64(o, S_OUT, S_OUT, 128*1024)
    o(f'v_mov_b32 v{Pp+3}, 0')
    o(f'v_mov_b32 v{Pp+9}, 0')
    o('s_add_u32 s12, s37, 1')
    o(f's_cmp_eq_u32 s{S_TY}, {T_AT1}')
    o('s_cbranch_scc1 L_att_sl')
    o('s_add_u32 s54, s37, 3')
    o(f'v_cmp_gt_u32 vcc, s54, v{V_DEP}')
    o('s_cbranch_vccnz L_att_slow')
    loads(0)
    compute(0, 0, True)
    compute(1, 8, True)
    compute(0, 8, True)
    compute(1, 8, False)
    o('s_branch L_att_end')
    o('L_att_slow:')
    o('s_add_u32 s12, s37, 4')
    o('L_att_sl:')
    loads(0, 1)
    poll_ge(o, 'L_att_p2', 51, S_WS, 's37', allw=True, sleep=3)
    loads(0, 2)
    compute(0, -8, False)
    o('s_add_u32 s37, s37, 1')
    o('s_cmp_lt_u32 s37, s12')
    o('s_cbranch_scc1 L_att_sl')
    o('L_att_end:')
    o(f's_lshr_b32 s54, s{S_CURI}, 26')
    s_expr(o, 54, [(54, 128)], const=WS_CNT)
    o(f'v_mov_b32 v{V_SIG}, s54')
    o('s_mov_b32 s39, s38')
    o(f's_mov_b32 s{S_PF}, 0')
    o('s_branch L_bulk_adv3')

def emit_table(o, tables):
    o.L.append('.p2align 4')
    o.L.append('.type L_table,@object')
    o('L_table:')
    for g in tables:
        for lst in g:
            o.L.append('    .long ' + ', '.join(hex(x) for x in lst))
```

```python
from layout import *
from util import *

SCALE_LOG2E = f2u(128 ** -0.5 * math.log2(math.e))
RS = 144; RED_P = 16 * RS; RO_P = 1280
L_RED = 0; L_RV = 9216; L_RO = 13312; L_VMO = 18432; L_KL = 20480
L_XB = 32768; L_PB = 0
(V_ARD, V_ORD, V_QKWR, V_QKRD, V_OWR, V_CWQ, V_CRD, V_CRD2, V_CRD3, V_MWR, V_LREDW, V_LREDW1, V_LREDR, V_LREDR2,
 V_LRVW, V_LRVR, V_LROW, V_LROR, V_LROR2, V_LVMO, V_IDX, V_LROQ, V_KMWR) = range(1, 24)
V_T = 24; V_STP = 27; V_PROG = 28; V_LVMO2 = 29; V_L16 = 30
V_SENT = 32; V_LKL = 34; V_LVL = 35; V_ONES = 36
V_A = 40; V_D = 56; V_E = 80; V_R = 88; V_QK = 104; V_S = 120; V_C = 120; V_P = 132; V_PUB = 132; V_SC = 138
V_O = 140; V_L = 144; V_VM = 148; V_KD = 150; V_VD = 151; V_VX = 152; V_KMW2 = 156; V_KD2 = 157; V_VD2 = 158; V_KX = 160
S_WS = 4; S_DBG = 6; S_X = 10; S_J = 11; S_HEAD = 12; S_ES = 13; S_W = 14; S_STEP = 15
S_CUR = 16; S_NXT = 18; S_RST = 20; S_KB = 22; S_VB = 24; S_KM = 26; S_VM = 28; S_MODE = 30
S_MQ = 32; S_SCALE = 36; S_NOSENT = 37; S_BUD = 40; S_RING = 42; S_XB = 44; S_CC = 62; S_JO = 46; S_EK = 47; S_TK = 48; S_TV = 50

def gen_chain(o, nsteps=64, stamp=False, DLY=None):
    D0 = dict(a=1, b=0, o=0, c=9, pa=14, po=14, pb=8, d3=8)
    D0.update(DLY or {}); DLY = D0
    stamps = stamp and not DLY.get('noflush')
    def st(k):
        if stamps: o(f"{'s_memrealtime' if DLY.get('rt') else 's_memtime'} s[{64+2*k}:{65+2*k}]")
    def flush():
        if not stamps: return
        o('s_waitcnt lgkmcnt(0)')
        for k in range(12): o(f'v_writelane_b32 v31, s{64+2*k}, {k}')
        o('s_mov_b64 exec, 0xffff')
        o(f'global_store_dword v{V_STP}, v31, s[4:5]')
        o('s_mov_b64 exec, -1')
        o(f'v_add_u32 v{V_STP}, 64, v{V_STP}')
    def nops(n):
        for _ in range(n // 2): o('s_nop 15')
        if n & 1: o('s_nop 7')
    def emit(l):
        for i in l: o(i)
    X = lambda *a, **k: tid_expr(o, *a, **k)
    def ps(k):
        if stamp:
            o('s_memrealtime s[80:81]')
            o('s_waitcnt lgkmcnt(0)')
            o(f'v_writelane_b32 v127, s80, {k}')
    LANE16 = (0, 6, 16)

    o('L_chain:')
    for reg, nm in ((64, 'Wq'), (66, 'Wk'), (68, 'Wv'), (70, 'Wo'), (72, 'mem0'), (S_XB, 'x'), (74, 'gate')):
        o(f's_load_dwordx2 s[{reg}:{reg+1}], s[0:1], {KA[nm]}')
    o(f's_lshr_b32 s{S_HEAD}, s{S_J}, 2')
    o(f's_lshl_b32 s54, s{S_X}, 3')
    o(f's_add_u32 s{S_HEAD}, s{S_HEAD}, s54')
    o(f's_and_b32 s{S_ES}, s{S_J}, 3')
    o(f's_mov_b32 s{S_BUD}, 0x200000')
    o(f's_xor_b32 s{S_JO}, s{S_J}, 8')
    o(f's_xor_b32 s{S_EK}, s{S_ES}, 2')
    WQ, WO, WT, TRN, TRO = 128, 129, 130, 131, 132
    s_expr(o, 54, [(S_HEAD, 256), (S_ES, 64)])
    X(WQ, [(6, 2, 1 << 21), (2, 4, 8192), (0, 2, 16)], sregs=[54])
    o(f'v_xor_b32 v126, 256, v{WQ}')
    o(f'v_xor_b32 v125, 128, v{WQ}')
    s_expr(o, 54, [(S_X, 1 << 21), (S_JO, 64)])
    X(WO, [(6, 2, 1 << 19), (2, 4, 2048), (0, 2, 16)], sregs=[54])
    s_expr(o, 76, [(S_W, 16384)], const=L_XB)
    o('s_waitcnt lgkmcnt(0)')
    def wdma(sb, va, step, sbase, off):
        o(f'v_mov_b32 v{WT}, v{va}')
        for it in range(16):
            o(f's_add_u32 m0, s{sbase}, {off + it*1024}')
            o('s_nop 0')
            o(f'global_load_lds_dwordx4 v{WT}, s[{sb}:{sb+1}]')
            if it < 15: o(f'v_add_u32 v{WT}, {step}, v{WT}')
    ps(0)
    if DLY.get('bad', 0):
        s_expr(o, 54, [(S_J, 32*8192), (S_X, 2048)], const=384)
        X(120, [(1, 5, 8192), (0, 1, 1024)], sregs=[54])
        s_expr(o, 54, [(S_X, 1 << 21), (S_J, 65536)], const=384)
        X(121, [(0, 6, 1024)], sregs=[54])
        o(f's_cmp_eq_u32 s{S_W}, 3')
        o('s_cselect_b64 vcc, -1, 0')
        o('s_cselect_b64 s[56:57], s[70:71], s[64:65]')
        o('v_cndmask_b32 v120, v120, v121, vcc')
        o(f's_cmp_eq_u32 s{S_W}, 0')
        o('s_cselect_b64 s[56:57], s[66:67], s[56:57]')
        o(f's_cmp_eq_u32 s{S_W}, 1')
        o('s_cselect_b64 s[56:57], s[68:69], s[56:57]')
        o('global_load_dword v121, v120, s[56:57]')
    GX = 192; GW = 224
    X(24, [(0, 6, 32)])
    o(f'global_load_dwordx4 {vr(GW,4)}, v24, s[74:75]')
    o(f'global_load_dwordx4 {vr(GW+4,4)}, v24, s[74:75] offset:16')
    s_expr(o, 54, [(S_X, 32*16*2048), (S_J, 16*2048), (S_W, 4*2048)])
    s_add64(o, 56, S_XB, 's54')
    for k in range(4):
        for h in range(2):
            o(f'global_load_dwordx4 {vr(GX+8*k+4*h,4)}, v24, s[56:57] offset:{(k&1)*2048 + h*16}')
        if k == 1: s_add64(o, 56, 56, 4096)
    X(24, [(2, 2, 4096), (0, 1, 2048), (6, 2, 512), (4, 2, 32), (1, 1, 4)])
    for c in range(4):
        for q in range(4): o(f'global_load_dword v{V_A+4*c+q}, v24, s[72:73] offset:{c*128 + q*8}')
    wdma(66, 126, 16*8192, 76, 0)
    NT = 0
    ps(1)
    X(V_L16, [LANE16])
    s_expr(o, 54, [(S_X, 16384)])
    X(V_ARD, [(6, 2, 4096), LANE16], const=R_MEM, sregs=[54])
    o(f'v_add_u32 v{V_ORD}, {R_OB - R_MEM}, v{V_ARD}')
    s_expr(o, 55, [(S_HEAD, 4096)], const=R_QK)
    o(f'v_add_u32 v{V_QKRD}, s55, v{V_L16}')
    s_expr(o, 56, [(S_ES, 1024)])
    X(V_QKWR, [(0, 8, 4)], sregs=[55, 56])
    X(24, [(3, 1, 2048)], const=2048)
    o(f'v_xor_b32 v{V_QKWR}, v24, v{V_QKWR}')
    s_expr(o, 54, [(S_X, 16384), (S_J, 512)])
    X(V_OWR, [(6, 1, 256), (0, 4, 16), (5, 1, 32), (4, 1, 8)], const=R_OB, sregs=[54])
    s_expr(o, 54, [(S_X, 16384), (S_JO, 512)])
    X(V_MWR, [(0, 6, 8)], const=R_MEM, sregs=[54])
    o(f's_lshr_b32 s54, s{S_J}, 1')
    o(f's_and_b32 s55, s{S_J}, 1')
    s_expr(o, 56, [(54, 16384), (55, 4096), (S_X, 1024)], const=R_C)
    X(V_CWQ, [(0, 8, 4)], sregs=[56])
    o(f'v_add_u32 v{V_CRD3}, s56, v{V_L16}')
    o(f'v_xor_b32 v{V_CRD}, 1024, v{V_CRD3}')
    o(f'v_xor_b32 v{V_CRD2}, 2048, v{V_CRD3}')
    o(f'v_xor_b32 v{V_CRD3}, 3072, v{V_CRD3}')
    X(V_LREDW, [(6, 2, RED_P), (4, 2, 2*RS), (0, 4, 4)], const=L_RED)
    o(f'v_add_u32 v{V_LREDW1}, {8*RS}, v{V_LREDW}')
    X(V_LREDR, [(3, 1, 8*RS), (4, 2, 2*RS), (2, 1, RS), (1, 1, 64), (6, 2, 16), (0, 1, 8)], const=L_RED)
    X(V_LREDR2, [(2, 3, RS), (1, 1, 64), (5, 1, 16), (0, 1, 8)], const=L_RED + 8*RS)
    s_expr(o, 54, [(S_HEAD, HS//4), (S_ES, 512)])
    X(V_KMWR, [(0, 6, 4)], sregs=[54])
    o(f'v_xor_b32 v{V_KMW2}, {HS//4}, v{V_KMWR}')
    X(V_LVMO2, [(0, 6, 4)], const=L_VMO)
    X(V_LRVW, [(6, 2, 1024), (0, 6, 8)], const=L_RV)
    X(V_LRVR, [(6, 1, 512), (0, 6, 8)], const=L_RV)
    X(V_LVMO, [(0, 7, 4)], const=L_VMO)
    X(V_LROW, [(6, 2, RO_P), (4, 2, 2*RS), (0, 4, 4)], const=L_RO)
    X(V_LROR, [(3, 2, 2*RS), (1, 1, RS), (5, 1, 64), (0, 1, 32), (2, 1, 8)], const=L_RO)
    o(f'v_add_u32 v{V_LROR2}, {2*RO_P}, v{V_LROR}')
    X(V_LROQ, [(5, 2, 2*RS), (3, 1, RS), (7, 1, 64), (2, 1, 32), (4, 1, 8), (0, 1, 4), (1, 1, 16)], const=L_RO)
    s_expr(o, 54, [(S_HEAD, HS)])
    o(f'v_add_u32 v{V_KD}, s54, v{V_L16}')
    s_expr(o, 55, [(S_ES, 2048)])
    o(f'v_add_u32 v{V_VD}, s55, v{V_KD}')
    o(f'v_add_u32 v{V_LKL}, {L_KL}, v{V_L16}')
    X(V_KD2, [(6, 2, 2048)])
    o(f'v_add_u32 v{V_KD2}, v{V_KD2}, v{V_KD}')
    X(V_VD2, [(6, 1, 1024)], const=WS_VT - WS_K)
    o(f'v_add_u32 v{V_VD2}, v{V_VD2}, v{V_VD}')
    s_expr(o, 52, [(S_W, 2048)], const=L_KL)
    o(f's_and_b32 s53, s{S_W}, 1')
    s_expr(o, 53, [(53, 1024)], const=L_KL + 8192)
    X(V_LVL, [(6, 1, 1024), LANE16], const=L_KL + 8192)
    s_expr(o, 54, [(S_HEAD, 512), (S_ES, 128)], const=WS_PROG)
    o(f'v_mov_b32 v{V_PROG}, s54')
    o('v_bfe_u32 v24, v0, 1, 1')
    o('v_cmp_eq_u32 vcc, 0, v24')
    o('v_mov_b32 v24, 0xeeee')
    o('v_mov_b32 v25, 0x4444')
    o(f'v_cndmask_b32 v{V_IDX}, v24, v25, vcc')
    for i in range(2): o(f'v_mov_b32 v{V_SENT+i}, -1')
    for i in range(4): o(f'v_mov_b32 v{V_ONES+i}, 0x3f803f80')
    o(f's_mov_b32 s{S_MQ}, 0x33333333')
    o(f's_mov_b32 s{S_MQ+1}, 0x33333333')
    o(f's_mov_b32 s{S_SCALE}, {SCALE_LOG2E:#x}')
    o(f's_mov_b32 s{S_NOSENT}, 0xfffffffe')
    o(f'v_mov_b32 v{V_SC}, s{S_SCALE}')
    o(f'v_mov_b32 v{V_SC+1}, s{S_SCALE}')
    o(f'v_mov_b32 v{V_VM}, 0')
    s_add64(o, S_RING, S_WS, WS_RING)
    X(TRN, [(4, 2, 8*64), (2, 2, 64), (0, 2, 8)])
    X(TRO, [(5, 1, 16*64), (4, 1, 4*64), (2, 1, 64), (3, 1, 8*64), (0, 2, 8)], const=65536, sregs=[76])
    o(f'v_add_u32 v{TRN}, s76, v{TRN}')
    o(f'v_add_u32 v{TRN+2}, 65536, v{TRN}')
    def wread(T0, addr, off, natural):
        for t in range(2):
            for c in range(4):
                for m in range(4):
                    row = 64*c + 32*(m >> 1) + (4 if natural else 2)*(m & 1)
                    o(f'ds_read_b64_tr_b16 {ar(((T0+t)*4+c)*8 + 2*m, 2)}, v{addr} offset:{off + row*64 + t*32}')
                o('s_waitcnt lgkmcnt(8)')
    o(f'v_xor_b32 v24, 8192, v{V_CWQ}')
    for sl in range(4):
        s_add64(o, 16, S_RING, sl*RING_SLOT)
        o(f'global_store_dword v{V_QKWR}, v{V_SENT}, s[16:17] sc1')
        o(f'global_store_dword v{V_CWQ}, v{V_SENT}, s[16:17] sc1')
        o(f'global_store_dword v24, v{V_SENT}, s[16:17] sc1')
        o(f'global_store_dwordx2 v{V_MWR}, {vr(V_SENT,2)}, s[16:17] sc1')
        o(f's_mov_b64 exec, s[{S_MQ}:{S_MQ+1}]')
        o(f'global_store_dwordx2 v{V_OWR}, {vr(V_SENT,2)}, s[16:17] sc1')
        o('s_mov_b64 exec, -1')
    o(f'global_store_dword v{V_PROG}, v{V_VM}, s[4:5] sc1')
    NT += 21
    ps(2)
    o(f's_waitcnt vmcnt({16+NT})')
    ps(3)
    X(24, [(0, 6, 512), (6, 2, 64)])
    for k in range(4):
        for h in range(2): o(f'ds_write_b128 v24, {vr(GX+8*k+4*h,4)} offset:{h*256 + k*16}')
    o('s_waitcnt lgkmcnt(0)')
    o('s_barrier')
    X(24, [(0, 6, 16), (6, 2, 8192)])
    for k in range(8): o(f'ds_read_b128 {vr(V_KX+4*k,4)}, v24 offset:{k*1024}')
    s_expr(o, 54, [(S_X, 32*32768), (S_J, 32768)], const=WS_XB)
    s_add64(o, 56, S_WS, 's54')
    o('v_add_u32 v25, 4096, v24')
    o('s_waitcnt lgkmcnt(0)')
    for k in range(8): o(f'global_store_dwordx4 v{24+(k>>2)}, {vr(V_KX+4*k,4)}, s[56:57] offset:{(k&3)*1024} sc1')
    X(123, [(0, 3, 4)])
    o(f'global_load_dword v122, v123, s[6:7] offset:{D_TICK*4} sc1')
    NT += 9
    WU = 232
    for k in range(8):
        o(f'v_lshlrev_b32 v{WU+2*k}, 16, v{GW+k}')
        o(f'v_and_b32 v{WU+2*k+1}, 0xffff0000, v{GW+k}')
    for r in range(4):
        A = 88 + 2*r
        for k in range(8):
            x = GX + 8*r + k
            o(f'v_lshlrev_b32 v24, 16, v{x}')
            o(f'v_and_b32 v25, 0xffff0000, v{x}')
            o(f'v_pk_mul_f32 v[24:25], v[24:25], {vr(WU+2*k,2)}')
            o('v_cvt_pk_bf16_f32 v26, v24, v25')
            if k == 0:
                o(f'v_lshlrev_b32 v{A}, 16, v26')
                o(f'v_and_b32 v{A+1}, 0xffff0000, v26')
            else:
                o('v_lshlrev_b32 v24, 16, v26')
                o('v_and_b32 v25, 0xffff0000, v26')
                o(f'v_pk_add_f32 {vr(A,2)}, {vr(A,2)}, v[24:25]')
        o(f'v_add_f32 v{A}, v{A}, v{A+1}')
    for dpp in ('quad_perm:[1,0,3,2]', 'quad_perm:[2,3,0,1]', 'row_half_mirror', 'row_mirror'):
        for r in range(4): o(f'v_add_f32_dpp v{88+2*r}, v{88+2*r}, v{88+2*r} {dpp} row_mask:0xf bank_mask:0xf')
    for sw in ('16', '32'):
        for r in range(4): o(f'v_mov_b32 v{89+2*r}, v{88+2*r}')
        for r in range(4): o(f'v_permlane{sw}_swap_b32 v{88+2*r}, v{89+2*r}')
        for r in range(4): o(f'v_add_f32 v{88+2*r}, v{88+2*r}, v{89+2*r}')
    o(f's_mov_b32 s54, {0xbfb8aa3b:#x}')
    for r in range(4):
        A = 88 + 2*r
        o(f'v_cvt_pk_bf16_f32 v{A}, v{A}, v{A}')
        o(f'v_and_b32 v{A}, 0xffff0000, v{A}')
        o(f'v_mul_f32 v{A}, s54, v{A}')
        o(f'v_exp_f32 v{A}, v{A}')
        o(f'v_add_f32 v{A}, 1.0, v{A}')
        o(f'v_rcp_f32 v{A}, v{A}')
        o(f'v_cvt_pk_bf16_f32 v{A}, v{A}, v{A}')
        o(f'v_and_b32 v{A}, 0xffff0000, v{A}')
        o(f'v_sub_f32 v{A+1}, 1.0, v{A}')
        o(f'v_cvt_pk_bf16_f32 v{A+1}, v{A+1}, v{A+1}')
        o(f'v_and_b32 v{A+1}, 0xffff0000, v{A+1}')
    ps(4)
    wdma(68, WQ, 16*8192, 76, 65536)
    o(f's_waitcnt vmcnt({16+NT})')
    ps(5)
    wread(2, TRN, 0, True)
    o('s_waitcnt lgkmcnt(0)')
    wdma(64, 125, 16*8192, 76, 0)
    o('s_waitcnt vmcnt(16)')
    ps(6)
    wread(4, TRN+2, 0, True)
    o('s_waitcnt vmcnt(16) lgkmcnt(0)')
    wdma(70, WO, 16*2048, 76, 65536)
    o('s_barrier')
    o(f's_cmp_lg_u32 s{S_W}, 0')
    o('s_cbranch_scc1 L_ci_x')
    o('L_ci_xt:')
    o('v_cmp_gt_u32 vcc, 32, v122')
    o('s_cbranch_vccz L_ci_xs')
    o(f'global_load_dword v122, v123, s[6:7] offset:{D_TICK*4} sc1')
    o(f's_sub_u32 s{S_BUD}, s{S_BUD}, 1')
    o('s_cbranch_scc1 L_chain_bail')
    o('s_waitcnt vmcnt(0)')
    o('s_branch L_ci_xt')
    o('L_ci_xs:')
    o(f's_lshr_b32 s54, s{S_J}, 4')
    s_expr(o, 54, [(54, 128), (S_X, 256)], const=WS_CNT + 128*C_X)
    o('v_mov_b32 v24, s54')
    o('v_mov_b32 v25, 1')
    o('s_mov_b64 exec, 1')
    o('global_atomic_add v24, v25, s[4:5]')
    o('s_mov_b64 exec, -1')
    o('L_ci_x:')
    o('s_waitcnt vmcnt(16)')
    ps(7)
    o('v_mov_b32 v124, 127')
    o(f's_cmp_eq_u32 s{S_W}, 1')
    o('s_cbranch_scc0 L_ci_v')
    o('v_mov_b32 v24, 1')
    o('s_mov_b64 exec, 1')
    o(f'global_atomic_add v124, v{V_VM}, v24, s[6:7] offset:{D_DEC*4} sc0')
    o('s_mov_b64 exec, -1')
    o('L_ci_v:')
    wread(0, TRN, 0, True)
    s_expr(o, 54, [(S_X, 32*128), (S_J, 128), (S_W, 32)], const=WS_G)
    o('v_mov_b32 v24, s54')
    o('s_mov_b64 exec, 1')
    o('global_store_dwordx4 v24, v[88:91], s[4:5] sc1')
    o('global_store_dwordx4 v24, v[92:95], s[4:5] offset:16 sc1')
    o('s_mov_b64 exec, -1')
    o('s_waitcnt vmcnt(2)')
    ps(8)
    wread(6, TRO, 0, False)
    def sum4(R):
        for h in range(2):
            o(f'v_pk_add_f32 {vr(R+2*h,2)}, {vr(R+2*h,2)}, {vr(R+4+2*h,2)}')
            o(f'v_pk_add_f32 {vr(R+8+2*h,2)}, {vr(R+8+2*h,2)}, {vr(R+12+2*h,2)}')
        for h in range(2): o(f'v_pk_add_f32 {vr(R+2*h,2)}, {vr(R+2*h,2)}, {vr(R+8+2*h,2)}')
    ps(10)
    o('s_waitcnt vmcnt(0) lgkmcnt(0)')
    o('v_readfirstlane_b32 s54, v124')
    o('s_cmp_lt_u32 s54, 48')
    o('s_cbranch_scc0 L_ci_nc')
    o('s_mov_b64 exec, 1')
    o(f's_and_b32 s58, s{S_J}, 1')
    s_expr(o, 54, [(S_J, 128), (S_X, 16384), (58, 8192)], const=WS_RING + R_C + 262144)
    o('v_mov_b32 v24, s54')
    o('v_xor_b32 v26, 8192, v24')
    o('s_mov_b32 s54, -1')
    o('s_mov_b32 s55, -1')
    o('s_mov_b32 s59, 0')
    o('L_ci_cal:')
    o('s_memtime s[16:17]')
    o(f'global_store_dword v24, v{V_VM}, s[4:5] sc1')
    o('s_waitcnt vmcnt(0)')
    o('s_memtime s[18:19]')
    o(f'global_store_dword v26, v{V_VM}, s[4:5] sc1')
    o('s_waitcnt vmcnt(0)')
    o('s_memtime s[20:21]')
    o('s_waitcnt lgkmcnt(0)')
    o('s_sub_u32 s56, s18, s16')
    o('s_sub_u32 s57, s20, s18')
    o('s_min_u32 s54, s54, s56')
    o('s_min_u32 s55, s55, s57')
    o('s_add_u32 s59, s59, 1')
    o('s_cmp_lt_u32 s59, 3')
    o('s_cbranch_scc1 L_ci_cal')
    o('s_sub_i32 s56, s54, s55')
    o('s_sub_i32 s57, s55, s54')
    o('s_cmp_eq_u32 s58, 1')
    o('s_cselect_b32 s54, s57, s56')
    o('s_max_i32 s54, s54, -400')
    o('s_min_i32 s54, s54, 400')
    o('v_mov_b32 v24, s54')
    o(f'global_atomic_add v{V_VM}, v24, s[6:7] offset:{D_POL*4}')
    o('s_waitcnt vmcnt(0)')
    o('s_mov_b64 exec, -1')
    o('L_ci_nc:')
    o('s_barrier')
    o(f's_cmp_eq_u32 s{S_W}, 0')
    o('s_cbranch_scc0 L_ci_e')
    o('s_mov_b64 exec, 1')
    o('v_mov_b32 v24, 1')
    o('v_mov_b32 v25, 0')
    o(f'global_atomic_add v25, v24, s[6:7] offset:{D_INIT*4}')
    o('s_mov_b64 exec, -1')
    o('L_ci_e:')
    ps(11)
    s_add64(o, S_KB, S_WS, WS_K)
    s_add64(o, S_VB, S_WS, WS_VT)
    s_add64(o, S_KM, S_WS, WS_KM)
    s_expr(o, 54, [(S_HEAD, HS), (S_ES, 2048)], const=WS_K + 2*SS)
    s_add64(o, S_TK, S_WS, 's54')
    s_add64(o, S_TV, S_TK, WS_VT - WS_K)
    s_add64(o, S_VM, S_WS, WS_VMT)
    o(f'v_mov_b32 v{V_P+4}, 0')
    o('v_mov_b32 v25, 0')
    if DLY.get('ctouch', 0):
        o(f's_load_dwordx4 s[64:67], s[0:1], {KA["w1"]}')
        o(f's_load_dwordx2 s[68:69], s[0:1], {KA["w2"]}')
        s_expr(o, 58, [(S_X, 4), (S_W, 1)])
        s_expr(o, 54, [(58, 128)], const=WS_CNT + 128*C_TCH)
        o('v_mov_b32 v26, s54')
        o(f'v_mov_b32 v{V_R+8}, 1')
        X(24, [(0, 6, 128)])
        o('s_waitcnt lgkmcnt(0)')
        o('L_ci_tl:')
        o('s_mov_b64 exec, 1')
        o(f'global_atomic_add v{V_R+6}, v26, v{V_R+8}, s[4:5] sc0')
        o(f'global_load_dword v{V_R+4}, v25, s[6:7] offset:{D_INIT*4} sc1')
        o('s_mov_b64 exec, -1')
        o('s_waitcnt vmcnt(0)')
        o(f'v_readfirstlane_b32 s54, v{V_R+6}')
        o(f'v_readfirstlane_b32 s55, v{V_R+4}')
        o('s_cmp_lt_u32 s54, 56')
        o('s_cbranch_scc1 L_ci_tw2')
        o(f's_cmp_ge_u32 s55, {DLY.get("cstop", 120)}')
        o('s_cbranch_scc1 L_ci_tdone')
        o('s_cmp_ge_u32 s54, 168')
        o('s_cbranch_scc1 L_ci_tdone')
        o('s_sub_u32 s54, s54, 56')
        o('s_bitcmp1_b32 s54, 0')
        o('s_cselect_b64 s[68:69], s[66:67], s[64:65]')
        o('s_lshr_b32 s54, s54, 1')
        o('L_ci_tw2:')
        s_expr(o, 54, [(54, 16*8192), (58, 8192)])
        s_add64(o, 56, 68, 's54')
        o(f'global_load_dword v{V_R+7}, v24, s[56:57]')
        o('s_branch L_ci_tl')
        o('L_ci_tdone:')
    o(f's_cmp_lg_u32 s{S_W}, 0')
    o('s_cbranch_scc1 L_ci_ok')
    X(26, [(0, 3, 4)])
    o('L_ci_wait:')
    o(f'global_load_dword v{V_R+4}, v25, s[6:7] offset:{D_INIT*4} sc1')
    o(f'global_load_dword v{V_R+6}, v26, s[6:7] offset:{D_TICK*4} sc1')
    o(f's_sub_u32 s{S_BUD}, s{S_BUD}, 1')
    o('s_cbranch_scc1 L_chain_bail')
    o('s_waitcnt vmcnt(0)')
    o(f'v_cmp_gt_u32 vcc, 128, v{V_R+4}')
    o(f'v_cmp_gt_u32 s[56:57], 32, v{V_R+6}')
    o('s_or_b64 vcc, vcc, s[56:57]')
    o('s_cbranch_vccz L_ci_ok1')
    o('s_sleep 2')
    o('s_branch L_ci_wait')
    o('L_ci_ok1:')
    o(f'v_mov_b32 v26, {WS_CNT + 128*C_KV}')
    ps(9)
    o('L_ci_wkv:')
    o(f'global_load_dword v{V_R+4}, v26, s[4:5] sc1')
    o(f's_sub_u32 s{S_BUD}, s{S_BUD}, 1')
    o('s_cbranch_scc1 L_chain_bail')
    o('s_waitcnt vmcnt(0)')
    o(f'v_cmp_gt_u32 vcc, 128, v{V_R+4}')
    o('s_cbranch_vccz L_ci_ok')
    o('s_sleep 2')
    o('s_branch L_ci_wkv')
    o('L_ci_ok:')
    o('s_barrier')
    o(f'global_load_dword v{V_R+5}, v25, s[6:7] offset:{D_POL*4} sc1')
    o(f'global_load_dwordx4 {vr(V_R,4)}, v25, s[6:7] offset:{D_MASK*4} sc1')
    o(f'v_add_u32 v24, 4096, v{V_KD}')
    for t in range(2):
        for e in range(4): o(f'global_load_dwordx4 {vr(V_KX + (t*4+e)*4, 4)}, v{V_KD if t == 0 else 24}, s[{S_KB}:{S_KB+1}] offset:{e*1024} sc1')
    X(25, [(6, 1, 1024)])
    o(f'v_add_u32 v25, v25, v{V_VD}')
    o(f'global_load_dwordx4 {vr(V_VX,4)}, v25, s[{S_VB}:{S_VB+1}] sc1')
    if DLY.get('late', 2):
        o('s_waitcnt vmcnt(0)')
        for k in range(8): o(f'ds_write_b128 v{V_LKL}, {vr(V_KX+4*k,4)} offset:{k*1024}')
        o(f'ds_write_b128 v{V_LVL}, {vr(V_VX,4)}')
    s_add64(o, S_KB, S_KB, SS)
    s_add64(o, S_VB, S_VB, SS)
    o('s_waitcnt vmcnt(0)')
    o(f'v_bcnt_u32_b32 v24, v{V_R}, 0')
    for i in range(1, 4): o(f'v_bcnt_u32_b32 v24, v{V_R+i}, v24')
    o(f'v_readfirstlane_b32 s{S_MODE}, v24')
    if 'pol' in DLY:
        o(f'v_mov_b32 v24, {DLY["pol"]*8192}')
    else:
        o(f'v_cmp_lt_i32 vcc, 0, v{V_R+5}')
        o('v_mov_b32 v25, 8192')
        o('v_cndmask_b32 v24, 0, v25, vcc')
    for r in (V_CWQ, V_CRD, V_CRD2, V_CRD3): o(f'v_xor_b32 v{r}, v24, v{r}')
    o(f's_mov_b32 s{S_STEP}, 0')
    if DLY.get('diag'): diag(o, 2)
    if stamp:
        o('s_memtime s[60:61]')
        ps(12)
        o('v_writelane_b32 v127, s94, 13')
        s_expr(o, 54, [(S_X, 32*512), (S_J, 512), (S_W, 128)], const=WS_STAMP + 16*MB)
        X(24, [(0, 6, 4)], sregs=[54])
        o('s_mov_b64 exec, 0xffffffff')
        o('global_store_dword v24, v127, s[4:5]')
        o('s_mov_b64 exec, -1')
        s_expr(o, 54, [(S_X, 16384), (S_J, 8*16384)], const=WS_STAMP)
        X(V_STP, [(6, 2, 4096), (0, 6, 4)], sregs=[54])
        for k in range(12): st(k)
    for i in range(16): o(f'v_min_u32 v{V_A+i}, s{S_NOSENT}, v{V_A+i}')
    def prep():
        for i in range(24): o(f'v_mov_b32 v{V_D+i}, 0')
    prep()
    for k, sb in enumerate((S_CUR, S_NXT, S_RST)): s_add64(o, sb, S_RING, k*RING_SLOT)
    o(f's_cmp_eq_u32 s{S_MODE}, 4')
    o('s_cbranch_scc0 L_cs_a_go')
    o('s_branch L_cf_a_go')

    def issue(regs, addr, n=4, pace=0):
        for c in range(n):
            o(f'global_load_dwordx4 {vr(regs+4*c,4)}, {addr(c)} sc1')
            if c < n-1 and pace: o(f's_nop {pace-1}')
    utails = []
    Tm = V_T + 2
    def sstream(P, tag, regs, addr, body, n=4, simple=False):
        L = f'{P}_{tag}'
        def ck(c):
            r = regs + 4*c
            return [f'v_max3_u32 v{Tm}, v{r}, v{r+1}, v{r+2}', f'v_max_u32 v{Tm}, v{Tm}, v{r+3}', f'v_cmp_eq_u32 vcc, -1, v{Tm}']
        def reload(c):
            return ['s_mov_b64 exec, vcc', f'global_load_dwordx4 {vr(regs+4*c,4)}, {addr(c)} sc1', 's_mov_b64 exec, -1']
        o(f'{L}_go:')
        if simple:
            o('s_waitcnt vmcnt(0)')
            rs = list(range(regs, regs + 4*n))
            o(f'v_max3_u32 v{Tm}, v{rs[0]}, v{rs[1]}, v{rs[2]}')
            for i in range(3, len(rs)-1, 2): o(f'v_max3_u32 v{Tm}, v{Tm}, v{rs[i]}, v{rs[i+1]}')
            o(f'v_max_u32 v{Tm}, v{Tm}, v{rs[-1]}')
            o(f'v_cmp_eq_u32 vcc, -1, v{Tm}')
            o(f's_cbranch_vccz {L}_ok')
            issue(regs, addr, n)
            o(f's_sub_u32 s{S_BUD}, s{S_BUD}, 1')
            o(f's_cbranch_scc0 {L}_go')
            o('s_branch L_chain_bail')
            o(f'{L}_ok:')
            for c in range(n): emit(body(c))
            return
        def weave(ins, nxt):
            nxt = list(nxt)
            per = -(-len(nxt) // max(1, len(ins) - 1))
            for i in ins:
                o(i)
                for _ in range(per):
                    if nxt: o(nxt.pop(0))
            emit(nxt)
        def name(q): return f'{L}_q' + ''.join(map(str, q))
        def nextchk(q): return [f's_waitcnt vmcnt({len(q)-1})'] + ck(q[0]) if q else []
        todo = []; seen = set()
        def block(q):
            while True:
                o(f'{name(q)}:')
                seen.add(tuple(q))
                o(f's_cbranch_vccnz {name(q)}x')
                todo.append(list(q))
                c = q[0]; q = q[1:]
                weave(body(c), nextchk(q))
                if not q: return None
                if tuple(q) in seen: return name(q)
        q0 = list(range(n))
        emit(nextchk(q0))
        block(q0)
        o(f'{L}_done:')
        def emit_tail():
            while todo:
                q = todo.pop(0)
                o(f'{name(q)}x:')
                emit(reload(q[0]))
                if q[0] == max(q):
                    o(f's_sub_u32 s{S_BUD}, s{S_BUD}, 1')
                    o('s_cbranch_scc1 L_chain_bail')
                q2 = q[1:] + [q[0]]
                emit(nextchk(q2))
                if tuple(q2) in seen: o(f's_branch {name(q2)}')
                else:
                    tgt = block(q2)
                    o(f's_branch {tgt or L + "_done"}')
        utails.append(emit_tail)
    def sum4x2(R):
        o(f'v_pk_add_f32 {vr(R,2)}, {vr(R,2)}, {vr(R+2,2)}')
        o(f'v_pk_add_f32 {vr(R+4,2)}, {vr(R+4,2)}, {vr(R+6,2)}')
        o(f'v_pk_add_f32 {vr(R,2)}, {vr(R,2)}, {vr(R+4,2)}')
    def smf(D, c, T):
        return f'v_smfmac_f32_16x16x64_bf16 {vr(D,4)}, {vr(V_A+4*c,4)}, {ar((T*4+c)*8,8)}, v{V_IDX}'
    def rotate():
        o(f's_mov_b64 s[{S_CUR}:{S_CUR+1}], s[{S_NXT}:{S_NXT+1}]')
        o(f's_mov_b64 s[{S_NXT}:{S_NXT+1}], s[{S_RST}:{S_RST+1}]')
        o(f's_add_u32 s54, s{S_STEP}, 2')
        o('s_and_b32 s54, s54, 3')
        o('s_lshl_b32 s54, s54, 19')
        s_add64(o, S_RST, S_RING, 's54')
        if DLY.get('late', 2) == 2: s_add64(o, S_KB, S_KB, SS)
    CUR = sr(S_CUR); RST = sr(S_RST)
    def loop(P, sc):
        simple = sc != ''
        LATE = DLY.get('late', 2)
        def stouch(sel, lbl, lim):
            if not DLY.get('spf', 0): return
            tl = [(S_TK, q) for q in range(0, 2048, 128)] + [(S_TV, q) for q in range(0, 2048, 128)]
            o(f's_cmp_ge_u32 s{S_STEP}, {lim}')
            o(f's_cbranch_scc1 {lbl}')
            for (sb, off) in tl[sel]: o(f's_load_dword s41, s[{sb}:{sb+1}], {off}')
            s_add64(o, S_TK, S_TK, SS)
            s_add64(o, S_TV, S_TV, SS)
            o(f'{lbl}:')
        def kvread():
            for k in range(8): o(f'ds_read_b128 {vr(V_KX+4*k,4)}, v{V_LKL} offset:{k*1024}')
            o(f'ds_read_b128 {vr(V_VX,4)}, v{V_LVL}')
        o(f'{P}_top:')
        o('s_barrier')
        st(0)
        nops(DLY['a'])
        aA = lambda c: f'v{V_ARD}, {CUR} offset:{c*1024}'
        issue(V_A, aA, pace=DLY['pa'])
        sstream(P, 'a', V_A, aA, lambda c: [smf(V_D+4*T, c, T) for T in range(4)], simple=simple)
        st(1)
        for T in range(4):
            b = V_D + 4*T
            o(f'v_pk_add_f32 {vr(b,2)}, {vr(b,2)}, {vr(b+2,2)}')
            o(f'ds_write2_b32 v{V_LREDW if T < 2 else V_LREDW1}, v{b}, v{b+1} offset0:{(T&1)*16} offset1:{(T&1)*16+RS//4}')
        vm = [(T, c) for c in range(4) for T in (4, 5)]
        for (T, c) in vm[:3]: o(smf(V_D+4*T, c, T))
        o('s_waitcnt lgkmcnt(0)')
        o('s_barrier')
        for p in range(4): o(f'ds_read_b64 {vr(V_R+2*p,2)}, v{V_LREDR} offset:{p*RED_P}')
        for (T, c) in vm[3:]: o(smf(V_D+4*T, c, T))
        o('s_waitcnt lgkmcnt(0)')
        sum4x2(V_R)
        o(f'v_cvt_pk_bf16_f32 v{V_R}, v{V_R}, v{V_R+1}')
        o(f'v_min_u32 v{V_R}, s{S_NOSENT}, v{V_R}')
        o(f'global_store_dword v{V_QKWR}, v{V_R}, {CUR} {sc}')
        st(2)
        for t in range(2):
            b = V_D + 16 + 4*t
            o(f'v_pk_add_f32 {vr(b,2)}, {vr(b,2)}, {vr(b+2,2)}')
            o(f'ds_write_b64 v{V_LRVW}, {vr(b,2)} offset:{t*512}')
        o(f's_cmp_lt_u32 s{S_W}, 2')
        o(f's_cbranch_scc0 {P}_w23')
        o(f's_cmp_eq_u32 s{S_STEP}, {nsteps-1}')
        o(f's_cbranch_scc1 {P}_last01')
        o('s_waitcnt lgkmcnt(0)')
        o('s_barrier')
        if LATE: kvread()
        nops(DLY['b'])
        aB = lambda c: f'v{V_QKRD}, {CUR} offset:{c*1024}'
        issue(V_QK, aB, pace=DLY['pb'])
        o('s_barrier')
        o(f'ds_read_b32 v{V_VM+1}, v{V_LVMO}')
        for i in range(12): o(f'v_mov_b32 v{V_S+i}, 0')
        if LATE: o('s_waitcnt lgkmcnt(1)')
        def bodyB(e):
            r = []
            for t in range(3):
                A = vr(V_KX + (t*4+e)*4, 4) if t < 2 else vr(V_QK+4*e, 4)
                r.append(f'v_mfma_f32_16x16x32_bf16 {vr(V_S+4*t,4)}, {A}, {vr(V_QK+4*e,4)}, {vr(V_S+4*t,4)}')
            return r
        sstream(P, 'b', V_QK, aB, bodyB, simple=simple)
        st(3)
        S = V_S
        o(f'v_max3_f32 v{V_T}, v{S}, v{S+1}, v{S+2}')
        o(f'v_max3_f32 v{V_T}, v{V_T}, v{S+3}, v{S+4}')
        o(f'v_max3_f32 v{V_T}, v{V_T}, v{S+5}, v{S+6}')
        o(f'v_max3_f32 v{V_T}, v{V_T}, v{S+7}, v{S+10}')
        o(f'v_max_f32 v{V_T}, v{V_T}, v{S+11}')
        for sw in ('32', '16'):
            o(f'v_mov_b32 v{V_T+1}, v{V_T}')
            o(f'v_permlane{sw}_swap_b32 v{V_T}, v{V_T+1}')
            o(f'v_max_f32 v{V_T}, v{V_T}, v{V_T+1}')
        o(f'v_mul_f32 v{V_T}, s{S_SCALE}, v{V_T}')
        for i in (0, 1, 2, 3, 5):
            o(f'v_pk_fma_f32 {vr(S+2*i,2)}, {vr(S+2*i,2)}, {vr(V_SC,2)}, {vr(V_T,2)} op_sel_hi:[1,1,0] neg_lo:[0,0,1] neg_hi:[0,0,1]')
        for i in range(8): o(f'v_exp_f32 v{S+i}, v{S+i}')
        for i in range(4): o(f'v_cvt_pk_bf16_f32 v{V_P+i}, v{S+2*i}, v{S+2*i+1}')
        for i in (10, 11): o(f'v_exp_f32 v{S+i}, v{S+i}')
        o(f'v_mfma_f32_16x16x32_bf16 {vr(V_L,4)}, {vr(V_ONES,4)}, {vr(V_P,4)}, 0')
        o(f'v_cvt_pk_bf16_f32 v{V_P+5}, v{S+10}, v{S+11}')
        o(f'v_mfma_f32_16x16x32_bf16 {vr(V_O,4)}, {vr(V_VX,4)}, {vr(V_P,4)}, 0')
        o('s_waitcnt lgkmcnt(0)')
        o(f'v_mfma_f32_16x16x16_bf16 {vr(V_L,4)}, {vr(V_ONES,2)}, {vr(V_P+4,2)}, {vr(V_L,4)}')
        o(f'v_mfma_f32_16x16x16_bf16 {vr(V_O,4)}, {vr(V_VM,2)}, {vr(V_P+4,2)}, {vr(V_O,4)}')
        o(f's_mov_b64 exec, s[{S_MQ}:{S_MQ+1}]')
        o(f'v_rcp_f32 v{V_T}, v{V_L}')
        o(f'v_pk_mul_f32 {vr(V_O,2)}, {vr(V_O,2)}, {vr(V_T,2)} op_sel_hi:[1,0]')
        o(f'v_pk_mul_f32 {vr(V_O+2,2)}, {vr(V_O+2,2)}, {vr(V_T,2)} op_sel_hi:[1,0]')
        o(f'v_cvt_pk_bf16_f32 v{V_O}, v{V_O}, v{V_O+1}')
        o(f'v_cvt_pk_bf16_f32 v{V_O+1}, v{V_O+2}, v{V_O+3}')
        o(f'v_min_u32 v{V_O}, s{S_NOSENT}, v{V_O}')
        o(f'v_min_u32 v{V_O+1}, s{S_NOSENT}, v{V_O+1}')
        o(f'global_store_dwordx2 v{V_OWR}, {vr(V_O,2)}, {CUR} {sc}')
        o('s_mov_b64 exec, -1')
        st(4)
        o(f's_branch {P}_po')
        o(f'{P}_last01:')
        o('s_waitcnt lgkmcnt(0)')
        o('s_barrier')
        o('s_barrier')
        o('s_branch L_chain_done')
        o(f'{P}_w23:')
        o('s_waitcnt lgkmcnt(0)')
        o('s_barrier')
        for p in range(4): o(f'ds_read_b64 {vr(V_R+2*p,2)}, v{V_LRVR} offset:{p*1024}')
        o('s_waitcnt lgkmcnt(0)')
        sum4x2(V_R)
        o(f'v_cvt_pk_bf16_f32 v{V_VM+1}, v{V_R}, v{V_R+1}')
        o(f'ds_write_b32 v{V_LVMO}, v{V_VM+1}')
        o(f's_cmp_eq_u32 s{S_W}, 2')
        o('s_waitcnt lgkmcnt(0)')
        o('s_barrier')
        o(f's_cbranch_scc1 {P}_w2a')
        for hf in range(2):
            for p in range(4): o(f'ds_read_b64 {vr(V_R+8*hf+2*p,2)}, v{V_LREDR2} offset:{p*RED_P + hf*32}')
        o(f'ds_read2_b32 {vr(V_PUB+2,2)}, v{V_LVMO2} offset0:0 offset1:64')
        prep()
        o('s_waitcnt lgkmcnt(0)')
        for hf in range(2):
            sum4x2(V_R+8*hf)
            o(f'v_cvt_pk_bf16_f32 v{V_PUB+hf}, v{V_R+8*hf}, v{V_R+8*hf+1}')
        o(f's_cmp_eq_u32 s{S_STEP}, {nsteps-1}')
        o(f's_cbranch_scc1 {P}_last3')
        def kvdma():
            for h in range(2):
                o(f's_mov_b32 m0, {L_KL + h*4096}')
                if h: s_add64(o, 56, S_KB, 4096)
                for i in range(4): o(f'global_load_lds_dwordx4 v{V_KD}, s[{56 if h else S_KB}:{57 if h else S_KB+1}] offset:{i*1024} {DLY.get("ksc", "sc1")}')
            o(f's_mov_b32 m0, {L_KL + 8192}')
            s_add64(o, S_KB, S_KB, SS)
            for i in range(2): o(f'global_load_lds_dwordx4 v{V_VD}, s[{S_VB}:{S_VB+1}] offset:{i*1024} {DLY.get("ksc", "sc1")}')
            s_add64(o, S_VB, S_VB, SS)
        stouch(slice(15, 30), f'{P}_t3', nsteps-2)
        if not LATE:
            nops(DLY['d3'])
            kvdma()
        o(f's_branch {P}_po')
        o(f'{P}_w2a:')
        prep()
        o(f's_cmp_eq_u32 s{S_STEP}, {nsteps-1}')
        o('s_cbranch_scc1 L_chain_done')
        if not DLY.get('nodep'):
            stouch(slice(0, 15), f'{P}_t2', nsteps-2)
            o(f's_add_u32 s54, s{S_STEP}, {3 if DLY.get("spf") else 1 if LATE else 2}')
            o('s_and_b32 s55, s54, 7')
            o(f's_cbranch_scc1 {P}_po')
            o('s_sub_u32 s55, s54, 16')
            o('s_cmp_ge_u32 s55, 48')
            o(f's_cbranch_scc1 {P}_po')
            s_expr(o, 54, [(54, 16)], const=WS_CNT + 128*C_KV)
            o(f'v_mov_b32 v{V_T}, s54')
            o(f'{P}_kvw:')
            o(f'global_load_dword v{V_T+1}, v{V_T}, s[4:5] sc1')
            o(f's_sub_u32 s{S_BUD}, s{S_BUD}, 1')
            o('s_cbranch_scc1 L_chain_bail')
            o('s_waitcnt vmcnt(0)')
            o(f'v_cmp_gt_u32 vcc, 32, v{V_T+1}')
            o(f's_cbranch_vccnz {P}_kvw')
        o(f'{P}_po:')
        o('s_barrier')
        for i in range(8): o(f'v_mov_b32 v{V_E+i}, 0')
        o(f's_add_u32 s{S_STEP}, s{S_STEP}, 1')
        if LATE == 2: o('s_mov_b32 m0, s52')
        nops(DLY['o'])
        aO = lambda c: f'v{V_ORD}, {CUR} offset:{c*1024}'
        issue(V_A, aO, pace=DLY['po'])
        sstream(P, 'o', V_A, aO, lambda c: [smf(V_E+4*t, c, 6+t) for t in range(2)], simple=simple)
        st(5)
        for t in range(2):
            b = V_E + 4*t
            o(f'v_pk_add_f32 {vr(b,2)}, {vr(b,2)}, {vr(b+2,2)}')
            o(f'ds_write2_b32 v{V_LROW}, v{b}, v{b+1} offset0:{t*16} offset1:{t*16+RS//4}')
        if LATE == 2:
            for i in range(2): o(f'global_load_lds_dwordx4 v{V_KD2}, s[{S_KB}:{S_KB+1}] offset:{i*1024} sc1')
            o('s_mov_b32 m0, s53')
            o('s_nop 0')
            o(f'global_load_lds_dwordx4 v{V_VD2}, s[{S_KB}:{S_KB+1}] sc1')
        o('s_waitcnt lgkmcnt(0)')
        o('s_barrier')
        st(6)
        o(f'ds_read2st64_b32 {vr(V_E,2)}, v{V_LROQ} offset0:0 offset1:5')
        o(f'ds_read2st64_b32 {vr(V_E+2,2)}, v{V_LROQ} offset0:10 offset1:15')
        o(f's_cmp_lt_u32 s{S_W}, 2')
        o('s_waitcnt lgkmcnt(0)')
        o(f'v_add_f32 v{V_E}, v{V_E}, v{V_E+1}')
        o(f'v_add_f32 v{V_E+2}, v{V_E+2}, v{V_E+3}')
        o(f'v_add_f32 v{V_E}, v{V_E}, v{V_E+2}')
        o(f'v_min_u32 v{V_E}, s{S_NOSENT}, v{V_E}')
        o(f'global_store_dword v{V_CWQ}, v{V_E}, {CUR} sc1')
        st(7)
        o(f'global_store_dword v{V_QKWR}, v{V_SENT}, {RST} {sc}')
        o(f'global_store_dword v{V_CWQ}, v{V_SENT}, {RST} sc1')
        o(f's_cbranch_scc0 {P}_w23c')
        o(f's_mov_b64 exec, s[{S_MQ}:{S_MQ+1}]')
        o(f'global_store_dwordx2 v{V_OWR}, {vr(V_SENT,2)}, {RST} {sc}')
        o('s_mov_b64 exec, -1')
        prep()
        if not LATE: kvread()
        rotate()
        flush()
        stouch(slice(30, 32), f'{P}_t0', nsteps-1)
        o(f's_branch {P}_top')
        o(f'{P}_w23c:')
        o(f's_cmp_eq_u32 s{S_W}, 3')
        o(f's_cbranch_scc0 {P}_w2c')
        def prog(sub):
            o(f'v_mov_b32 v{V_T}, s{S_STEP}')
            if sub: o(f'v_add_u32 v{V_T}, {sub}, v{V_T}')
            o('s_mov_b64 exec, 1')
            o(f'global_store_dword v{V_PROG}, v{V_T}, s[4:5] sc1')
            o('s_mov_b64 exec, -1')
        def pub():
            for hf in range(2):
                o(f'global_store_dword v{V_KMW2}, v{V_PUB+hf}, s[{S_KM}:{S_KM+1}] offset:{hf*256} sc1')
                o(f'global_store_dword v{V_KMWR}, v{V_PUB+2+hf}, s[{S_VM}:{S_VM+1}] offset:{hf*256} sc1')
            s_add64(o, S_KM, S_KM, SS//4)
            s_add64(o, S_VM, S_VM, SS//4)
        if LATE == 1:
            st(9)
            kvdma()
            if DLY.get('kvlat'):
                o('s_waitcnt vmcnt(0)')
                st(11)
        prog(-1)
        pub()
        rotate()
        flush()
        o(f's_branch {P}_top')
        o(f'{P}_last3:')
        pub()
        o('s_waitcnt vmcnt(0)')
        prog(1)
        o('s_branch L_chain_done')
        o(f'{P}_w2c:')
        o(f'ds_read2_b64 {vr(V_R,4)}, v{V_LROR} offset0:0 offset1:2')
        o(f'ds_read2_b64 {vr(V_R+4,4)}, v{V_LROR} offset0:{RO_P//8} offset1:{RO_P//8+2}')
        o(f'ds_read2_b64 {vr(V_R+8,4)}, v{V_LROR2} offset0:0 offset1:2')
        o(f'ds_read2_b64 {vr(V_R+12,4)}, v{V_LROR2} offset0:{RO_P//8} offset1:{RO_P//8+2}')
        o(f'global_store_dwordx2 v{V_MWR}, {vr(V_SENT,2)}, {RST} {sc}')
        o(f's_mov_b64 s[{S_CC}:{S_CC+1}], {CUR}')
        rotate()
        flush()
        o('s_waitcnt lgkmcnt(0)')
        sum4(V_R)
        nops(DLY['c'])
        st(8)
        crd = [V_CRD, V_CRD2, V_CRD3]
        aC = lambda c: f'v{crd[c]}, {sr(S_CC)}'
        issue(V_C, aC, n=3)
        C = V_C
        if not simple:
            o('s_waitcnt vmcnt(2)')
            o(f'v_max3_u32 v{Tm}, v{C}, v{C+1}, v{C+2}')
            for h in range(2): o(f'v_pk_add_f32 {vr(V_R+4+2*h,2)}, {vr(V_R+2*h,2)}, {vr(C+2*h,2)}')
            o('s_waitcnt vmcnt(1)')
            o(f'v_max3_u32 v{Tm}, v{Tm}, v{C+3}, v{C+4}')
            o(f'v_max3_u32 v{Tm}, v{Tm}, v{C+5}, v{C+6}')
            o('s_waitcnt vmcnt(0)')
            o(f'v_max3_u32 v{Tm}, v{Tm}, v{C+7}, v{C+8}')
            o(f'v_max3_u32 v{Tm}, v{Tm}, v{C+9}, v{C+10}')
            o(f'v_max_u32 v{Tm}, v{Tm}, v{C+11}')
            o(f'v_cmp_eq_u32 vcc, -1, v{Tm}')
            for h in range(2): o(f'v_pk_add_f32 {vr(V_R+8+2*h,2)}, {vr(C+4+2*h,2)}, {vr(C+8+2*h,2)}')
            for h in range(2): o(f'v_pk_add_f32 {vr(V_R+4+2*h,2)}, {vr(V_R+4+2*h,2)}, {vr(V_R+8+2*h,2)}')
            for h in range(2): o(f'v_cvt_pk_bf16_f32 v{V_R+4+h}, v{V_R+4+2*h}, v{V_R+5+2*h}')
            for h in range(2): o(f'v_min_u32 v{V_R+4+h}, s{S_NOSENT}, v{V_R+4+h}')
            o(f's_cbranch_vccnz {P}_c_go')
            o(f'global_store_dwordx2 v{V_MWR}, {vr(V_R+4,2)}, {CUR} {sc}')
            st(10)
            o(f's_branch {P}_top')
        sstream(P, 'c', V_C, aC, lambda c: [f'v_pk_add_f32 {vr(V_R+2*h,2)}, {vr(V_R+2*h,2)}, {vr(V_C+2*h,2)}' for h in range(2)] if c == 0 else [], n=3, simple=simple)
        for h in range(2): o(f'v_pk_add_f32 {vr(V_C+4+2*h,2)}, {vr(V_C+4+2*h,2)}, {vr(V_C+8+2*h,2)}')
        for h in range(2): o(f'v_pk_add_f32 {vr(V_R+2*h,2)}, {vr(V_R+2*h,2)}, {vr(V_C+4+2*h,2)}')
        o(f'v_cvt_pk_bf16_f32 v{V_R}, v{V_R}, v{V_R+1}')
        o(f'v_cvt_pk_bf16_f32 v{V_R+1}, v{V_R+2}, v{V_R+3}')
        o(f'v_min_u32 v{V_R}, s{S_NOSENT}, v{V_R}')
        o(f'v_min_u32 v{V_R+1}, s{S_NOSENT}, v{V_R+1}')
        o(f'global_store_dwordx2 v{V_MWR}, {vr(V_R,2)}, {CUR} {sc}')
        st(10)
        o(f's_branch {P}_top')
        for f in utails: f()
        utails.clear()
    loop('L_cf', '')
    loop('L_cs', 'sc1')
    o('L_chain_bail:')
    o('v_mov_b32 v24, 1')
    o('v_mov_b32 v25, 0')
    o(f'global_atomic_add v25, v24, s[6:7] offset:{D_BAIL*4}')
    o('s_endpgm')
    o('L_chain_done:')
    if DLY.get('diag'): diag(o, 3)
    if stamp:
        o('s_memtime s[90:91]')
        o('s_memrealtime s[92:93]')
        o('s_waitcnt lgkmcnt(0)')
        o('s_sub_u32 s90, s90, s60')
        o(f's_or_b32 s54, s{S_X}, s{S_J}')
        o('s_cbranch_scc1 L_chain_end')
        o('v_mov_b32 v25, s90')
        o(f'v_mov_b32 v24, s{S_BUD}')
        o('v_mov_b32 v26, s92')
        o('v_mov_b32 v27, s94')
        o(f'v_mov_b32 v28, {WS_STAMP - 64}')
        o('global_store_dwordx4 v28, v[24:27], s[4:5]')
        o('L_chain_end:')
    o('s_waitcnt vmcnt(0) lgkmcnt(0)')
    o(f's_add_u32 s10, s{S_X}, 4')
    o('s_branch L_bulk')
```

```python
from layout import *
from util import *

EXP = {}
G_AOFF = 4
G_BOFF = 8
G_ARD = 12
G_BRD = 16
G_T = 24
G_FA = 64
G_FB = 96
def fa(s, i): return G_FA + 64*(s & 1) + 4*i
def fb(s, i): return G_FB + 64*(s & 1) + 4*i
S_AB = 16; S_BB = 18; S_AST = 20; S_BST = 21; S_CNT = 22; S_MA = 23; S_MB = 24; S_W = 14

class Shape:
    def __init__(s, MT, NT, nfa, na, pairs):
        s.MT, s.NT, s.nfa, s.na, s.pairs = MT, NT, nfa, na, pairs
        s.nd = na + 4
    def acc(s, mt, nt): return (mt*s.NT+nt)*4

S88 = Shape(8, 8, 8, 4, [(mt, nt, mt, nt, True) for mt in range(8) for nt in range(8)])
S48 = Shape(4, 8, 4, 2, [(mt, nt, mt, nt, True) for mt in range(4) for nt in range(8)])
S44 = Shape(4, 4, 8, 4, [(mt, nt, 2*mt+sub, 4*sub+nt, sub == 0) for sub in range(2) for mt in range(4) for nt in range(4)])

def dma_group(sh, slot, asc=''):
    r = [f's_add_u32 m0, s{S_MA}, {slot*16384}', 's_nop 0']
    for i in range(sh.na): r.append(f'global_load_lds_dwordx4 v{G_AOFF+i}, s[{S_AB}:{S_AB+1}] offset:{i*1024} {asc}')
    r.append(f's_add_u32 m0, s{S_MA}, {65536 + slot*16384}')
    r.append(f's_add_u32 s{S_AB}, s{S_AB}, s{S_AST}')
    r.append(f's_addc_u32 s{S_AB+1}, s{S_AB+1}, 0')
    for i in range(4): r.append(f'global_load_lds_dwordx4 v{G_BOFF+i}, s[{S_BB}:{S_BB+1}] offset:{i*1024}')
    r.append(f's_add_u32 s{S_BB}, s{S_BB}, s{S_BST}')
    r.append(f's_addc_u32 s{S_BB+1}, s{S_BB+1}, 0')
    return r

def frag_reads(sh, slot, sub, par):
    r = []
    for i in range(8):
        if i < sh.nfa:
            off = slot*16384 + (i*1024 if sh.nfa == 8 else (i >> 1)*4096 + (i & 1)*1024)
            r.append(f'ds_read_b128 {vr(fa(par,i),4)}, v{G_ARD} offset:{off}')
        for h in range(2):
            r.append(f'ds_read_b64_tr_b16 {vr(fb(par,i)+2*h,2)}, v{G_BRD+i} offset:{slot*16384 + h*4096}')
    return r

def stage(o, sh, st, transposed, first, dma, last, vm, asc='', extra=None):
    D = dma_group(sh, st, asc) if dma else []
    D = [x for x in D if x != 's_nop 0'] + list(extra or [])
    nm = len(sh.pairs); par = st & 1
    o(f's_waitcnt vmcnt({vm}) lgkmcnt(0)'); o('s_barrier')
    R = [] if last else frag_reads(sh, (st+1) % 4, 0, par ^ 1)
    slots = [[] for _ in range(nm)]
    step = 2 if nm == 64 else 1
    for k, ins in enumerate(R): slots[step*k].append(ins)
    pos = 1
    for ins in D:
        slots[min(pos, nm-1)].append(ins)
        pos += (4 if nm == 64 else 2) if ins.startswith('global') else (2 if nm == 64 else 1)
    for k, (mt, nt, ia, ib, f0) in enumerate(sh.pairs):
        acc = ar(sh.acc(mt, nt), 4)
        A = vr(fa(par, ia), 4); B = vr(fb(par, ib), 4)
        if transposed: A, B = B, A
        o(f'v_mfma_f32_16x16x32_bf16 {acc}, {A}, {B}, {"0" if (first and f0) else acc}')
        for ins in slots[k]: o(ins)

def prologue_dma(o, sh, asc=''):
    for s in range(4):
        for ins in dma_group(sh, s, asc): o(ins)

def body_first(o, sh, transposed, asc='', sig=None):
    o('s_barrier')
    for ins in frag_reads(sh, 0, 0, 0): o(ins)
    for s in range(4):
        stage(o, sh, s, transposed, s == 0, True, False, 63 if s < 3 else 2*sh.nd, asc, extra=sig if s == 3 else None)

def body_mid(o, P, sh, transposed, asc='', ex2=None, ex3=None, ex1=None, ex0=None):
    o(f'{P}_mid:')
    for s in range(4): stage(o, sh, s, transposed, False, True, False, 2*sh.nd, asc, extra={0: ex0, 1: ex1, 2: ex2, 3: ex3}.get(s))
    o(f's_sub_u32 s{S_CNT}, s{S_CNT}, 1')
    o(f's_cmp_lg_u32 s{S_CNT}, 0')
    o(f's_cbranch_scc1 {P}_mid')

def body_last(o, sh, transposed):
    for s in range(4):
        vm = (2-s)*sh.nd + 8*s if s < 3 else 63
        stage(o, sh, s, transposed, False, False, s == 3, vm, extra=[x for x in dma_group(S88, s, 'sc1') if x != 's_nop 0'])

def swz_f(o, dst, lo, tmp):
    o(f'v_bfe_u32 v{dst}, v0, {lo}, 2')
    o(f'v_lshlrev_b32 v{dst}, 1, v{dst}')
    o(f'v_mov_b32 v{tmp}, 0x78')
    o(f'v_lshrrev_b32 v{dst}, v{dst}, v{tmp}')

def a_nat(o, off, rd, lda=2048):
    T = G_T
    swz_f(o, T, 4, T+1)
    o(f'v_xor_b32 v{T}, v{T}, v0')
    o(f'v_and_b32 v{T}, 3, v{T}')
    tid_expr(o, off, [(2, 4, lda), (6, 2, 64*lda)])
    o(f'v_lshl_add_u32 v{off}, v{T}, 4, v{off}')
    if EXP.get('fakeblk'): tid_expr(o, off, [(0, 6, 16), (6, 2, 64*lda)])
    for i in range(1, 4): o(f'v_add_u32 v{off+i}, {i*(16*lda - 1024)}, v{off}')
    swz_f(o, T, 2, T+1)
    o(f'v_bfe_u32 v{T+1}, v0, 4, 2')
    o(f'v_xor_b32 v{T}, v{T}, v{T+1}')
    o(f'v_and_b32 v{T}, 3, v{T}')
    tid_expr(o, rd, [(0, 4, 64), (7, 1, 8192)])
    o(f'v_lshl_add_u32 v{rd}, v{T}, 4, v{rd}')

def a_nat48(o, off, src, lda=2048):
    tid_expr(o, off, [(6, 2, 32*lda)])
    o(f'v_sub_u32 v{off}, v{src}, v{off}')
    o(f'v_add_u32 v{off+1}, {16*lda - 1024}, v{off}')
    o(f'v_add_u32 v{off+2}, {16*lda - 2048}, v{off}')
    o(f'v_add_u32 v{off+3}, {16*lda - 3072}, v{off}')

def a_blk44(o, off, rts):
    tid_expr(o, off, [(0, 6, 16), (6, 2, 2*rts)])
    o(f'v_add_u32 v{off+1}, {rts - 2048}, v{off}')

def b_off(o, off, permk, ldb):
    T = G_T
    o(f'v_bfe_u32 v{T}, v0, 4, 2')
    o(f'v_lshlrev_b32 v{T}, 1, v{T}')
    o(f'v_xor_b32 v{T}, v{T}, v0')
    o(f'v_and_b32 v{T}, 15, v{T}')
    o(f'v_lshlrev_b32 v{T}, 4, v{T}')
    o(f'v_xor_b32 v{T+1}, 128, v{T}')
    tid_expr(o, T+2, [(4, 2, ldb), (6, 1, (16 if permk else 4)*ldb)])
    rstep = (4 if permk else 8) * ldb
    o(f'v_add_u32 v{off}, v{T+2}, v{T}')
    o(f'v_add_u32 v{T+1}, v{T+2}, v{T+1}')
    o(f'v_add_u32 v{off+1}, {1*(rstep - 1024)}, v{T+1}')
    o(f'v_add_u32 v{off+2}, {2*(rstep - 1024)}, v{off}')
    o(f'v_add_u32 v{off+3}, {3*(rstep - 1024)}, v{T+1}')

def b_rd(o, rd, split):
    T = G_T
    tid_expr(o, T, [(2, 3, 32)])
    if not split:
        tid_expr(o, T+1, [(2, 4, 256), (0, 2, 8), (6, 1, 8192)], const=65536)
        for t in range(8):
            o(f'v_xor_b32 v{T+2}, {t*32}, v{T}')
            o(f'v_add_u32 v{rd+t}, v{T+1}, v{T+2}')
    else:
        tid_expr(o, T+2, [(6, 1, 128)])
        o(f'v_xor_b32 v{T}, v{T}, v{T+2}')
        tid_expr(o, T+1, [(2, 4, 256), (0, 2, 8)], const=65536)
        for t in range(4):
            o(f'v_xor_b32 v{T+2}, {t*32}, v{T}')
            o(f'v_add_u32 v{rd+t}, v{T+1}, v{T+2}')
            o(f'v_add_u32 v{rd+4+t}, 8192, v{rd+t}')

def rd_acc(o, dst, a0, a1):
    for k, a in enumerate((a0, a1)):
        for i in range(4): o(f'v_accvgpr_read_b32 v{dst+4*k+i}, a{a+i}')
def pack8(o, dst, src):
    for k in range(4): o(f'v_cvt_pk_bf16_f32 v{dst+k}, v{src+2*k}, v{src+2*k+1}')
def unpack8(o, dst, src):
    for k in range(4):
        o(f'v_lshlrev_b32 v{dst+2*k}, 16, v{src+k}')
        o(f'v_and_b32 v{dst+2*k+1}, 0xffff0000, v{src+k}')

G_L16 = 2
G_L16B = 3
def epi_blocked(o, kind, sb, sh=S88):
    T = G_T; n = 0
    for seg in range(sh.MT//2):
        for blk in range(8):
            if kind == 'qk':
                t, e = blk >> 2, blk & 3
                a0, a1 = sh.acc(2*seg+t, 2*e), sh.acc(2*seg+t, 2*e+1)
            else:
                a0, a1 = sh.acc(2*seg, blk), sh.acc(2*seg+1, blk)
            d = G_FA + 4*(n % 16); n += 1
            rd_acc(o, T + 8*(n & 1), a0, a1)
            pack8(o, d, T + 8*(n & 1))
            if not EXP.get('nost'): o(f'global_store_dwordx4 v{G_L16+(blk>>2)}, {vr(d,4)}, s[{sb}:{sb+1}] offset:{(blk&3)*1024} {EXP.get("stsc", "sc1")}')
        if seg < sh.MT//2 - 1: s_add64(o, sb, sb, SS)
    return 0 if EXP.get('nost') else n

def epi_up(o, sb, mid=None):
    T = G_T; sh = S88; n = 0
    o(f's_mov_b32 s29, {0xbfb8aa3b:#x}')
    for mt in range(8):
        for q in range(2):
            d = G_FA + 4*(n % 16); n += 1
            G = T; U = T + 8; E = T + 16
            rd_acc(o, G, sh.acc(mt, 2*q), sh.acc(mt, 2*q+1))
            for i in range(8): o(f'v_mul_f32 v{E+i}, s29, v{G+i}')
            for i in range(8): o(f'v_exp_f32 v{E+i}, v{E+i}')
            rd_acc(o, U, sh.acc(mt, 4+2*q), sh.acc(mt, 4+2*q+1))
            for i in range(8): o(f'v_add_f32 v{E+i}, 1.0, v{E+i}')
            for i in range(8): o(f'v_rcp_f32 v{E+i}, v{E+i}')
            for i in range(4): o(f'v_pk_mul_f32 {vr(G+2*i,2)}, {vr(G+2*i,2)}, {vr(E+2*i,2)}')
            for i in range(4): o(f'v_pk_mul_f32 {vr(G+2*i,2)}, {vr(G+2*i,2)}, {vr(U+2*i,2)}')
            pack8(o, d, G)
            o(f'global_store_dwordx4 v{G_L16}, {vr(d,4)}, s[{sb}:{sb+1}] offset:{q*1024} sc1')
        if mt < 7: s_add64(o, sb, sb, 112*1024)
        if mt == 1 and mid: mid(4)
    return 16

def epi_db(o, sb, gv):
    T = G_T; sh = S88; n = 0
    for mt in range(8):
        for q in range(4):
            d = G_FA + 4*(n % 16); n += 1
            rd_acc(o, T, sh.acc(mt, 2*q), sh.acc(mt, 2*q+1))
            pack8(o, T+8, T)
            unpack8(o, T, T+8)
            for i in range(4): o(f'v_pk_mul_f32 {vr(T+2*i,2)}, {vr(T+2*i,2)}, {vr(gv+2*mt,2)} op_sel:[0,1] op_sel_hi:[1,1]')
            pack8(o, d, T)
            o(f'global_store_dwordx4 v{G_L16}, {vr(d,4)}, s[{sb}:{sb+1}] offset:{q*1024} sc1')
        if mt < 7: s_add64(o, sb, sb, 32*1024)
    return 32

def epi_da(o, sb, gv, so, vo, nmt=4):
    T = G_T; sh = S44; n = 0
    for mt in range(nmt):
        for q in range(2):
            d = G_FA + 4*n
            rd_acc(o, T, sh.acc(mt, 2*q), sh.acc(mt, 2*q+1))
            for i in range(4): o(f'v_accvgpr_read_b32 v{T+24+i}, a{64+4*n+i}')
            n += 1
            pack8(o, T+8, T)
            unpack8(o, T, T+8)
            for i in range(4): o(f'v_pk_mul_f32 {vr(T+2*i,2)}, {vr(T+2*i,2)}, {vr(gv+2*mt,2)} op_sel_hi:[1,0]')
            pack8(o, T+8, T)
            unpack8(o, T, T+8)
            unpack8(o, T+16, T+24)
            for i in range(4): o(f'v_pk_add_f32 {vr(T+2*i,2)}, {vr(T+2*i,2)}, {vr(T+16+2*i,2)}')
            pack8(o, d, T)
            o(f'v_permlane16_swap_b32 v{d}, v{d+2}')
            o(f'v_permlane16_swap_b32 v{d+1}, v{d+3}')
            o(f'global_store_dwordx4 v{vo}, {vr(d,4)}, s[{so}:{so+1}] offset:{q*64}')
        if mt < nmt-1: s_add64(o, so, so, 16*2048)
    return 2*nmt
```

```python
MB = 1 << 20
WS_Q = 0
WS_K = 16 * MB
WS_VT = 32 * MB
WS_H = 48 * MB
WS_O = 64 * MB
WS_KM = 80 * MB
WS_VMT = 84 * MB
WS_RING = 88 * MB
RING_SLOT = 512 * 1024
R_MEM = 0
R_QK = 64 * 1024
R_OB = 192 * 1024
R_C = 4 * MB
WS_PROG = 90 * MB
WS_G = 91 * MB
WS_T2 = 96 * MB
WS_STAMP = 200 * MB
KA = dict(x=0, mem0=8, Wq=16, Wk=24, Wv=32, Wo=40, seg=48, Bx=56, w1=64, w3=72, w2=80, gate=88, out=96, dbg=104, ws=112)
D_INIT = 32; D_MASK = 4; D_TICK = 8; D_BAIL = 16; D_POL = 17; D_DEC = 1; D_DUMMY = 18;
WS_CNT = 90 * MB + 65536
C_KV = 0; C_Q = 8; C_H = 16; C_O = 24; C_B = 40; C_DUMMY = 63
T_END, T_Q, T_K, T_V, T_UP, T_DB, T_DA, T_DK, T_DA4, T_KS, T_VS, T_ATT, T_AT1, T_WARM, T_POOL = 0, 1, 2, 3, 4, 5, 6, 7, 8, 9, 10, 11, 12, 13, 14
HS = 64*8192; SS = 8192
C_TILE = 64
WS_PS = 104 * MB
WS_XB = 100 * MB
C_X = 48
C_POOL = 192
C_KS = 56
```

```python
import struct, math
def f2u(f): return struct.unpack('<I', struct.pack('<f', f))[0]
def vr(b, n): return f'v[{b}:{b+n-1}]' if n > 1 else f'v{b}'
def ar(b, n): return f'a[{b}:{b+n-1}]'
def sr(b, n=2): return f's[{b}:{b+n-1}]'

class Out:
    def __init__(s): s.L = []
    def __call__(s, x): s.L.append(x if x.endswith(':') else '    ' + x)
    def text(s): return '\n'.join(s.L) + '\n'

def tid_expr(o, dst, terms, const=0, sregs=(), tmp=31, stmp=59, src=0):
    first = True
    for (lo, n, mult) in terms:
        p2 = mult > 0 and (mult & (mult - 1)) == 0
        o(f'v_bfe_u32 v{tmp}, v{src}, {lo}, {n}')
        if first:
            if p2: o(f'v_lshlrev_b32 v{dst}, {mult.bit_length()-1}, v{tmp}')
            else: o(f'v_mul_u32_u24 v{dst}, {mult}, v{tmp}')
            first = False
        elif p2:
            o(f'v_lshl_add_u32 v{dst}, v{tmp}, {mult.bit_length()-1}, v{dst}')
        else:
            o(f's_mov_b32 s{stmp}, {mult}')
            o(f'v_mad_u32_u24 v{dst}, v{tmp}, s{stmp}, v{dst}')
    if first: o(f'v_mov_b32 v{dst}, 0')
    if const: o(f'v_add_u32 v{dst}, {const}, v{dst}')
    for s in sregs: o(f'v_add_u32 v{dst}, s{s}, v{dst}')

def s_expr(o, dst, terms, const=0, tmp=59):
    first = True
    for (reg, mult) in terms:
        t = dst if first else tmp
        if mult == 1 and not first:
            o(f's_add_u32 s{dst}, s{dst}, s{reg}'); continue
        if (mult & (mult - 1)) == 0: o(f's_lshl_b32 s{t}, s{reg}, {mult.bit_length()-1}')
        else: o(f's_mul_i32 s{t}, s{reg}, {mult}')
        if not first: o(f's_add_u32 s{dst}, s{dst}, s{tmp}')
        first = False
    if first: o(f's_mov_b32 s{dst}, {const}')
    elif const: o(f's_add_u32 s{dst}, s{dst}, {const}')

def s_add64(o, dst, base, off):
    o(f's_add_u32 s{dst}, s{base}, {off}')
    o(f's_addc_u32 s{dst+1}, s{base+1}, 0')

def diag(o, word, v0=24):
    o('s_memrealtime s[96:97]')
    o('s_waitcnt lgkmcnt(0)')
    o('s_sub_u32 s96, s96, s94')
    o(f'v_mov_b32 v{v0}, s96')
    o(f'v_mov_b32 v{v0+1}, 0')
    o('s_mov_b64 exec, 1')
    o(f'global_atomic_umax v{v0+1}, v{v0}, s[6:7] offset:{word*4}')
    o('s_mov_b64 exec, -1')
```

```python
import sys; sys.path.insert(0, 'gen')
from layout import *
from util import *
import chain, bulk, hazard

NAME = 'gated_mix__memory_aug_recurrent_mem_tr__glu_gated_swiglu__prompt'

def item(t, rb, ct, dep=C_DUMMY-1, tgt=0, sig=C_DUMMY): return t | rb << 4 | ct << 8 | dep << 14 | tgt << 20 | sig << 26

def SCHED(KS, KV, KL, UP, Q, DB, DA, DK, AT, A1, WM):
    return [
        [KS(0), KV(0), UP(0,0), UP(1,0), Q(0,0), AT(0), AT(2), DA(0), A1(12, 0), A1(14, 0)],
        [KS(1), KV(1), UP(0,1), UP(1,1), KL(2), Q(1,0), AT(4), DA(4)],
        [KS(2), KV(2), UP(0,2), UP(1,2), Q(0,1), AT(1), AT(3), DA(1), A1(12, 1), A1(14, 1)],
        [KS(3), KV(3), UP(0,3), UP(1,3), KL(3), Q(1,1), AT(5), DA(5)],
        [KS(4), KV(4), UP(0,4), UP(1,4), Q(0,2), Q(1,2), DA(2), A1(13, 0)],
        [KS(5), KV(5), UP(0,5), UP(1,5), DB(1), A1(15, 0)],
        [KS(6), KV(6), UP(0,6), UP(1,6), Q(0,3), Q(1,3), DA(3), A1(13, 1)],
        [KS(7), KV(7), KL(0), WM(0), WM(1), KL(1), DB(0), A1(15, 1)],
    ] + [[DK(4, 6 + (i & 1), i >> 1)] for i in range(8)]

def schedule():
    R = range
    def kv(p, rb): return item(T_K if p < 16 else T_V, rb, p & 15, dep=C_X + rb, tgt=16 if rb > 5 else 0, sig=C_KV + rb)
    KS = lambda l: [item(T_KS if l < 4 else T_VS, r, (4*l + c) & 15, sig=C_KV) for c in R(4) for r in R(4)]
    KV = lambda l: [kv(4*l + c, rb) for c in R(4) for rb in R(2, 6)]
    KL = lambda i: [kv(8*i + c, rb) for c in R(8) for rb in (6, 7)]
    UP = lambda h, i: [item(T_UP, 4*h + r, 4*i + c, dep=C_X + 4*h + r, tgt=16, sig=C_H + 4*h + r) for c in R(4) for r in R(4)]
    Q = lambda h, i: [item(T_Q, 4*h + r, 4*i + c, dep=C_X + 4*h + r, tgt=16, sig=C_Q + 4*h + i) for c in R(4) for r in R(4)]
    DB = lambda h: [item(T_DB, 4*h + r, c, dep=C_H + 4*h + r, tgt=28, sig=C_B + 4*h + r) for r in R(4) for c in R(4)]
    DA = lambda p: [item(T_DA, 2*p + r, c, dep=C_O + 2*p + r, tgt=8) for r in R(2) for c in R(8)]
    DK = lambda n, p, q: [item(T_DK if n == 4 else T_DK2, 2*p + r, c + 8*q, dep=C_O + 2*p + r, tgt=8 if p < 6 else 32) for r in R(2) for c in R(8)]
    A1 = lambda rq, h: [item(T_AT1, rq, c + 8*(2*h + i), dep=C_Q + 4 + c//2, tgt=16, sig=C_O + rq) for i in R(2) for c in R(8)]
    WM = lambda h: [item(T_WARM, 0, 16*h + c) for c in R(16)]
    AT = lambda p: [item(T_ATT, 2*p + r, c, dep=C_Q + 4*(p//4) + c//2, tgt=16, sig=C_O + 2*p + r) for r in R(2) for c in R(8)]
    lanes = SCHED(KS, KV, KL, UP, Q, DB, DA, DK, AT, A1, WM)
    tabs = []
    for g in range(8):
        tabs.append([[b[c & 15] for b in lanes[2*g + (c >> 4)]] for c in range(32)])
    n = max(len(l) for t in tabs for l in t) + 2
    return [[l + [item(0, 0, 0)]*(n - len(l)) for l in t] for t in tabs]

WARMCODE = True
DIAG = False
TOUCH = True
def entry(o, stamp):
    o('s_cmp_ge_u32 s2, 256')
    o('s_cbranch_scc1 L_exit')
    if stamp or DIAG: o('s_memrealtime s[94:95]')
    o(f's_load_dwordx2 s[4:5], s[0:1], {KA["ws"]}')
    o(f's_load_dwordx2 s[6:7], s[0:1], {KA["dbg"]}')
    if WARMCODE:
        o('s_getpc_b64 s[16:17]')
        o('L_entry_pc:')
        o('s_lshr_b32 s54, s2, 3')
        o('s_and_b32 s54, s54, 3')
        o('s_lshl_b32 s54, s54, 15')
        o('v_lshl_add_u32 v24, v0, 7, s54')
        o('v_min_u32 v24, L_code_end-L_entry_pc-4, v24')
        o('global_load_dword v28, v24, s[16:17]')
    o('v_lshrrev_b32 v24, 6, v0')
    o('s_getreg_b32 s12, hwreg(HW_REG_XCC_ID)')
    o('v_readfirstlane_b32 s14, v24')
    o('s_and_b32 s12, s12, 7')
    o('v_mov_b32 v25, 1')
    o('s_mov_b32 s15, 0')
    o('v_mov_b32 v27, 0')
    o('s_waitcnt lgkmcnt(0)')
    o('s_cmp_eq_u32 s14, 0')
    o('s_cbranch_scc0 L_en_w1')
    o('s_lshl_b32 s54, s2, 7')
    o(f's_add_u32 s54, s54, {WS_CNT}')
    o('v_lshl_add_u32 v24, v0, 2, s54')
    o('s_mov_b64 exec, 1')
    o('global_store_dword v24, v27, s[4:5] sc1')
    o('s_waitcnt vmcnt(0)')
    o('s_mov_b64 exec, 1')
    o('s_mov_b32 s13, s12')
    o('L_en_try:')
    o('s_lshl_b32 s54, s13, 2')
    o('v_mov_b32 v24, s54')
    o(f'global_atomic_add v26, v24, v25, s[6:7] offset:{D_TICK*4} sc0')
    o('s_waitcnt vmcnt(0)')
    o('v_readfirstlane_b32 s11, v26')
    o('s_cmp_lt_u32 s11, 32')
    o('s_cbranch_scc1 L_en_got')
    o('s_add_u32 s13, s13, 1')
    o('s_and_b32 s13, s13, 7')
    o('s_cmp_lg_u32 s13, s12')
    o('s_cbranch_scc1 L_en_try')
    o('L_en_got:')
    o('s_min_u32 s11, s11, 255')
    o('s_lshl_b32 s54, s13, 8')
    o('s_or_b32 s54, s54, s11')
    o('v_mov_b32 v26, s54')
    o('ds_write_b32 v27, v26')
    o('s_cmp_lt_u32 s13, 4')
    o('s_cbranch_scc0 L_en_m')
    o('s_lshl_b32 s54, 1, s12')
    o('v_mov_b32 v26, s54')
    o(f'global_atomic_or v24, v26, s[6:7] offset:{D_MASK*4}')
    o('L_en_m:')
    o('s_mov_b64 exec, -1')
    o('s_branch L_en_j')
    o('L_en_w1:')
    o('L_en_j:')
    o('s_waitcnt lgkmcnt(0)')
    o('s_barrier')
    o('ds_read_b32 v26, v27')
    o('s_waitcnt lgkmcnt(0)')
    o('v_readfirstlane_b32 s54, v26')
    o('s_barrier')
    o('s_and_b32 s11, s54, 255')
    o('s_lshr_b32 s10, s54, 8')
    o('s_cmp_ge_u32 s11, 32')
    o('s_cbranch_scc1 L_exit')
    o('s_cmp_lt_u32 s10, 4')
    o('s_cbranch_scc1 L_chain')
    o('s_sub_u32 s10, s10, 4')
    o('s_branch L_bulk')
    o('L_exit:')
    o('s_endpgm')

KD = '''.amdhsa_kernel {n}
  .amdhsa_next_free_vgpr 512
  .amdhsa_next_free_sgpr 102
  .amdhsa_accum_offset 256
  .amdhsa_group_segment_fixed_size 0
  .amdhsa_kernarg_size 120
  .amdhsa_user_sgpr_count 2
  .amdhsa_user_sgpr_kernarg_segment_ptr 1
  .amdhsa_system_sgpr_workgroup_id_x 1
.end_amdhsa_kernel
'''
def compact(t):
    out = []
    for l in t.split('\n'):
        l = l.split(';')[0].strip()
        if l: out.append(l.replace(', ', ','))
    return '\n'.join(out) + '\n'

def build(stamp=False, DLY=None):
    global WARMCODE, TOUCH, DIAG
    DIAG = (DLY or {}).get('diag')
    TOUCH = (DLY or {}).get('touch', 0)
    WARMCODE = (DLY or {}).get('wc', 1)
    import gemm2
    gemm2.EXP = DLY or {}
    o = Out()
    entry(o, stamp)
    tabs = schedule()
    bulk.gen_bulk(o, tabs, stamp)
    chain.gen_chain(o, stamp=stamp, DLY=DLY)
    o('L_code_end:')
    k1, n1 = hazard.fix(o.text())
    o = Out(); bulk.emit_table(o, tabs)
    head = open(f'cdna_kernels/{NAME}.s.ref').read().split('; Override launch geometry')[0]
    s = head
    s += f'; @launch grid=(256,1,1) block=(256,1,1) lds=163840\n'
    s += '.amdgcn_target "amdgcn-amd-amdhsa--gfx950"\n.text\n'
    s += f'.globl {NAME}_kernel\n.p2align 8\n.type {NAME}_kernel,@function\n{NAME}_kernel:\n' + compact(k1)
    s += compact(o.text())
    s += '.section .rodata,"a"\n.p2align 6\n' + KD.format(n=NAME + '_kernel')
    return s

if __name__ == '__main__':
    s = build(DLY=eval(sys.argv[1]) if len(sys.argv) > 1 else None)
    open(sys.argv[2] if len(sys.argv) > 2 else f'cdna_kernels/{NAME}.s', 'w').write(s)
    print(len(s), 'bytes', s.count('\n'), 'lines')
```

```python
from layout import *
from util import *
from gemm2 import *
import gemm2

C_ANAT = 192; C_AH = 196; C_AO = 198; C_OUT = 214; C_B8 = 200; C_B7 = 204; C_B2 = 208; C_RDN = 212; C_RDB = 213
C_AN2 = 244+8; C_BRN = 216; C_BRS = 224
V_TK = 232; V_TA = 215; V_SIG = 233; V_ONE = 234; V_ZERO = 235; V_DEP = 236; V_GADDR = 237; V_DADDR = 238; V_LDEP = 239; V_LDEP0 = 15; V_GV = 240
S_WS = 4; S_DBG = 6; S_GRP = 10
S_PX = 64; S_PQ = 66; S_PK = 68; S_PV = 70; S_P1 = 72; S_P3 = 74; S_P2 = 76; S_TAB = 78; S_PO = 60; S_POUT = 62
S_CURI = 26; S_NXTI = 27; S_PF = 28; S_OUT = 30; S_SIGN = 32; S_BUD = 40
S_TY = 33; S_RB = 34; S_CT = 35
SCALE_LOG2E = f2u(128 ** -0.5 * math.log2(math.e))

def decode(o, item):
    o(f's_and_b32 s{S_TY}, s{item}, 15')
    o(f's_bfe_u32 s{S_RB}, s{item}, 0x40004')
    o(f's_bfe_u32 s{S_CT}, s{item}, 0x60008')

def set_dma(o, P, item, small=False):
    o(f's_lshr_b32 s55, s{S_W}, 1')
    o(f's_cmp_eq_u32 s{S_TY}, {T_DB}')
    o(f's_cbranch_scc1 {P}_d8')
    o(f's_sub_u32 s54, s{S_TY}, {T_DA}')
    o('s_cmp_lt_u32 s54, 3')
    o(f's_cbranch_scc1 {P}_db')
    s_expr(o, 54, [(S_RB, 1 << 19)], const=WS_XB)
    s_add64(o, S_AB, S_WS, 's54')
    o(f's_mov_b32 s{S_AST}, 1024')
    for i in range(4): o(f'v_mov_b32 v{G_AOFF+i}, v{C_ANAT+i}')
    if small:
        o(f's_cmp_lt_u32 s{S_TY}, {T_KS}')
        o(f's_cbranch_scc1 {P}_big')
        s_expr(o, 54, [(S_RB, 1 << 18), (S_W, 65536)], const=WS_XB)
        s_add64(o, S_AB, S_WS, 's54')
        o(f'v_mov_b32 v{G_AOFF}, v{G_L16}')
        o(f'v_add_u32 v{G_AOFF+1}, {32768-1024}, v{G_L16}')
        o(f'{P}_big:')
    o(f's_cmp_eq_u32 s{S_TY}, {T_UP}')
    o(f's_cbranch_scc1 {P}_up')
    o(f's_cmp_eq_u32 s{S_TY}, {T_Q}')
    o(f's_cselect_b64 s[56:57], s[{S_PQ}:{S_PQ+1}], s[{S_PK}:{S_PK+1}]')
    o(f's_cmp_eq_u32 s{S_TY}, {T_V}')
    o(f's_cselect_b64 s[56:57], s[{S_PV}:{S_PV+1}], s[56:57]')
    if small:
        o(f's_cmp_eq_u32 s{S_TY}, {T_VS}')
        o(f's_cselect_b64 s[56:57], s[{S_PV}:{S_PV+1}], s[56:57]')
    s_expr(o, 54, [(S_CT, 512), (55, 256)])
    s_add64(o, S_BB, 56, 's54')
    o(f's_mov_b32 s{S_BST}, {32*8192}')
    for i in range(4): o(f'v_mov_b32 v{G_BOFF+i}, v{C_B8+i}')
    o(f's_branch {P}_e')
    o(f'{P}_up:')
    o('s_cmp_eq_u32 s55, 1')
    o(f's_cselect_b64 s[56:57], s[{S_P3}:{S_P3+1}], s[{S_P1}:{S_P1+1}]')
    o(f's_lshl_b32 s54, s{S_CT}, 8')
    s_add64(o, S_BB, 56, 's54')
    o(f's_mov_b32 s{S_BST}, {32*7168}')
    for i in range(4): o(f'v_mov_b32 v{G_BOFF+i}, v{C_B7+i}')
    o(f's_branch {P}_e')
    o(f'{P}_d8:')
    s_expr(o, 54, [(S_RB, 16*112*1024)], const=WS_H)
    s_add64(o, S_AB, S_WS, 's54')
    o(f's_mov_b32 s{S_AST}, 1024')
    s_expr(o, 54, [(S_CT, 512), (55, 256)])
    s_add64(o, S_BB, S_P2, 's54')
    o(f's_mov_b32 s{S_BST}, {32*2048}')
    o(f'v_mov_b32 v{G_AOFF}, v{C_AH}')
    for i in range(1, 4): o(f'v_add_u32 v{G_AOFF+i}, {i*111*1024}, v{C_AH}')
    for i in range(4): o(f'v_mov_b32 v{G_BOFF+i}, v{C_B2+i}')
    o(f's_branch {P}_e')
    o(f'{P}_db:')
    o(f's_lshr_b32 s57, s{S_CT}, 3')
    s_expr(o, 54, [(S_RB, 8*128*1024), (57, 32768)], const=WS_O - 2048)
    o(f's_and_b32 s12, s{S_CT}, 7')
    s_expr(o, 12, [(12, 256), (55, 32*2048), (57, 2*MB)])
    s_add64(o, S_AB, S_WS, 's54')
    o(f's_mov_b32 s{S_AST}, 2048')
    s_add64(o, S_BB, S_PO, 's12')
    o(f's_mov_b32 s{S_BST}, {64*2048}')
    for t in range(2):
        s_expr(o, 54, [(S_W, 2), (57, 1)], const=t)
        o('s_and_b32 s54, s54, 3')
        s_expr(o, 54, [(54, 128*1024), (55, 512*1024)], const=2048*(1-t))
        o(f'v_add_u32 v{G_AOFF+2*t}, s54, v{G_L16}')
        o(f'v_mov_b32 v{G_AOFF+2*t+1}, v{G_AOFF+2*t}')
    for i in range(4): o(f'v_mov_b32 v{G_BOFF+i}, v{C_B2+i}')
    o(f'{P}_e:')

def poll_ge(o, lbl, addr_v, base, target, off=0, allw=False, sleep=16):
    if not allw:
        o(f's_cmp_lg_u32 s{S_W}, 0')
        o(f's_cbranch_scc1 {lbl}_ok')
    o(f'{lbl}:')
    o(f'global_load_dword v{V_DEP}, v{addr_v}, s[{base}:{base+1}] offset:{off} sc1')
    o(f's_sub_u32 s{S_BUD}, s{S_BUD}, 1')
    o('s_cbranch_scc1 L_bulk_bail')
    o('s_waitcnt vmcnt(0)')
    o(f'v_cmp_gt_u32 vcc, {target}, v{V_DEP}')
    o(f's_cbranch_vccz {lbl}_ok')
    o(f's_sleep {sleep}')
    o(f's_branch {lbl}')
    o(f'{lbl}_ok:')

_n = [0]
def SIG():
    _n[0] += 1
    return (f's_cmp_eq_u32 s39, 0\n    s_cbranch_scc1 L_sig{_n[0]}\n    s_mov_b32 s39, 0\n    s_mov_b64 exec, 1\n    global_atomic_add v{V_SIG}, v{V_ONE}, s[{S_WS}:{S_WS+1}]\n    s_mov_b64 exec, -1\nL_sig{_n[0]}:\n    s_nop 0')
def cnt(i): return WS_CNT + 128*i
def flush_sig(o):
    o('s_waitcnt vmcnt(0)')
    o('s_barrier')
    o(SIG())

def fetch_issue(o):
    pass

def gen_bulk(o, tables, stamp=False):
    o('L_bulk:')
    for reg, nm in ((S_WS, 'ws'), (S_DBG, 'dbg'), (S_PX, 'x'), (S_PQ, 'Wq'), (S_PK, 'Wk'), (S_PV, 'Wv'), (S_P1, 'w1'), (S_P3, 'w3'), (S_P2, 'w2'), (S_PO, 'Wo'), (S_POUT, 'out'), (46, 'gate')):
        o(f's_load_dwordx2 s[{reg}:{reg+1}], s[0:1], {KA[nm]}')
    o('v_lshrrev_b32 v2, 6, v0')
    o(f's_mov_b32 s{S_BUD}, 0x200000')
    o(f'v_readfirstlane_b32 s{S_W}, v2')
    o(f's_getpc_b64 s[{S_TAB}:{S_TAB+1}]')
    o('L_bulk_pc:')
    o(f's_add_u32 s{S_TAB}, s{S_TAB}, L_table-L_bulk_pc')
    o(f's_addc_u32 s{S_TAB+1}, s{S_TAB+1}, 0')
    n = len(tables[0][0])
    s_expr(o, 54, [(S_GRP, 32*n*4), (11, n*4)])
    s_add64(o, S_TAB, S_TAB, 's54')
    o(f's_load_dwordx2 s[{S_CURI}:{S_CURI+1}], s[{S_TAB}:{S_TAB+1}], 0')
    o(f's_lshl_b32 s{S_MA}, s{S_W}, 12')
    GX = 128; GW = 160; XD = 64
    def xloads():
        tid_expr(o, 40, [(0, 6, 32)])
        o(f'global_load_dwordx4 {vr(GW,4)}, v40, s[46:47]')
        o(f'global_load_dwordx4 {vr(GW+4,4)}, v40, s[46:47] offset:16')
        s_expr(o, 13, [(11, 4), (S_GRP, 1)])
        s_expr(o, 54, [(13, 16*2048), (S_W, 4*2048)])
        s_add64(o, 56, S_PX, 's54')
        for k in range(4):
            for h in range(2):
                o(f'global_load_dwordx4 {vr(GX+8*k+4*h,4)}, v40, s[56:57] offset:{(k&1)*2048 + h*16}')
            if k == 1: s_add64(o, 56, 56, 4096)
    o('s_waitcnt lgkmcnt(0)')
    o(f's_cmp_ge_u32 s{S_GRP}, 4')
    o('s_cbranch_scc1 L_bulk_nx')
    xloads()
    o('L_bulk_nx:')
    tid_expr(o, G_L16, [(0, 6, 16)])
    o(f'v_add_u32 v{G_L16B}, 4096, v{G_L16}')
    tid_expr(o, C_ANAT, [(0, 6, 16), (6, 2, 4*32768)])
    for i in range(1, 4): o(f'v_add_u32 v{C_ANAT+i}, {i*(32768-1024)}, v{C_ANAT}')
    tid_expr(o, C_AH, [(0, 6, 16), (6, 2, 4*112*1024)])
    tid_expr(o, C_RDB, [(0, 6, 16), (7, 1, 8192)])
    tid_expr(o, C_OUT, [(0, 4, 2048), (4, 1, 32), (5, 1, 16), (7, 1, 64*2048), (6, 1, 128)])
    b_off(o, C_B8, False, 8192)
    b_off(o, C_B7, False, 7168)
    b_off(o, C_B2, True, 2048)
    b_rd(o, C_BRN, False)
    b_rd(o, C_BRS, True)
    o(f'v_mov_b32 v{V_ONE}, 1')
    o(f'v_mov_b32 v{V_ZERO}, 0')
    o(f'v_mov_b32 v{V_SIG}, {cnt(C_DUMMY)}')
    tid_expr(o, V_GADDR, [(0, 4, 8), (7, 1, 512)], const=WS_G)
    tid_expr(o, V_LDEP, [(6, 2, 4)], const=131072)
    o(f'v_mov_b32 v{V_LDEP0}, 131072')
    o(f's_mov_b32 s{S_PF}, 0')
    o(f's_lshr_b32 s41, s{S_GRP}, 2')
    o('s_mov_b32 s42, -1')
    o('s_mov_b32 s43, 0')
    o(f'v_mov_b32 v{V_TA}, 0')
    o('s_mov_b32 s39, 0')
    o(f's_cmp_eq_u32 s{S_W}, 0')
    o('s_cselect_b32 s38, 1, 0')
    o('s_waitcnt lgkmcnt(0)')
    o(f's_mov_b64 s[48:49], s[{S_P1}:{S_P1+1}]')
    o(f's_mov_b64 s[8:9], s[{S_P1}:{S_P1+1}]')
    for r in (44, S_AB, S_BB, S_OUT, 50, 52, 56): o(f's_mov_b64 s[{r}:{r+1}], s[{S_PX}:{S_PX+1}]')
    for i in range(8): o(f'v_mov_b32 v{G_AOFF+i}, 0')
    o(f'v_mov_b32 v{V_DADDR}, 0')
    o(f's_cmp_ge_u32 s{S_GRP}, 4')
    o('s_cbranch_scc1 L_bulk_nx2')
    o('s_waitcnt vmcnt(0)')
    tid_expr(o, 24, [(0, 6, 512), (6, 2, 64)], const=131072)
    for k in range(4):
        for h in range(2): o(f'ds_write_b128 v24, {vr(GX+8*k+4*h,4)} offset:{h*256 + k*16}')
    o('s_waitcnt lgkmcnt(0)')
    o('s_barrier')
    tid_expr(o, 28, [(0, 6, 16), (6, 2, 8192)])
    o('v_add_u32 v24, 131072, v28')
    for k in range(8): o(f'ds_read_b128 {vr(XD+4*k,4)}, v24 offset:{k*1024}')
    s_expr(o, 54, [(13, 32768)], const=WS_XB)
    s_add64(o, 56, S_WS, 's54')
    o('v_add_u32 v29, 4096, v28')
    o('s_waitcnt lgkmcnt(0)')
    for k in range(8): o(f'global_store_dwordx4 v{28+(k>>2)}, {vr(XD+4*k,4)}, s[56:57] offset:{(k&3)*1024} sc1')
    WU = 104
    for k in range(8):
        o(f'v_lshlrev_b32 v{WU+2*k}, 16, v{GW+k}')
        o(f'v_and_b32 v{WU+2*k+1}, 0xffff0000, v{GW+k}')
    for r in range(4):
        A = 120 + 2*r
        for k in range(8):
            x = GX + 8*r + k
            o(f'v_lshlrev_b32 v24, 16, v{x}')
            o(f'v_and_b32 v25, 0xffff0000, v{x}')
            o(f'v_pk_mul_f32 v[24:25], v[24:25], {vr(WU+2*k,2)}')
            o('v_cvt_pk_bf16_f32 v26, v24, v25')
            if k == 0:
                o(f'v_lshlrev_b32 v{A}, 16, v26')
                o(f'v_and_b32 v{A+1}, 0xffff0000, v26')
            else:
                o('v_lshlrev_b32 v24, 16, v26')
                o('v_and_b32 v25, 0xffff0000, v26')
                o(f'v_pk_add_f32 {vr(A,2)}, {vr(A,2)}, v[24:25]')
        o(f'v_add_f32 v{A}, v{A}, v{A+1}')
    for dpp in ('quad_perm:[1,0,3,2]', 'quad_perm:[2,3,0,1]', 'row_half_mirror', 'row_mirror'):
        for r in range(4): o(f'v_add_f32_dpp v{120+2*r}, v{120+2*r}, v{120+2*r} {dpp} row_mask:0xf bank_mask:0xf')
    for sw in ('16', '32'):
        for r in range(4): o(f'v_mov_b32 v{121+2*r}, v{120+2*r}')
        for r in range(4): o(f'v_permlane{sw}_swap_b32 v{120+2*r}, v{121+2*r}')
        for r in range(4): o(f'v_add_f32 v{120+2*r}, v{120+2*r}, v{121+2*r}')
    o(f's_mov_b32 s54, {0xbfb8aa3b:#x}')
    for r in range(4):
        A = 120 + 2*r
        o(f'v_cvt_pk_bf16_f32 v{A}, v{A}, v{A}')
        o(f'v_and_b32 v{A}, 0xffff0000, v{A}')
        o(f'v_mul_f32 v{A}, s54, v{A}')
        o(f'v_exp_f32 v{A}, v{A}')
        o(f'v_add_f32 v{A}, 1.0, v{A}')
        o(f'v_rcp_f32 v{A}, v{A}')
        o(f'v_cvt_pk_bf16_f32 v{A}, v{A}, v{A}')
        o(f'v_and_b32 v{A}, 0xffff0000, v{A}')
        o(f'v_sub_f32 v{A+1}, 1.0, v{A}')
        o(f'v_cvt_pk_bf16_f32 v{A+1}, v{A+1}, v{A+1}')
        o(f'v_and_b32 v{A+1}, 0xffff0000, v{A+1}')
    s_expr(o, 54, [(13, 128), (S_W, 32)], const=WS_G)
    o('v_mov_b32 v24, s54')
    o('s_mov_b64 exec, 1')
    o(f'global_store_dwordx4 v24, v[120:123], s[{S_WS}:{S_WS+1}] sc1')
    o(f'global_store_dwordx4 v24, v[124:127], s[{S_WS}:{S_WS+1}] offset:16 sc1')
    o('s_mov_b64 exec, -1')
    o('s_lshr_b32 s54, s13, 4')
    s_expr(o, 54, [(54, 128)], const=cnt(C_X))
    o(f'v_mov_b32 v{V_SIG}, s54')
    o('s_mov_b32 s39, s38')
    tid_expr(o, G_T, [(0, 2, 4), (2, 1, 128)])
    poll_ge(o, 'L_bulk_tk', G_T, S_DBG, 32, D_TICK*4, sleep=1)
    o('L_bulk_nx2:')
    if stamp:
        s_expr(o, 54, [(S_GRP, 32*256), (11, 256)], const=WS_STAMP + 17*MB)
        o('v_mov_b32 v250, s54')
    o('L_bulk_item:')
    if stamp:
        o('s_memrealtime s[90:91]')
        o('s_waitcnt lgkmcnt(0)')
        o('s_sub_u32 s90, s90, s94')
        o('v_mov_b32 v248, s90')
        o(f'v_mov_b32 v249, s{S_CURI}')
        o('s_mov_b64 exec, 1')
        o('global_store_dwordx2 v250, v[248:249], s[4:5]')
        o('s_mov_b64 exec, -1')
        o('v_add_u32 v250, 8, v250')
    decode(o, S_CURI)
    o(f's_cmp_eq_u32 s{S_TY}, {T_END}')
    o('s_cbranch_scc1 L_bulk_end')
    o(f's_cmp_lg_u32 s{S_PF}, 0')
    o('s_cbranch_scc1 L_bulk_go')
    flush_sig(o)
    o(f's_bfe_u32 s54, s{S_CURI}, 0x6000e')
    o(f's_bfe_u32 s37, s{S_CURI}, 0x60014')
    s_expr(o, 54, [(54, 128)], const=WS_CNT)
    o(f'v_mov_b32 v{G_T+8}, s54')
    o(f's_cmp_ge_u32 s{S_TY}, {T_ATT}')
    o('s_cbranch_scc1 L_bulk_nb')
    o(f'global_load_dword v{V_DEP}, v{G_T+8}, s[{S_WS}:{S_WS+1}] sc1')
    set_dma(o, 'L_sd0', S_CURI, True)
    prologue_dma(o, S88, 'sc1', 'B')
    o('s_waitcnt vmcnt(16)')
    o(f'v_cmp_gt_u32 vcc, s37, v{V_DEP}')
    o('s_cbranch_vccz L_bulk_dep_ok')
    o('L_bulk_nb:')
    poll_ge(o, 'L_bulk_dep', G_T+8, S_WS, 's37', sleep=3)
    o(f's_cmp_ge_u32 s{S_TY}, {T_ATT}')
    o('s_cbranch_scc1 L_att')
    o('s_barrier')
    o(f's_cmp_ge_u32 s{S_TY}, {T_KS}')
    o('s_cbranch_scc1 L_bulk_first')
    prologue_dma(o, S88, 'sc1', 'A')
    o('s_branch L_bulk_p2')
    o('L_bulk_first:')
    prologue_dma(o, S48, 'sc1', 'A')
    o('L_bulk_p2:')
    o(f's_cmp_eq_u32 s{S_TY}, {T_DK}')
    o('s_cbranch_scc0 L_bulk_nw')
    o(f's_lshr_b32 s55, s{S_CT}, 3')
    o(f's_and_b32 s56, s{S_CT}, 7')
    o(f's_and_b32 s57, s{S_RB}, 3')
    s_expr(o, 54, [(55, 2*MB), (56, 256), (57, 256*2048)])
    tid_expr(o, G_T, [(1, 7, 2048), (0, 1, 128)], sregs=[54])
    o(f'global_load_dword v{V_TK}, v{G_T}, s[{S_PO}:{S_PO+1}]')
    o(f'v_add_u32 v{G_T}, {128*2048}, v{G_T}')
    o(f'global_load_dword v{V_TK}, v{G_T}, s[{S_PO}:{S_PO+1}]')
    o('s_waitcnt vmcnt(2)')
    o('s_branch L_bulk_go')
    o('L_bulk_nw:')
    o('s_waitcnt vmcnt(0)')
    o('L_bulk_go:')
    o(f's_bfe_u32 s54, s{S_NXTI}, 0x6000e')
    s_expr(o, 54, [(54, 128)], const=WS_CNT)
    o(f'v_mov_b32 v{V_DADDR}, s54')
    o(f's_lshr_b32 s{S_SIGN}, s{S_CURI}, 26')
    o(f's_lshr_b32 s55, s{S_W}, 1')
    o(f's_and_b32 s56, s{S_W}, 1')
    o(f's_sub_u32 s54, s{S_TY}, {T_DA}')
    o('s_cmp_lt_u32 s54, 3')
    o('s_cbranch_scc1 L_g_db')
    o(f'v_mov_b32 v{G_ARD}, v{C_RDB}')
    o(f's_mov_b32 s{S_CNT}, 6')
    o(f's_cmp_eq_u32 s{S_TY}, {T_UP}')
    o('s_cbranch_scc1 L_g_up')
    for i in range(8): o(f'v_mov_b32 v{G_BRD+i}, v{C_BRN+i}')
    o(f's_cmp_ge_u32 s{S_TY}, {T_KS}')
    o('s_cbranch_scc1 L_g_small')
    o(f's_cmp_eq_u32 s{S_TY}, {T_DB}')
    o('s_cbranch_scc0 L_g_qkv')
    o(f's_mov_b32 s{S_CNT}, 26')
    s_expr(o, 54, [(S_RB, 16*32*1024), (55, 8*32*1024), (S_CT, 8192), (56, 4096)], const=WS_T2)
    s_add64(o, S_OUT, S_WS, 's54')
    s_expr(o, 54, [(S_RB, 2048), (55, 512)])
    s_add64(o, 44, S_WS, 's54')
    o('s_branch L_g_tr')
    o('L_g_qkv:')
    o(f's_sub_u32 s57, s{S_TY}, 1')
    s_expr(o, 54, [(57, 16*MB), (S_RB, 8*SS), (55, 4*SS), (S_CT, 2*HS), (56, HS)])
    s_add64(o, S_OUT, S_WS, 's54')
    o(f's_cmp_eq_u32 s{S_TY}, {T_V}')
    o('s_cbranch_scc1 L_g_v')
    o('s_branch L_g_tr')
    o('L_g_up:')
    for i in range(8): o(f'v_mov_b32 v{G_BRD+i}, v{C_BRS+i}')
    s_expr(o, 54, [(S_RB, 16*112*1024), (55, 8*112*1024), (S_CT, 4096), (56, 2048)], const=WS_H)
    s_add64(o, S_OUT, S_WS, 's54')
    def hook(P):
        o(f's_mov_b32 s36, s{S_TY}')
        decode(o, S_NXTI)
        o(f's_mov_b32 s{S_PF}, 1')
        o(f's_sub_u32 s54, s{S_TY}, 1')
        o('s_cmp_lt_u32 s54, 6')
        o(f's_cbranch_scc0 {P}_no')
        o(f'ds_read_b128 {vr(G_T,4)}, v{V_LDEP0}')
        o(f's_bfe_u32 s55, s{S_NXTI}, 0x60014')
        o('s_waitcnt lgkmcnt(0)')
        o(f'v_min3_u32 v{G_T}, v{G_T}, v{G_T+1}, v{G_T+2}')
        o(f'v_min_u32 v{G_T}, v{G_T}, v{G_T+3}')
        o(f'v_readfirstlane_b32 s54, v{G_T}')
        o('s_cmp_ge_u32 s54, s55')
        o(f's_cbranch_scc1 {P}_pf')
        o(f'{P}_no:')
        o(f's_mov_b32 s{S_PF}, 0')
        o(f's_mov_b32 s{S_TY}, {T_Q}')
        o(f's_mov_b32 s{S_RB}, 0')
        o(f's_mov_b32 s{S_CT}, 0')
        o(f'{P}_pf:')
        set_dma(o, P + '_sd', S_NXTI)
        o(f's_cmp_eq_u32 s{S_PF}, 0')
        o(f's_cselect_b64 s[{S_AB}:{S_AB+1}], s[{S_PX}:{S_PX+1}], s[{S_AB}:{S_AB+1}]')
        o('s_cselect_b32 s54, 0, -1')
        o(f's_and_b32 s{S_BST}, s{S_BST}, s54')
        for i in range(8): o(f'v_and_b32 v{G_AOFF+i}, s54, v{G_AOFF+i}')
    def depload():
        return [f'global_load_dword v{V_DEP}, v{V_DADDR}, s[{S_WS}:{S_WS+1}] sc1']
    depw = [f'ds_write_b32 v{V_LDEP}, v{V_DEP}']
    def warm(P):
        o('s_add_u32 s42, s42, 1')
        o('s_mov_b32 s43, 0')
        o('s_cmp_ge_u32 s42, 2')
        o(f's_cbranch_scc1 {P}_nw')
        s_expr(o, 54, [(S_GRP, 32*57344), (11, 57344)])
        tid_expr(o, V_TA, [(0, 4, 128), (6, 2, 14336)], sregs=[54])
        o('s_cmp_eq_u32 s42, 0')
        o(f's_cselect_b64 s[48:49], s[{S_P1}:{S_P1+1}], s[{S_P2}:{S_P2+1}]')
        o(f's_cselect_b64 s[8:9], s[{S_P3}:{S_P3+1}], s[{S_P2}:{S_P2+1}]')
        o('s_mov_b32 s43, 7')
        o(f'{P}_nw:')
    def touch(second):
        _n[0] += 1
        adv = f'    s_sub_u32 s43, s43, 1\n    v_add_u32 v{V_TA}, 2048, v{V_TA}\n' if second else ''
        return [f's_cmp_eq_u32 s43, 0\n    s_cbranch_scc1 L_tch{_n[0]}\n    global_load_dword v{V_TK}, v{V_TA}, {"s[8:9]" if second else "s[48:49]"}\n{adv}L_tch{_n[0]}:\n    s_nop 0']
    def tk(k):
        if stamp: o(f's_memtime s[{80+2*k}:{81+2*k}]')
    def finish(nst):
        s_expr(o, 54, [(S_SIGN, 128)], const=WS_CNT)
        o(f'v_mov_b32 v{V_SIG}, s54')
        o(f's_cmp_eq_u32 s{S_SIGN}, {C_DUMMY}')
        o('s_cselect_b32 s39, 0, s38')
        o(f's_waitcnt vmcnt({nst})')
        if stamp:
            tk(4)
            o('s_waitcnt lgkmcnt(0)')
            for k in range(4):
                o(f's_sub_u32 s54, s{82+2*k}, s{80+2*k}')
                o(f'v_mov_b32 v{G_T+k}, s54')
            o('v_lshlrev_b32 v251, 1, v250')
            o(f'v_subrev_u32 v251, {WS_STAMP + 16*MB + 16}, v251')
            o('s_mov_b64 exec, 1')
            o(f'global_store_dwordx4 v251, {vr(G_T,4)}, s[4:5]')
            o('s_mov_b64 exec, -1')
        o('s_branch L_bulk_adv')
    def run(P, sh, tr, asc, pre=None):
        tk(0)
        body_first(o, sh, tr, asc, [SIG()] + depload())
        tk(1)
        T_ = (lambda s: touch(s)) if (sh is S88 and gemm2.EXP.get('btouch')) else (lambda s: [])
        body_mid(o, P, sh, tr, asc, depw + T_(False), depload() + T_(True), T_(True), T_(False))
        tk(2)
        if pre: pre()
        hook(P + '_h')
        body_last(o, sh, tr)
        tk(3)
    o('L_g_tr:')
    run('L_g_tr', S88, True, 'sc1')
    o(f's_cmp_eq_u32 s36, {T_UP}')
    o('s_cbranch_scc1 L_e_up')
    o(f's_cmp_eq_u32 s36, {T_DB}')
    o('s_cbranch_scc1 L_e_db')
    finish(epi_blocked(o, 'qk', S_OUT))
    o('L_e_up:')
    finish(epi_up(o, S_OUT))
    o('L_e_db:')
    for mt in range(8): o(f'global_load_dwordx2 {vr(160+2*mt,2)}, v{V_GADDR}, s[44:45] offset:{mt*128} sc1')
    o('s_waitcnt vmcnt(0)')
    finish(epi_db(o, S_OUT, 160))
    o('L_g_v:')
    run('L_g_v', S88, False, 'sc1')
    finish(epi_blocked(o, 'v', S_OUT))
    o('L_g_small:')
    o(f's_sub_u32 s57, s{S_TY}, {T_KS - 1}')
    s_expr(o, 54, [(57, 16*MB), (S_RB, 4*SS), (55, 2*SS), (S_CT, 2*HS), (56, HS)])
    s_add64(o, S_OUT, S_WS, 's54')
    o(f's_cmp_eq_u32 s{S_TY}, {T_VS}')
    o('s_cbranch_scc1 L_g_vs')
    run('L_g_ks', S48, True, 'sc1')
    finish(epi_blocked(o, 'qk', S_OUT, S48))
    o('L_g_vs:')
    run('L_g_vs', S48, False, 'sc1')
    finish(epi_blocked(o, 'v', S_OUT, S48))
    o('L_g_db:')
    o(f'v_mov_b32 v{G_ARD}, v{C_RDB}')
    for i in range(8): o(f'v_mov_b32 v{G_BRD+i}, v{C_BRS+i}')
    o(f's_lshr_b32 s13, s{S_CT}, 3')
    o(f's_and_b32 s12, s{S_CT}, 7')
    s_expr(o, 54, [(S_RB, 8*32*1024), (55, 4*32*1024), (12, 4096), (56, 2048), (13, 32*1024)], const=WS_T2)
    s_add64(o, S_OUT, S_WS, 's54')
    s_expr(o, 54, [(S_RB, 128*2048), (12, 256), (13, 16*2048)])
    s_add64(o, 44, S_POUT, 's54')
    s_expr(o, 15, [(S_RB, 8), (12, 1)])
    o(f's_cmp_eq_u32 s{S_TY}, {T_DK}')
    o('s_cselect_b32 s54, 2, 14')
    o(f's_mov_b32 s{S_CNT}, s54')
    s_expr(o, 54, [(S_RB, 1024), (13, 128)])
    s_add64(o, 46, S_WS, 's54')
    for mt in range(4): o(f'global_load_dwordx2 {vr(V_GV+2*mt,2)}, v{V_GADDR}, s[46:47] offset:{mt*128} sc1')
    def t2load():
        o(f's_cmp_eq_u32 s{S_TY}, {T_DA}')
        o('s_cbranch_scc0 L_g_d3')
        o(f's_lshr_b32 s54, s{S_RB}, 1')
        s_expr(o, 54, [(54, 128)], const=cnt(C_B))
        o(f'v_mov_b32 v{G_T}, s54')
        poll_ge(o, 'L_bulk_dep2', G_T, S_WS, 4, allw=True, sleep=4)
        for mt in range(4):
            for q in range(2): o(f'global_load_dwordx4 {ar(64+8*mt+4*q,4)}, v{G_L16}, s[{S_OUT}:{S_OUT+1}] offset:{q*1024} sc1')
            if mt < 3: s_add64(o, S_OUT, S_OUT, 32*1024)
        o('L_g_d3:')
    run('L_g_d', S44, True, 'sc1', t2load)
    o(f's_cmp_eq_u32 s36, {T_DA}')
    o('s_cbranch_scc1 L_e_da')
    o('s_branch L_e_dk')
    o('L_e_da:')
    o('s_waitcnt vmcnt(32)')
    finish(epi_da(o, S_OUT, V_GV, 44, C_OUT))
    o('L_e_dk:')
    s_expr(o, 54, [(15, 262144), (S_W, 4096)], const=WS_PS)
    s_add64(o, 46, S_WS, 's54')
    for r in range(1, 4):
        o(f's_add_u32 s54, s13, {r}')
        o('s_and_b32 s54, s54, 3')
        s_expr(o, 54, [(54, 65536)], const=(r-1)*16384)
        s_add64(o, 50, 46, 's54')
        for k in range(4): o(f'global_store_dwordx4 v{G_L16}, {ar(16*r+4*k,4)}, s[50:51] offset:{k*1024} sc1')
    s_expr(o, 54, [(15, 128)], const=cnt(C_TILE))
    o(f'v_mov_b32 v{V_SIG}, s54')
    o('s_mov_b32 s39, s38')
    flush_sig(o)
    o('s_lshr_b32 s54, s15, 4')
    s_expr(o, 54, [(54, 128)], const=cnt(C_B))
    o(f'v_mov_b32 v{G_T}, s54')
    poll_ge(o, 'L_dk_b', G_T, S_WS, 4, sleep=2)
    poll_ge(o, 'L_dk_w', V_SIG, S_WS, 4, sleep=1)
    o('s_barrier')
    o('s_lshl_b32 s54, s13, 16')
    s_add64(o, 46, 46, 's54')
    P0 = G_FA + 64
    for q in range(2): o(f'global_load_dwordx4 {ar(64+4*q,4)}, v{G_L16}, s[{S_OUT}:{S_OUT+1}] offset:{q*1024} sc1')
    for p in range(3):
        for k in range(4): o(f'global_load_dwordx4 {vr(P0+16+16*p+4*k,4)}, v{G_L16}, s[46:47] offset:{k*1024} sc1')
        if p < 2: s_add64(o, 46, 46, 16384)
    for i in range(16): o(f'v_accvgpr_read_b32 v{P0+i}, a{i}')
    o('s_waitcnt vmcnt(8)')
    for i in range(8): o(f'v_pk_add_f32 {vr(P0+2*i,2)}, {vr(P0+2*i,2)}, {vr(P0+16+2*i,2)}')
    o('s_waitcnt vmcnt(0)')
    for i in range(8): o(f'v_pk_add_f32 {vr(P0+32+2*i,2)}, {vr(P0+32+2*i,2)}, {vr(P0+48+2*i,2)}')
    for i in range(8): o(f'v_pk_add_f32 {vr(P0+2*i,2)}, {vr(P0+2*i,2)}, {vr(P0+32+2*i,2)}')
    for i in range(16): o(f'v_accvgpr_write_b32 a{i}, v{P0+i}')
    finish(epi_da(o, S_OUT, V_GV, 44, C_OUT, 1))
    o('L_bulk_adv:')
    o('s_cmp_lg_u32 s41, 0')
    o('s_cbranch_scc1 L_bulk_adv2')
    o('s_mov_b32 s41, 1')
    flush_sig(o)
    o('L_bulk_adv2:')
    warm('L_w')
    o('L_bulk_adv3:')
    o(f's_mov_b32 s{S_CURI}, s{S_NXTI}')
    s_add64(o, S_TAB, S_TAB, 4)
    o(f's_load_dword s{S_NXTI}, s[{S_TAB}:{S_TAB+1}], 4')
    o('s_waitcnt lgkmcnt(0)')
    o('s_branch L_bulk_item')
    gen_att(o)
    o('L_bulk_bail:')
    o(f'global_atomic_add v{V_ZERO}, v{V_ONE}, s[{S_DBG}:{S_DBG+1}] offset:{D_BAIL*4}')
    o('s_endpgm')
    o('L_bulk_end:')
    flush_sig(o)
    if gemm2.EXP.get('diag'): diag(o, 0)
    o('s_waitcnt vmcnt(0)')
    o('s_endpgm')

def gen_att(o):
    T = G_T
    o('L_att:')
    o(f's_cmp_eq_u32 s{S_TY}, {T_WARM}')
    o('s_cbranch_scc0 L_att0')
    s_expr(o, 54, [(S_CT, 229376)])
    tid_expr(o, T, [(0, 8, 128)], sregs=[54])
    for k in range(7):
        o(f'global_load_dword v{V_TK}, v{T}, s[{S_P2}:{S_P2+1}]')
        if k < 6: o(f'v_add_u32 v{T}, 32768, v{T}')
    o(f's_mov_b32 s{S_PF}, 0')
    o('s_branch L_bulk_adv3')
    o('L_att0:')
    o(f's_lshr_b32 s13, s{S_CT}, 3')
    s_expr(o, 13, [(13, 1), (S_RB, 4)])
    o(f's_and_b32 s36, s{S_CT}, 7')
    s_expr(o, 36, [(36, 4), (S_W, 1)])
    o('s_barrier')
    o('s_lshr_b32 s54, s36, 1')
    s_expr(o, 54, [(54, 1024)], const=WS_PROG)
    tid_expr(o, 51, [(0, 3, 128)], sregs=[54])
    o('s_and_b32 s37, s13, 0xf8')
    o('s_add_u32 s37, s37, 1')
    poll_ge(o, 'L_att_p', 51, S_WS, 's37', allw=True)
    o('s_add_u32 s37, s13, 1')
    s_expr(o, 54, [(13, SS), (36, HS)])
    s_add64(o, 44, S_WS, 's54')
    s_add64(o, 46, 44, WS_K)
    s_add64(o, 16, 44, WS_VT)
    s_expr(o, 54, [(13, SS//4), (36, HS//4)], const=WS_KM)
    s_add64(o, 50, S_WS, 's54')
    s_add64(o, 52, 50, WS_VMT - WS_KM)
    s_expr(o, 54, [(13, 2*128*1024), (36, 4096)], const=WS_O)
    s_add64(o, S_OUT, S_WS, 's54')
    VKM = 60; VVM = 61; MSK = 56; SC = 62; ONES = 52
    tid_expr(o, VKM, [(4, 2, 128), (2, 2, 32), (0, 1, 16)])
    tid_expr(o, VVM, [(0, 6, 4)])
    tid_expr(o, T, [(4, 2, 4)])
    o(f'v_and_b32 v{T+1}, 15, v0')
    o(f'v_mov_b32 v{T+2}, 0xff800000')
    for i in range(4):
        o(f'v_add_u32 v{T+3}, {i}, v{T}')
        o(f'v_cmp_le_u32 vcc, v{T+3}, v{T+1}')
        o(f'v_cndmask_b32 v{MSK+i}, v{T+2}, 0, vcc')
        o(f'v_mov_b32 v{ONES+i}, 0x3f803f80')
    o(f'v_mov_b32 v{SC}, {SCALE_LOG2E:#x}')
    o(f'v_mov_b32 v{SC+1}, {SCALE_LOG2E:#x}')
    for b in range(2):
        for et in range(8): o(f'v_accvgpr_write_b32 a{128*b + 112 + 2*et + 1}, 0')
    NL = 8 + 8 + 4 + 8 + 8
    def loads(b, part=3):
        B = 128*b
        if part != 3:
            if part == 1:
                for (base, sb) in ((0, 44), (32, 46), (64, 16)):
                    for k in range(8): o(f'global_load_dwordx4 {ar(B+base+4*k,4)}, v{G_L16+(k>>2)}, s[{sb}:{sb+1}] offset:{(k&3)*1024} sc1')
                for r in (44, 46, 16): s_add64(o, r, r, SS)
            else:
                for k in range(4): o(f'global_load_dwordx4 {ar(B+96+4*k,4)}, v{VKM}, s[50:51] offset:{k*512} sc1')
                for k in range(8): o(f'global_load_dword a{B+112+2*k}, v{VVM}, s[52:53] offset:{k*256} sc1')
                for r in (50, 52): s_add64(o, r, r, SS//4)
            return
        for k in range(8): o(f'global_load_dwordx4 {ar(B+4*k,4)}, v{G_L16+(k>>2)}, s[44:45] offset:{(k&3)*1024} sc1')
        for k in range(8): o(f'global_load_dwordx4 {ar(B+32+4*k,4)}, v{G_L16+(k>>2)}, s[46:47] offset:{(k&3)*1024} sc1')
        for k in range(4): o(f'global_load_dwordx4 {ar(B+96+4*k,4)}, v{VKM}, s[50:51] offset:{k*512} sc1')
        for k in range(8): o(f'global_load_dwordx4 {ar(B+64+4*k,4)}, v{G_L16+(k>>2)}, s[16:17] offset:{(k&3)*1024} sc1')
        for k in range(8): o(f'global_load_dword a{B+112+2*k}, v{VVM}, s[52:53] offset:{k*256} sc1')
        for r in (44, 46, 16): s_add64(o, r, r, SS)
        for r in (50, 52): s_add64(o, r, r, SS//4)
    S = 64
    Pp = 84
    Lr = 96
    O = 128
    D = 104
    def compute(b, st, more):
        B = 128*b
        Q = lambda t, e: ar(B + 4*(t*4+e), 4)
        K = lambda t, e: ar(B + 32 + 4*(t*4+e), 4)
        V = lambda et, n=4: ar(B + 64 + 4*et, n)
        KM = lambda e: ar(B + 96 + 4*e, 4)
        VM = lambda et: ar(B + 112 + 2*et, 2)
        o(f's_waitcnt vmcnt({st + 16})')
        if more: loads(b ^ 1)
        for e in range(4):
            for (d, a, q, c0) in ((S, K(0, e), Q(0, e), vr(MSK, 4)), (S+4, KM(e), Q(0, e), '0'), (S+8, K(0, e), Q(1, e), '0'), (S+12, K(1, e), Q(1, e), vr(MSK, 4)), (S+16, KM(e), Q(1, e), '0')):
                o(f'v_mfma_f32_16x16x32_bf16 {vr(d,4)}, {a}, {q}, {c0 if e == 0 else vr(d,4)}')
        for tq in range(2):
            vals = [S, S+1, S+2, S+3, S+4, S+5] if tq == 0 else list(range(S+8, S+18))
            m = T + 2*tq
            o(f'v_max3_f32 v{m}, v{vals[0]}, v{vals[1]}, v{vals[2]}')
            for i in range(3, len(vals)-1, 2): o(f'v_max3_f32 v{m}, v{m}, v{vals[i]}, v{vals[i+1]}')
            o(f'v_max_f32 v{m}, v{m}, v{vals[-1]}')
        for sw in ('32', '16'):
            for tq in range(2): o(f'v_mov_b32 v{T+2*tq+1}, v{T+2*tq}')
            for tq in range(2): o(f'v_permlane{sw}_swap_b32 v{T+2*tq}, v{T+2*tq+1}')
            for tq in range(2): o(f'v_max_f32 v{T+2*tq}, v{T+2*tq}, v{T+2*tq+1}')
        for tq in range(2): o(f'v_mul_f32 v{T+2*tq}, v{SC}, v{T+2*tq}')
        for tq in range(2):
            prs = [S, S+2, S+4] if tq == 0 else [S+8, S+10, S+12, S+14, S+16]
            dst = [Pp, Pp+1, Pp+2] if tq == 0 else [Pp+4, Pp+5, Pp+6, Pp+7, Pp+8]
            for r in prs: o(f'v_pk_fma_f32 {vr(r,2)}, {vr(r,2)}, {vr(SC,2)}, {vr(T+2*tq,2)} op_sel_hi:[1,1,0] neg_lo:[0,0,1] neg_hi:[0,0,1]')
            for r in prs:
                o(f'v_exp_f32 v{r}, v{r}'); o(f'v_exp_f32 v{r+1}, v{r+1}')
            for r, d in zip(prs, dst): o(f'v_cvt_pk_bf16_f32 v{d}, v{r}, v{r+1}')
        o(f's_waitcnt vmcnt({max(0, st + (NL if more else 0))})')
        o(f'v_mfma_f32_16x16x32_bf16 {vr(Lr,4)}, {vr(ONES,4)}, {vr(Pp,4)}, 0')
        o(f'v_mfma_f32_16x16x32_bf16 {vr(Lr+4,4)}, {vr(ONES,4)}, {vr(Pp+4,4)}, 0')
        for et in range(8):
            o(f'v_mfma_f32_16x16x16_bf16 {vr(O+4*et,4)}, {V(et,2)}, {vr(Pp,2)}, 0')
        o(f'v_mfma_f32_16x16x16_bf16 {vr(Lr+4,4)}, {vr(ONES,2)}, {vr(Pp+8,2)}, {vr(Lr+4,4)}')
        for et in range(8):
            o(f'v_mfma_f32_16x16x16_bf16 {vr(O+4*et,4)}, {VM(et)}, {vr(Pp+2,2)}, {vr(O+4*et,4)}')
        o(f'v_rcp_f32 v{T}, v{Lr}')
        o(f'v_rcp_f32 v{T+2}, v{Lr+4}')
        for et in range(8):
            o(f'v_mfma_f32_16x16x32_bf16 {vr(O+32+4*et,4)}, {V(et)}, {vr(Pp+4,4)}, 0')
        for et in range(8):
            o(f'v_mfma_f32_16x16x16_bf16 {vr(O+32+4*et,4)}, {VM(et)}, {vr(Pp+8,2)}, {vr(O+32+4*et,4)}')
        for tq in range(2):
            for q in range(4):
                r = O + 32*tq + 8*q
                for i in range(4): o(f'v_pk_mul_f32 {vr(r+2*i,2)}, {vr(r+2*i,2)}, {vr(T+2*tq,2)} op_sel_hi:[1,0]')
                pack8(o, D + 4*q, r)
                o(f'global_store_dwordx4 v{G_L16}, {vr(D+4*q,4)}, s[{S_OUT}:{S_OUT+1}] offset:{q*1024} sc1')
            s_add64(o, S_OUT, S_OUT, 128*1024)
    o(f'v_mov_b32 v{Pp+3}, 0')
    o(f'v_mov_b32 v{Pp+9}, 0')
    o('s_add_u32 s12, s37, 1')
    o(f's_cmp_eq_u32 s{S_TY}, {T_AT1}')
    o('s_cbranch_scc1 L_att_sl')
    o('s_add_u32 s54, s37, 3')
    o(f'v_cmp_gt_u32 vcc, s54, v{V_DEP}')
    o('s_cbranch_vccnz L_att_slow')
    loads(0)
    compute(0, 0, True)
    compute(1, 8, True)
    compute(0, 8, True)
    compute(1, 8, False)
    o('s_branch L_att_end')
    o('L_att_slow:')
    o('s_add_u32 s12, s37, 4')
    o('L_att_sl:')
    loads(0, 1)
    poll_ge(o, 'L_att_p2', 51, S_WS, 's37', allw=True, sleep=3)
    loads(0, 2)
    compute(0, -8, False)
    o('s_add_u32 s37, s37, 1')
    o('s_cmp_lt_u32 s37, s12')
    o('s_cbranch_scc1 L_att_sl')
    o('L_att_end:')
    o(f's_lshr_b32 s54, s{S_CURI}, 26')
    s_expr(o, 54, [(54, 128)], const=WS_CNT)
    o(f'v_mov_b32 v{V_SIG}, s54')
    o('s_mov_b32 s39, s38')
    o(f's_mov_b32 s{S_PF}, 0')
    o('s_branch L_bulk_adv3')

def emit_table(o, tables):
    o.L.append('.p2align 4')
    o.L.append('.type L_table,@object')
    o('L_table:')
    for g in tables:
        for lst in g:
            o.L.append('    .long ' + ', '.join(hex(x) for x in lst))
```

```python
from layout import *
from util import *

SCALE_LOG2E = f2u(128 ** -0.5 * math.log2(math.e))
RS = 144; RED_P = 16 * RS; RO_P = 1280
L_RED = 0; L_RV = 9216; L_RO = 13312; L_VMO = 18432; L_KL = 20480
L_XB = 32768; L_PB = 0
(V_ARD, V_ORD, V_QKWR, V_QKRD, V_OWR, V_CWQ, V_CRD, V_CRD2, V_CRD3, V_MWR, V_LREDW, V_LREDW1, V_LREDR, V_LREDR2,
 V_LRVW, V_LRVR, V_LROW, V_LROR, V_LROR2, V_LVMO, V_IDX, V_LROQ, V_KMWR) = range(1, 24)
V_T = 24; V_STP = 27; V_PROG = 28; V_LVMO2 = 29; V_L16 = 30
V_SENT = 32; V_LKL = 34; V_LVL = 35; V_ONES = 36
V_A = 40; V_D = 56; V_E = 80; V_R = 88; V_QK = 104; V_S = 120; V_C = 120; V_P = 132; V_PUB = 132; V_SC = 138
V_O = 140; V_L = 144; V_VM = 148; V_KD = 150; V_VD = 151; V_VX = 152; V_KMW2 = 156; V_KD2 = 157; V_VD2 = 158; V_KX = 160
S_WS = 4; S_DBG = 6; S_X = 10; S_J = 11; S_HEAD = 12; S_ES = 13; S_W = 14; S_STEP = 15
S_CUR = 16; S_NXT = 18; S_RST = 20; S_KB = 22; S_VB = 24; S_KM = 26; S_VM = 28; S_MODE = 30
S_MQ = 32; S_SCALE = 36; S_NOSENT = 37; S_BUD = 40; S_RING = 42; S_XB = 44; S_CC = 62; S_JO = 46; S_EK = 47; S_TK = 48; S_TV = 50

def gen_chain(o, nsteps=64, stamp=False, DLY=None):
    D0 = dict(a=1, b=0, o=0, c=9, pa=14, po=14, pb=8, d3=8)
    D0.update(DLY or {}); DLY = D0
    stamps = stamp and not DLY.get('noflush')
    def st(k):
        if stamps: o(f"{'s_memrealtime' if DLY.get('rt') else 's_memtime'} s[{64+2*k}:{65+2*k}]")
    def flush():
        if not stamps: return
        o('s_waitcnt lgkmcnt(0)')
        for k in range(12): o(f'v_writelane_b32 v31, s{64+2*k}, {k}')
        o('s_mov_b64 exec, 0xffff')
        o(f'global_store_dword v{V_STP}, v31, s[4:5]')
        o('s_mov_b64 exec, -1')
        o(f'v_add_u32 v{V_STP}, 64, v{V_STP}')
    def nops(n):
        for _ in range(n // 2): o('s_nop 15')
        if n & 1: o('s_nop 7')
    def emit(l):
        for i in l: o(i)
    X = lambda *a, **k: tid_expr(o, *a, **k)
    def ps(k):
        if stamp:
            o('s_memrealtime s[80:81]')
            o('s_waitcnt lgkmcnt(0)')
            o(f'v_writelane_b32 v127, s80, {k}')
    LANE16 = (0, 6, 16)

    o('L_chain:')
    for reg, nm in ((64, 'Wq'), (66, 'Wk'), (68, 'Wv'), (70, 'Wo'), (72, 'mem0'), ):
        o(f's_load_dwordx2 s[{reg}:{reg+1}], s[0:1], {KA[nm]}')
    o(f's_lshr_b32 s{S_HEAD}, s{S_J}, 2')
    o(f's_lshl_b32 s54, s{S_X}, 3')
    o(f's_add_u32 s{S_HEAD}, s{S_HEAD}, s54')
    o(f's_and_b32 s{S_ES}, s{S_J}, 3')
    o(f's_mov_b32 s{S_BUD}, 0x200000')
    o(f's_xor_b32 s{S_JO}, s{S_J}, 8')
    o(f's_xor_b32 s{S_EK}, s{S_ES}, 2')
    WQ, WO, WT, TRN, TRO = 128, 129, 130, 131, 132
    s_expr(o, 54, [(S_HEAD, 256), (S_ES, 64)])
    X(WQ, [(6, 2, 1 << 21), (2, 4, 8192), (0, 2, 16)], sregs=[54])
    o(f'v_xor_b32 v126, 256, v{WQ}')
    o(f'v_xor_b32 v125, 128, v{WQ}')
    s_expr(o, 54, [(S_X, 1 << 21), (S_JO, 64)])
    X(WO, [(6, 2, 1 << 19), (2, 4, 2048), (0, 2, 16)], sregs=[54])
    s_expr(o, 76, [(S_W, 16384)], const=L_XB)
    o('s_waitcnt lgkmcnt(0)')
    def wdma(sb, va, step, sbase, off):
        o(f'v_mov_b32 v{WT}, v{va}')
        for it in range(16):
            o(f's_add_u32 m0, s{sbase}, {off + it*1024}')
            o('s_nop 0')
            o(f'global_load_lds_dwordx4 v{WT}, s[{sb}:{sb+1}]')
            if it < 15: o(f'v_add_u32 v{WT}, {step}, v{WT}')
    ps(0)
    MATS = dict(k=(66, 126, 16*8192, 2, True), v=(68, WQ, 16*8192, 4, True), q=(64, 125, 16*8192, 0, True), o=(70, WO, 16*2048, 6, False))
    ORD = DLY.get('ord', 'kvqo')
    def wl(i): m = MATS[ORD[i]]; wdma(m[0], m[1], m[2], 76, 65536*(i & 1))
    def wr(i):
        m = MATS[ORD[i]]; wread(m[3], (TRN + 2*(i & 1)) if m[4] else (TRO if i & 1 else 134), 0, m[4])
    wl(0)
    ps(1)
    X(V_L16, [LANE16])
    s_expr(o, 54, [(S_X, 16384)])
    X(V_ARD, [(6, 2, 4096), LANE16], const=R_MEM, sregs=[54])
    o(f'v_add_u32 v{V_ORD}, {R_OB - R_MEM}, v{V_ARD}')
    s_expr(o, 55, [(S_HEAD, 4096)], const=R_QK)
    o(f'v_add_u32 v{V_QKRD}, s55, v{V_L16}')
    s_expr(o, 56, [(S_ES, 1024)])
    X(V_QKWR, [(0, 8, 4)], sregs=[55, 56])
    X(24, [(3, 1, 2048)], const=2048)
    o(f'v_xor_b32 v{V_QKWR}, v24, v{V_QKWR}')
    s_expr(o, 54, [(S_X, 16384), (S_J, 512)])
    X(V_OWR, [(6, 1, 256), (0, 4, 16), (5, 1, 32), (4, 1, 8)], const=R_OB, sregs=[54])
    s_expr(o, 54, [(S_X, 16384), (S_JO, 512)])
    X(V_MWR, [(0, 6, 8)], const=R_MEM, sregs=[54])
    o(f's_lshr_b32 s54, s{S_J}, 1')
    o(f's_and_b32 s55, s{S_J}, 1')
    s_expr(o, 56, [(54, 16384), (55, 4096), (S_X, 1024)], const=R_C)
    X(V_CWQ, [(0, 8, 4)], sregs=[56])
    o(f'v_add_u32 v{V_CRD3}, s56, v{V_L16}')
    o(f'v_xor_b32 v{V_CRD}, 1024, v{V_CRD3}')
    o(f'v_xor_b32 v{V_CRD2}, 2048, v{V_CRD3}')
    o(f'v_xor_b32 v{V_CRD3}, 3072, v{V_CRD3}')
    X(V_LREDW, [(6, 2, RED_P), (4, 2, 2*RS), (0, 4, 4)], const=L_RED)
    o(f'v_add_u32 v{V_LREDW1}, {8*RS}, v{V_LREDW}')
    X(V_LREDR, [(3, 1, 8*RS), (4, 2, 2*RS), (2, 1, RS), (1, 1, 64), (6, 2, 16), (0, 1, 8)], const=L_RED)
    X(V_LREDR2, [(2, 3, RS), (1, 1, 64), (5, 1, 16), (0, 1, 8)], const=L_RED + 8*RS)
    s_expr(o, 54, [(S_HEAD, HS//4), (S_ES, 512)])
    X(V_KMWR, [(0, 6, 4)], sregs=[54])
    o(f'v_xor_b32 v{V_KMW2}, {HS//4}, v{V_KMWR}')
    X(V_LVMO2, [(0, 6, 4)], const=L_VMO)
    X(V_LRVW, [(6, 2, 1024), (0, 6, 8)], const=L_RV)
    X(V_LRVR, [(6, 1, 512), (0, 6, 8)], const=L_RV)
    X(V_LVMO, [(0, 7, 4)], const=L_VMO)
    X(V_LROW, [(6, 2, RO_P), (4, 2, 2*RS), (0, 4, 4)], const=L_RO)
    X(V_LROR, [(3, 2, 2*RS), (1, 1, RS), (5, 1, 64), (0, 1, 32), (2, 1, 8)], const=L_RO)
    o(f'v_add_u32 v{V_LROR2}, {2*RO_P}, v{V_LROR}')
    X(V_LROQ, [(5, 2, 2*RS), (3, 1, RS), (7, 1, 64), (2, 1, 32), (4, 1, 8), (0, 1, 4), (1, 1, 16)], const=L_RO)
    s_expr(o, 54, [(S_HEAD, HS)])
    o(f'v_add_u32 v{V_KD}, s54, v{V_L16}')
    s_expr(o, 55, [(S_ES, 2048)])
    o(f'v_add_u32 v{V_VD}, s55, v{V_KD}')
    o(f'v_add_u32 v{V_LKL}, {L_KL}, v{V_L16}')
    X(V_KD2, [(6, 2, 2048)])
    o(f'v_add_u32 v{V_KD2}, v{V_KD2}, v{V_KD}')
    X(V_VD2, [(6, 1, 1024)], const=WS_VT - WS_K)
    o(f'v_add_u32 v{V_VD2}, v{V_VD2}, v{V_VD}')
    s_expr(o, 52, [(S_W, 2048)], const=L_KL)
    o(f's_and_b32 s53, s{S_W}, 1')
    s_expr(o, 53, [(53, 1024)], const=L_KL + 8192)
    X(V_LVL, [(6, 1, 1024), LANE16], const=L_KL + 8192)
    s_expr(o, 54, [(S_HEAD, 512), (S_ES, 128)], const=WS_PROG)
    o(f'v_mov_b32 v{V_PROG}, s54')
    o('v_bfe_u32 v24, v0, 1, 1')
    o('v_cmp_eq_u32 vcc, 0, v24')
    o('v_mov_b32 v24, 0xeeee')
    o('v_mov_b32 v25, 0x4444')
    o(f'v_cndmask_b32 v{V_IDX}, v24, v25, vcc')
    for i in range(2): o(f'v_mov_b32 v{V_SENT+i}, -1')
    for i in range(4): o(f'v_mov_b32 v{V_ONES+i}, 0x3f803f80')
    o(f's_mov_b32 s{S_MQ}, 0x33333333')
    o(f's_mov_b32 s{S_MQ+1}, 0x33333333')
    o(f's_mov_b32 s{S_SCALE}, {SCALE_LOG2E:#x}')
    o(f's_mov_b32 s{S_NOSENT}, 0xfffffffe')
    o(f'v_mov_b32 v{V_SC}, s{S_SCALE}')
    o(f'v_mov_b32 v{V_SC+1}, s{S_SCALE}')
    o(f'v_mov_b32 v{V_VM}, 0')
    s_add64(o, S_RING, S_WS, WS_RING)
    X(TRN, [(4, 2, 8*64), (2, 2, 64), (0, 2, 8)])
    X(TRO, [(5, 1, 16*64), (4, 1, 4*64), (2, 1, 64), (3, 1, 8*64), (0, 2, 8)], const=65536, sregs=[76])
    o(f'v_add_u32 v{TRN}, s76, v{TRN}')
    o(f'v_add_u32 v{TRN+2}, 65536, v{TRN}')
    o(f'v_subrev_u32 v134, 65536, v{TRO}')
    def wread(T0, addr, off, natural):
        for t in range(2):
            for c in range(4):
                for m in range(4):
                    row = 64*c + 32*(m >> 1) + (4 if natural else 2)*(m & 1)
                    o(f'ds_read_b64_tr_b16 {ar(((T0+t)*4+c)*8 + 2*m, 2)}, v{addr} offset:{off + row*64 + t*32}')
                o('s_waitcnt lgkmcnt(8)')
    ps(4)
    wl(1)
    o('s_waitcnt vmcnt(16)')
    ps(5)
    wr(0)
    o('s_waitcnt lgkmcnt(0)')
    wl(2)
    o('s_waitcnt vmcnt(16)')
    ps(6)
    wr(1)
    o('s_waitcnt vmcnt(16) lgkmcnt(0)')
    wl(3)
    o('s_waitcnt vmcnt(16)')
    ps(7)
    o('v_mov_b32 v124, 127')
    o(f's_cmp_eq_u32 s{S_W}, 1')
    o('s_cbranch_scc0 L_ci_v')
    o('v_mov_b32 v24, 1')
    o('s_mov_b64 exec, 1')
    o(f'global_atomic_add v124, v{V_VM}, v24, s[6:7] offset:{D_DEC*4} sc0')
    o('s_getreg_b32 s54, hwreg(HW_REG_XCC_ID)')
    o('s_and_b32 s54, s54, 7')
    o('s_lshl_b32 s54, 1, s54')
    o(f's_lshl_b32 s55, s{S_X}, 2')
    o('v_mov_b32 v25, s54')
    o('v_mov_b32 v26, s55')
    o(f'global_atomic_or v26, v25, s[6:7] offset:{D_MASK*4}')
    o('s_mov_b64 exec, -1')
    o('L_ci_v:')
    wr(2)
    X(24, [(2, 2, 4096), (0, 1, 2048), (6, 2, 512), (4, 2, 32), (1, 1, 4)])
    for c in range(4):
        for q in range(4): o(f'global_load_dword v{V_A+4*c+q}, v24, s[72:73] offset:{c*128 + q*8}')
    o('s_waitcnt vmcnt(16)')
    ps(8)
    wr(3)
    def sum4(R):
        for h in range(2):
            o(f'v_pk_add_f32 {vr(R+2*h,2)}, {vr(R+2*h,2)}, {vr(R+4+2*h,2)}')
            o(f'v_pk_add_f32 {vr(R+8+2*h,2)}, {vr(R+8+2*h,2)}, {vr(R+12+2*h,2)}')
        for h in range(2): o(f'v_pk_add_f32 {vr(R+2*h,2)}, {vr(R+2*h,2)}, {vr(R+8+2*h,2)}')
    ps(10)
    o('s_waitcnt vmcnt(0) lgkmcnt(0)')
    o('v_readfirstlane_b32 s54, v124')
    o('s_cmp_lt_u32 s54, 48')
    o('s_cbranch_scc0 L_ci_nc')
    o('s_mov_b64 exec, 1')
    o(f's_and_b32 s58, s{S_J}, 1')
    s_expr(o, 54, [(S_J, 128), (S_X, 16384), (58, 8192)], const=WS_RING + R_C + 262144)
    o('v_mov_b32 v24, s54')
    o('v_xor_b32 v26, 8192, v24')
    o('s_mov_b32 s54, -1')
    o('s_mov_b32 s55, -1')
    o('s_mov_b32 s59, 0')
    o('L_ci_cal:')
    o('s_memtime s[16:17]')
    o(f'global_store_dword v24, v{V_VM}, s[4:5] sc1')
    o('s_waitcnt vmcnt(0)')
    o('s_memtime s[18:19]')
    o(f'global_store_dword v26, v{V_VM}, s[4:5] sc1')
    o('s_waitcnt vmcnt(0)')
    o('s_memtime s[20:21]')
    o('s_waitcnt lgkmcnt(0)')
    o('s_sub_u32 s56, s18, s16')
    o('s_sub_u32 s57, s20, s18')
    o('s_min_u32 s54, s54, s56')
    o('s_min_u32 s55, s55, s57')
    o('s_add_u32 s59, s59, 1')
    o('s_cmp_lt_u32 s59, 3')
    o('s_cbranch_scc1 L_ci_cal')
    o('s_sub_i32 s56, s54, s55')
    o('s_sub_i32 s57, s55, s54')
    o('s_cmp_eq_u32 s58, 1')
    o('s_cselect_b32 s54, s57, s56')
    o('s_max_i32 s54, s54, -400')
    o('s_min_i32 s54, s54, 400')
    o('v_mov_b32 v24, s54')
    o(f'global_atomic_add v{V_VM}, v24, s[6:7] offset:{D_POL*4}')
    o('s_waitcnt vmcnt(0)')
    o('s_mov_b64 exec, -1')
    o('L_ci_nc:')
    o('s_barrier')
    o(f's_cmp_eq_u32 s{S_W}, 0')
    o('s_cbranch_scc0 L_ci_e')
    o('s_mov_b64 exec, 1')
    o('v_mov_b32 v24, 1')
    o('v_mov_b32 v25, 0')
    o(f'global_atomic_add v25, v24, s[6:7] offset:{D_INIT*4}')
    o('s_mov_b64 exec, -1')
    o('L_ci_e:')
    ps(11)
    s_add64(o, S_KB, S_WS, WS_K)
    s_add64(o, S_VB, S_WS, WS_VT)
    s_add64(o, S_KM, S_WS, WS_KM)
    s_expr(o, 54, [(S_HEAD, HS), (S_ES, 2048)], const=WS_K + 2*SS)
    s_add64(o, S_TK, S_WS, 's54')
    s_add64(o, S_TV, S_TK, WS_VT - WS_K)
    s_add64(o, S_VM, S_WS, WS_VMT)
    o(f'v_mov_b32 v{V_P+4}, 0')
    o('v_mov_b32 v25, 0')
    o(f's_cmp_eq_u32 s{S_W}, 3')
    o('s_cbranch_scc1 L_ci_w3')
    o(f's_cmp_lg_u32 s{S_W}, 0')
    o('s_cbranch_scc1 L_ci_ok')
    o('L_ci_wait:')
    o(f'global_load_dword v{V_R+4}, v25, s[6:7] offset:{D_INIT*4} sc1')
    o(f's_sub_u32 s{S_BUD}, s{S_BUD}, 1')
    o('s_cbranch_scc1 L_chain_bail')
    o('s_waitcnt vmcnt(0)')
    o(f'v_cmp_gt_u32 vcc, 128, v{V_R+4}')
    o('s_cbranch_vccz L_ci_ok')
    o('s_sleep 2')
    o('s_branch L_ci_wait')
    o('L_ci_w3:')
    X(26, [(0, 2, 4), (2, 1, 128)])
    o('L_ci_wt:')
    o(f'global_load_dword v{V_R+6}, v26, s[6:7] offset:{D_TICK*4} sc1')
    o(f's_sub_u32 s{S_BUD}, s{S_BUD}, 1')
    o('s_cbranch_scc1 L_chain_bail')
    o('s_waitcnt vmcnt(0)')
    o(f'v_cmp_gt_u32 vcc, 32, v{V_R+6}')
    o('s_cbranch_vccnz L_ci_wt')
    s_expr(o, 54, [(S_X, 128)], const=WS_CNT + 128*C_KS)
    o('v_mov_b32 v26, s54')
    o('L_ci_wkv:')
    o(f'global_load_dword v{V_R+4}, v26, s[4:5] sc1')
    o(f's_sub_u32 s{S_BUD}, s{S_BUD}, 1')
    o('s_cbranch_scc1 L_chain_bail')
    o('s_waitcnt vmcnt(0)')
    o(f'v_cmp_gt_u32 vcc, 32, v{V_R+4}')
    o('s_cbranch_vccz L_ci_kv')
    o('s_sleep 2')
    o('s_branch L_ci_wkv')
    o('L_ci_kv:')
    for h in range(2):
        o(f's_mov_b32 m0, {L_KL + h*4096}')
        s_add64(o, 56, S_KB, 4096*h)
        for i in range(4): o(f'global_load_lds_dwordx4 v{V_KD}, s[56:57] offset:{i*1024} sc1')
    o(f's_mov_b32 m0, {L_KL + 8192}')
    o('s_nop 0')
    for i in range(2): o(f'global_load_lds_dwordx4 v{V_VD}, s[{S_VB}:{S_VB+1}] offset:{i*1024} sc1')
    o('L_ci_ok:')
    ps(9)
    o('s_barrier')
    o(f'global_load_dword v{V_R+5}, v25, s[6:7] offset:{D_POL*4} sc1')
    o(f'global_load_dwordx4 {vr(V_R,4)}, v25, s[6:7] offset:{D_MASK*4} sc1')
    s_add64(o, S_KB, S_KB, SS)
    o('s_waitcnt vmcnt(0)')
    o(f'v_bcnt_u32_b32 v24, v{V_R}, 0')
    for i in range(1, 4): o(f'v_bcnt_u32_b32 v24, v{V_R+i}, v24')
    o(f'v_readfirstlane_b32 s{S_MODE}, v24')
    if 'pol' in DLY:
        o(f'v_mov_b32 v24, {DLY["pol"]*8192}')
    else:
        o(f'v_cmp_lt_i32 vcc, 0, v{V_R+5}')
        o('v_mov_b32 v25, 8192')
        o('v_cndmask_b32 v24, 0, v25, vcc')
    for r in (V_CWQ, V_CRD, V_CRD2, V_CRD3): o(f'v_xor_b32 v{r}, v24, v{r}')
    o(f's_mov_b32 s{S_STEP}, 0')
    if DLY.get('diag'): diag(o, 2)
    if stamp:
        o('s_memtime s[60:61]')
        ps(12)
        o('v_writelane_b32 v127, s94, 13')
        s_expr(o, 54, [(S_X, 32*512), (S_J, 512), (S_W, 128)], const=WS_STAMP + 16*MB)
        X(24, [(0, 6, 4)], sregs=[54])
        o('s_mov_b64 exec, 0xffffffff')
        o('global_store_dword v24, v127, s[4:5]')
        o('s_mov_b64 exec, -1')
        s_expr(o, 54, [(S_X, 16384), (S_J, 8*16384)], const=WS_STAMP)
        X(V_STP, [(6, 2, 4096), (0, 6, 4)], sregs=[54])
        for k in range(12): st(k)
    for i in range(16): o(f'v_min_u32 v{V_A+i}, s{S_NOSENT}, v{V_A+i}')
    def prep():
        for i in range(24): o(f'v_mov_b32 v{V_D+i}, 0')
    prep()
    for k, sb in enumerate((S_CUR, S_NXT, S_RST)): s_add64(o, sb, S_RING, k*RING_SLOT)
    o(f's_cmp_eq_u32 s{S_MODE}, 4')
    o('s_cbranch_scc0 L_cs_a_go')
    o('s_branch L_cf_a_go')

    def issue(regs, addr, n=4, pace=0):
        for c in range(n):
            o(f'global_load_dwordx4 {vr(regs+4*c,4)}, {addr(c)} sc1')
            if c < n-1 and pace: o(f's_nop {pace-1}')
    utails = []
    Tm = V_T + 2
    def sstream(P, tag, regs, addr, body, n=4, simple=False):
        L = f'{P}_{tag}'
        def ck(c):
            r = regs + 4*c
            return [f'v_max3_u32 v{Tm}, v{r}, v{r+1}, v{r+2}', f'v_max_u32 v{Tm}, v{Tm}, v{r+3}', f'v_cmp_eq_u32 vcc, -1, v{Tm}']
        def reload(c):
            return ['s_mov_b64 exec, vcc', f'global_load_dwordx4 {vr(regs+4*c,4)}, {addr(c)} sc1', 's_mov_b64 exec, -1']
        o(f'{L}_go:')
        if simple:
            o('s_waitcnt vmcnt(0)')
            rs = list(range(regs, regs + 4*n))
            o(f'v_max3_u32 v{Tm}, v{rs[0]}, v{rs[1]}, v{rs[2]}')
            for i in range(3, len(rs)-1, 2): o(f'v_max3_u32 v{Tm}, v{Tm}, v{rs[i]}, v{rs[i+1]}')
            o(f'v_max_u32 v{Tm}, v{Tm}, v{rs[-1]}')
            o(f'v_cmp_eq_u32 vcc, -1, v{Tm}')
            o(f's_cbranch_vccz {L}_ok')
            issue(regs, addr, n)
            o(f's_sub_u32 s{S_BUD}, s{S_BUD}, 1')
            o(f's_cbranch_scc0 {L}_go')
            o('s_branch L_chain_bail')
            o(f'{L}_ok:')
            for c in range(n): emit(body(c))
            return
        def weave(ins, nxt):
            nxt = list(nxt)
            per = -(-len(nxt) // max(1, len(ins) - 1))
            for i in ins:
                o(i)
                for _ in range(per):
                    if nxt: o(nxt.pop(0))
            emit(nxt)
        def name(q): return f'{L}_q' + ''.join(map(str, q))
        def nextchk(q): return [f's_waitcnt vmcnt({len(q)-1})'] + ck(q[0]) if q else []
        todo = []; seen = set()
        def block(q):
            while True:
                o(f'{name(q)}:')
                seen.add(tuple(q))
                o(f's_cbranch_vccnz {name(q)}x')
                todo.append(list(q))
                c = q[0]; q = q[1:]
                weave(body(c), nextchk(q))
                if not q: return None
                if tuple(q) in seen: return name(q)
        q0 = list(range(n))
        emit(nextchk(q0))
        block(q0)
        o(f'{L}_done:')
        def emit_tail():
            while todo:
                q = todo.pop(0)
                o(f'{name(q)}x:')
                emit(reload(q[0]))
                if q[0] == max(q):
                    o(f's_sub_u32 s{S_BUD}, s{S_BUD}, 1')
                    o('s_cbranch_scc1 L_chain_bail')
                q2 = q[1:] + [q[0]]
                emit(nextchk(q2))
                if tuple(q2) in seen: o(f's_branch {name(q2)}')
                else:
                    tgt = block(q2)
                    o(f's_branch {tgt or L + "_done"}')
        utails.append(emit_tail)
    def sum4x2(R):
        o(f'v_pk_add_f32 {vr(R,2)}, {vr(R,2)}, {vr(R+2,2)}')
        o(f'v_pk_add_f32 {vr(R+4,2)}, {vr(R+4,2)}, {vr(R+6,2)}')
        o(f'v_pk_add_f32 {vr(R,2)}, {vr(R,2)}, {vr(R+4,2)}')
    def smf(D, c, T):
        return f'v_smfmac_f32_16x16x64_bf16 {vr(D,4)}, {vr(V_A+4*c,4)}, {ar((T*4+c)*8,8)}, v{V_IDX}'
    def rotate():
        o(f's_mov_b64 s[{S_CUR}:{S_CUR+1}], s[{S_NXT}:{S_NXT+1}]')
        o(f's_mov_b64 s[{S_NXT}:{S_NXT+1}], s[{S_RST}:{S_RST+1}]')
        o(f's_add_u32 s54, s{S_STEP}, 2')
        o('s_and_b32 s54, s54, 3')
        o('s_lshl_b32 s54, s54, 19')
        s_add64(o, S_RST, S_RING, 's54')
        if DLY.get('late', 2) == 2: s_add64(o, S_KB, S_KB, SS)
    CUR = sr(S_CUR); RST = sr(S_RST)
    def loop(P, sc):
        simple = sc != ''
        LATE = DLY.get('late', 2)
        def stouch(sel, lbl, lim):
            if not DLY.get('spf', 0): return
            tl = [(S_TK, q) for q in range(0, 2048, 128)] + [(S_TV, q) for q in range(0, 2048, 128)]
            o(f's_cmp_ge_u32 s{S_STEP}, {lim}')
            o(f's_cbranch_scc1 {lbl}')
            for (sb, off) in tl[sel]: o(f's_load_dword s41, s[{sb}:{sb+1}], {off}')
            s_add64(o, S_TK, S_TK, SS)
            s_add64(o, S_TV, S_TV, SS)
            o(f'{lbl}:')
        def kvread():
            for k in range(8): o(f'ds_read_b128 {vr(V_KX+4*k,4)}, v{V_LKL} offset:{k*1024}')
            o(f'ds_read_b128 {vr(V_VX,4)}, v{V_LVL}')
        o(f'{P}_top:')
        o('s_barrier')
        st(0)
        nops(DLY['a'])
        aA = lambda c: f'v{V_ARD}, {CUR} offset:{c*1024}'
        issue(V_A, aA, pace=DLY['pa'])
        sstream(P, 'a', V_A, aA, lambda c: [smf(V_D+4*T, c, T) for T in range(4)], simple=simple)
        st(1)
        for T in range(4):
            b = V_D + 4*T
            o(f'v_pk_add_f32 {vr(b,2)}, {vr(b,2)}, {vr(b+2,2)}')
            o(f'ds_write2_b32 v{V_LREDW if T < 2 else V_LREDW1}, v{b}, v{b+1} offset0:{(T&1)*16} offset1:{(T&1)*16+RS//4}')
        vm = [(T, c) for c in range(4) for T in (4, 5)]
        for (T, c) in vm[:3]: o(smf(V_D+4*T, c, T))
        o('s_waitcnt lgkmcnt(0)')
        o('s_barrier')
        for p in range(4): o(f'ds_read_b64 {vr(V_R+2*p,2)}, v{V_LREDR} offset:{p*RED_P}')
        for (T, c) in vm[3:]: o(smf(V_D+4*T, c, T))
        o('s_waitcnt lgkmcnt(0)')
        sum4x2(V_R)
        o(f'v_cvt_pk_bf16_f32 v{V_R}, v{V_R}, v{V_R+1}')
        o(f'v_min_u32 v{V_R}, s{S_NOSENT}, v{V_R}')
        o(f'global_store_dword v{V_QKWR}, v{V_R}, {CUR} {sc}')
        st(2)
        for t in range(2):
            b = V_D + 16 + 4*t
            o(f'v_pk_add_f32 {vr(b,2)}, {vr(b,2)}, {vr(b+2,2)}')
            o(f'ds_write_b64 v{V_LRVW}, {vr(b,2)} offset:{t*512}')
        o(f's_cmp_lt_u32 s{S_W}, 2')
        o(f's_cbranch_scc0 {P}_w23')
        o(f's_cmp_eq_u32 s{S_STEP}, {nsteps-1}')
        o(f's_cbranch_scc1 {P}_last01')
        o('s_waitcnt lgkmcnt(0)')
        o('s_barrier')
        if LATE: kvread()
        nops(DLY['b'])
        aB = lambda c: f'v{V_QKRD}, {CUR} offset:{c*1024}'
        issue(V_QK, aB, pace=DLY['pb'])
        o('s_barrier')
        o(f'ds_read_b32 v{V_VM+1}, v{V_LVMO}')
        for i in range(12): o(f'v_mov_b32 v{V_S+i}, 0')
        if LATE: o('s_waitcnt lgkmcnt(1)')
        def bodyB(e):
            r = []
            for t in range(3):
                A = vr(V_KX + (t*4+e)*4, 4) if t < 2 else vr(V_QK+4*e, 4)
                r.append(f'v_mfma_f32_16x16x32_bf16 {vr(V_S+4*t,4)}, {A}, {vr(V_QK+4*e,4)}, {vr(V_S+4*t,4)}')
            return r
        sstream(P, 'b', V_QK, aB, bodyB, simple=simple)
        st(3)
        S = V_S
        o(f'v_max3_f32 v{V_T}, v{S}, v{S+1}, v{S+2}')
        o(f'v_max3_f32 v{V_T}, v{V_T}, v{S+3}, v{S+4}')
        o(f'v_max3_f32 v{V_T}, v{V_T}, v{S+5}, v{S+6}')
        o(f'v_max3_f32 v{V_T}, v{V_T}, v{S+7}, v{S+10}')
        o(f'v_max_f32 v{V_T}, v{V_T}, v{S+11}')
        for sw in ('32', '16'):
            o(f'v_mov_b32 v{V_T+1}, v{V_T}')
            o(f'v_permlane{sw}_swap_b32 v{V_T}, v{V_T+1}')
            o(f'v_max_f32 v{V_T}, v{V_T}, v{V_T+1}')
        o(f'v_mul_f32 v{V_T}, s{S_SCALE}, v{V_T}')
        for i in (0, 1, 2, 3, 5):
            o(f'v_pk_fma_f32 {vr(S+2*i,2)}, {vr(S+2*i,2)}, {vr(V_SC,2)}, {vr(V_T,2)} op_sel_hi:[1,1,0] neg_lo:[0,0,1] neg_hi:[0,0,1]')
        for i in range(8): o(f'v_exp_f32 v{S+i}, v{S+i}')
        for i in range(4): o(f'v_cvt_pk_bf16_f32 v{V_P+i}, v{S+2*i}, v{S+2*i+1}')
        for i in (10, 11): o(f'v_exp_f32 v{S+i}, v{S+i}')
        o(f'v_mfma_f32_16x16x32_bf16 {vr(V_L,4)}, {vr(V_ONES,4)}, {vr(V_P,4)}, 0')
        o(f'v_cvt_pk_bf16_f32 v{V_P+5}, v{S+10}, v{S+11}')
        o(f'v_mfma_f32_16x16x32_bf16 {vr(V_O,4)}, {vr(V_VX,4)}, {vr(V_P,4)}, 0')
        o('s_waitcnt lgkmcnt(0)')
        o(f'v_mfma_f32_16x16x16_bf16 {vr(V_L,4)}, {vr(V_ONES,2)}, {vr(V_P+4,2)}, {vr(V_L,4)}')
        o(f'v_mfma_f32_16x16x16_bf16 {vr(V_O,4)}, {vr(V_VM,2)}, {vr(V_P+4,2)}, {vr(V_O,4)}')
        o(f's_mov_b64 exec, s[{S_MQ}:{S_MQ+1}]')
        o(f'v_rcp_f32 v{V_T}, v{V_L}')
        o(f'v_pk_mul_f32 {vr(V_O,2)}, {vr(V_O,2)}, {vr(V_T,2)} op_sel_hi:[1,0]')
        o(f'v_pk_mul_f32 {vr(V_O+2,2)}, {vr(V_O+2,2)}, {vr(V_T,2)} op_sel_hi:[1,0]')
        o(f'v_cvt_pk_bf16_f32 v{V_O}, v{V_O}, v{V_O+1}')
        o(f'v_cvt_pk_bf16_f32 v{V_O+1}, v{V_O+2}, v{V_O+3}')
        o(f'v_min_u32 v{V_O}, s{S_NOSENT}, v{V_O}')
        o(f'v_min_u32 v{V_O+1}, s{S_NOSENT}, v{V_O+1}')
        o(f'global_store_dwordx2 v{V_OWR}, {vr(V_O,2)}, {CUR} {sc}')
        o('s_mov_b64 exec, -1')
        st(4)
        o(f's_branch {P}_po')
        o(f'{P}_last01:')
        o('s_waitcnt lgkmcnt(0)')
        o('s_barrier')
        o('s_barrier')
        o('s_branch L_chain_done')
        o(f'{P}_w23:')
        o('s_waitcnt lgkmcnt(0)')
        o('s_barrier')
        for p in range(4): o(f'ds_read_b64 {vr(V_R+2*p,2)}, v{V_LRVR} offset:{p*1024}')
        o('s_waitcnt lgkmcnt(0)')
        sum4x2(V_R)
        o(f'v_cvt_pk_bf16_f32 v{V_VM+1}, v{V_R}, v{V_R+1}')
        o(f'ds_write_b32 v{V_LVMO}, v{V_VM+1}')
        o(f's_cmp_eq_u32 s{S_W}, 2')
        o('s_waitcnt lgkmcnt(0)')
        o('s_barrier')
        o(f's_cbranch_scc1 {P}_w2a')
        for hf in range(2):
            for p in range(4): o(f'ds_read_b64 {vr(V_R+8*hf+2*p,2)}, v{V_LREDR2} offset:{p*RED_P + hf*32}')
        o(f'ds_read2_b32 {vr(V_PUB+2,2)}, v{V_LVMO2} offset0:0 offset1:64')
        prep()
        o('s_waitcnt lgkmcnt(0)')
        for hf in range(2):
            sum4x2(V_R+8*hf)
            o(f'v_cvt_pk_bf16_f32 v{V_PUB+hf}, v{V_R+8*hf}, v{V_R+8*hf+1}')
        o(f's_cmp_eq_u32 s{S_STEP}, {nsteps-1}')
        o(f's_cbranch_scc1 {P}_last3')
        def kvdma():
            for h in range(2):
                o(f's_mov_b32 m0, {L_KL + h*4096}')
                if h: s_add64(o, 56, S_KB, 4096)
                for i in range(4): o(f'global_load_lds_dwordx4 v{V_KD}, s[{56 if h else S_KB}:{57 if h else S_KB+1}] offset:{i*1024} {DLY.get("ksc", "sc1")}')
            o(f's_mov_b32 m0, {L_KL + 8192}')
            s_add64(o, S_KB, S_KB, SS)
            for i in range(2): o(f'global_load_lds_dwordx4 v{V_VD}, s[{S_VB}:{S_VB+1}] offset:{i*1024} {DLY.get("ksc", "sc1")}')
            s_add64(o, S_VB, S_VB, SS)
        stouch(slice(15, 30), f'{P}_t3', nsteps-2)
        if not LATE:
            nops(DLY['d3'])
            kvdma()
        o(f's_branch {P}_po')
        o(f'{P}_w2a:')
        prep()
        o(f's_cmp_eq_u32 s{S_STEP}, {nsteps-1}')
        o('s_cbranch_scc1 L_chain_done')
        o(f's_cmp_eq_u32 s{S_STEP}, {nsteps-3}')
        o(f's_cbranch_scc0 {P}_ncw')
        o('s_getpc_b64 s[56:57]')
        o(f'{P}_pc:')
        o(f's_sub_u32 s56, s56, {P}_pc-L_bulk')
        o('s_subb_u32 s57, s57, 0')
        o(f's_lshl_b32 s54, s{S_J}, 12')
        X(V_T, [(0, 5, 128)], sregs=[54])
        o(f'v_min_u32 v{V_T}, L_chain-L_bulk, v{V_T}')
        o(f'global_load_dword v{V_T+1}, v{V_T}, s[56:57]')
        o(f'{P}_ncw:')
        if not DLY.get('nodep'):
            stouch(slice(0, 15), f'{P}_t2', nsteps-2)
            o(f's_add_u32 s54, s{S_STEP}, {3 if DLY.get("spf") else 1 if LATE else 2}')
            o('s_and_b32 s55, s54, 7')
            o(f's_cbranch_scc1 {P}_po')
            o('s_sub_u32 s55, s54, 16')
            o('s_cmp_ge_u32 s55, 48')
            o(f's_cbranch_scc1 {P}_po')
            s_expr(o, 54, [(54, 16)], const=WS_CNT + 128*C_KV)
            o(f'v_mov_b32 v{V_T}, s54')
            o(f'{P}_kvw:')
            o(f'global_load_dword v{V_T+1}, v{V_T}, s[4:5] sc1')
            o(f's_sub_u32 s{S_BUD}, s{S_BUD}, 1')
            o('s_cbranch_scc1 L_chain_bail')
            o('s_waitcnt vmcnt(0)')
            o(f'v_cmp_gt_u32 vcc, 32, v{V_T+1}')
            o(f's_cbranch_vccnz {P}_kvw')
        o(f'{P}_po:')
        o('s_barrier')
        for i in range(8): o(f'v_mov_b32 v{V_E+i}, 0')
        o(f's_add_u32 s{S_STEP}, s{S_STEP}, 1')
        if LATE == 2: o('s_mov_b32 m0, s52')
        nops(DLY['o'])
        aO = lambda c: f'v{V_ORD}, {CUR} offset:{c*1024}'
        issue(V_A, aO, pace=DLY['po'])
        sstream(P, 'o', V_A, aO, lambda c: [smf(V_E+4*t, c, 6+t) for t in range(2)], simple=simple)
        st(5)
        for t in range(2):
            b = V_E + 4*t
            o(f'v_pk_add_f32 {vr(b,2)}, {vr(b,2)}, {vr(b+2,2)}')
            o(f'ds_write2_b32 v{V_LROW}, v{b}, v{b+1} offset0:{t*16} offset1:{t*16+RS//4}')
        if LATE == 2:
            for i in range(2): o(f'global_load_lds_dwordx4 v{V_KD2}, s[{S_KB}:{S_KB+1}] offset:{i*1024} sc1')
            o('s_mov_b32 m0, s53')
            o('s_nop 0')
            o(f'global_load_lds_dwordx4 v{V_VD2}, s[{S_KB}:{S_KB+1}] sc1')
        o('s_waitcnt lgkmcnt(0)')
        o('s_barrier')
        st(6)
        o(f'ds_read2st64_b32 {vr(V_E,2)}, v{V_LROQ} offset0:0 offset1:5')
        o(f'ds_read2st64_b32 {vr(V_E+2,2)}, v{V_LROQ} offset0:10 offset1:15')
        o(f's_cmp_lt_u32 s{S_W}, 2')
        o('s_waitcnt lgkmcnt(0)')
        o(f'v_add_f32 v{V_E}, v{V_E}, v{V_E+1}')
        o(f'v_add_f32 v{V_E+2}, v{V_E+2}, v{V_E+3}')
        o(f'v_add_f32 v{V_E}, v{V_E}, v{V_E+2}')
        o(f'v_min_u32 v{V_E}, s{S_NOSENT}, v{V_E}')
        o(f'global_store_dword v{V_CWQ}, v{V_E}, {CUR} sc1')
        st(7)
        o(f'global_store_dword v{V_QKWR}, v{V_SENT}, {RST} {sc}')
        o(f'global_store_dword v{V_CWQ}, v{V_SENT}, {RST} sc1')
        o(f's_cbranch_scc0 {P}_w23c')
        o(f's_mov_b64 exec, s[{S_MQ}:{S_MQ+1}]')
        o(f'global_store_dwordx2 v{V_OWR}, {vr(V_SENT,2)}, {RST} {sc}')
        o('s_mov_b64 exec, -1')
        prep()
        if not LATE: kvread()
        rotate()
        flush()
        stouch(slice(30, 32), f'{P}_t0', nsteps-1)
        o(f's_branch {P}_top')
        o(f'{P}_w23c:')
        o(f's_cmp_eq_u32 s{S_W}, 3')
        o(f's_cbranch_scc0 {P}_w2c')
        def prog(sub):
            o(f'v_mov_b32 v{V_T}, s{S_STEP}')
            if sub: o(f'v_add_u32 v{V_T}, {sub}, v{V_T}')
            o('s_mov_b64 exec, 1')
            o(f'global_store_dword v{V_PROG}, v{V_T}, s[4:5] sc1')
            o('s_mov_b64 exec, -1')
        def pub():
            for hf in range(2):
                o(f'global_store_dword v{V_KMW2}, v{V_PUB+hf}, s[{S_KM}:{S_KM+1}] offset:{hf*256} sc1')
                o(f'global_store_dword v{V_KMWR}, v{V_PUB+2+hf}, s[{S_VM}:{S_VM+1}] offset:{hf*256} sc1')
            s_add64(o, S_KM, S_KM, SS//4)
            s_add64(o, S_VM, S_VM, SS//4)
        if LATE == 1:
            st(9)
            kvdma()
            if DLY.get('kvlat'):
                o('s_waitcnt vmcnt(0)')
                st(11)
        prog(-1)
        pub()
        rotate()
        flush()
        o(f's_branch {P}_top')
        o(f'{P}_last3:')
        pub()
        o('s_waitcnt vmcnt(0)')
        prog(1)
        o('s_branch L_chain_done')
        o(f'{P}_w2c:')
        o(f'ds_read2_b64 {vr(V_R,4)}, v{V_LROR} offset0:0 offset1:2')
        o(f'ds_read2_b64 {vr(V_R+4,4)}, v{V_LROR} offset0:{RO_P//8} offset1:{RO_P//8+2}')
        o(f'ds_read2_b64 {vr(V_R+8,4)}, v{V_LROR2} offset0:0 offset1:2')
        o(f'ds_read2_b64 {vr(V_R+12,4)}, v{V_LROR2} offset0:{RO_P//8} offset1:{RO_P//8+2}')
        o(f'global_store_dwordx2 v{V_MWR}, {vr(V_SENT,2)}, {RST} {sc}')
        o(f's_mov_b64 s[{S_CC}:{S_CC+1}], {CUR}')
        rotate()
        flush()
        o('s_waitcnt lgkmcnt(0)')
        sum4(V_R)
        nops(DLY['c'])
        st(8)
        crd = [V_CRD, V_CRD2, V_CRD3]
        aC = lambda c: f'v{crd[c]}, {sr(S_CC)}'
        issue(V_C, aC, n=3)
        C = V_C
        if not simple:
            o('s_waitcnt vmcnt(2)')
            o(f'v_max3_u32 v{Tm}, v{C}, v{C+1}, v{C+2}')
            for h in range(2): o(f'v_pk_add_f32 {vr(V_R+4+2*h,2)}, {vr(V_R+2*h,2)}, {vr(C+2*h,2)}')
            o('s_waitcnt vmcnt(1)')
            o(f'v_max3_u32 v{Tm}, v{Tm}, v{C+3}, v{C+4}')
            o(f'v_max3_u32 v{Tm}, v{Tm}, v{C+5}, v{C+6}')
            o('s_waitcnt vmcnt(0)')
            o(f'v_max3_u32 v{Tm}, v{Tm}, v{C+7}, v{C+8}')
            o(f'v_max3_u32 v{Tm}, v{Tm}, v{C+9}, v{C+10}')
            o(f'v_max_u32 v{Tm}, v{Tm}, v{C+11}')
            o(f'v_cmp_eq_u32 vcc, -1, v{Tm}')
            for h in range(2): o(f'v_pk_add_f32 {vr(V_R+8+2*h,2)}, {vr(C+4+2*h,2)}, {vr(C+8+2*h,2)}')
            for h in range(2): o(f'v_pk_add_f32 {vr(V_R+4+2*h,2)}, {vr(V_R+4+2*h,2)}, {vr(V_R+8+2*h,2)}')
            for h in range(2): o(f'v_cvt_pk_bf16_f32 v{V_R+4+h}, v{V_R+4+2*h}, v{V_R+5+2*h}')
            for h in range(2): o(f'v_min_u32 v{V_R+4+h}, s{S_NOSENT}, v{V_R+4+h}')
            o(f's_cbranch_vccnz {P}_c_go')
            o(f'global_store_dwordx2 v{V_MWR}, {vr(V_R+4,2)}, {CUR} {sc}')
            st(10)
            o(f's_branch {P}_top')
        sstream(P, 'c', V_C, aC, lambda c: [f'v_pk_add_f32 {vr(V_R+2*h,2)}, {vr(V_R+2*h,2)}, {vr(V_C+2*h,2)}' for h in range(2)] if c == 0 else [], n=3, simple=simple)
        for h in range(2): o(f'v_pk_add_f32 {vr(V_C+4+2*h,2)}, {vr(V_C+4+2*h,2)}, {vr(V_C+8+2*h,2)}')
        for h in range(2): o(f'v_pk_add_f32 {vr(V_R+2*h,2)}, {vr(V_R+2*h,2)}, {vr(V_C+4+2*h,2)}')
        o(f'v_cvt_pk_bf16_f32 v{V_R}, v{V_R}, v{V_R+1}')
        o(f'v_cvt_pk_bf16_f32 v{V_R+1}, v{V_R+2}, v{V_R+3}')
        o(f'v_min_u32 v{V_R}, s{S_NOSENT}, v{V_R}')
        o(f'v_min_u32 v{V_R+1}, s{S_NOSENT}, v{V_R+1}')
        o(f'global_store_dwordx2 v{V_MWR}, {vr(V_R,2)}, {CUR} {sc}')
        st(10)
        o(f's_branch {P}_top')
        for f in utails: f()
        utails.clear()
    loop('L_cf', '')
    loop('L_cs', 'sc1')
    o('L_chain_bail:')
    o('v_mov_b32 v24, 1')
    o('v_mov_b32 v25, 0')
    o(f'global_atomic_add v25, v24, s[6:7] offset:{D_BAIL*4}')
    o('s_endpgm')
    o('L_chain_done:')
    if DLY.get('diag'): diag(o, 3)
    if stamp:
        o('s_memtime s[90:91]')
        o('s_memrealtime s[92:93]')
        o('s_waitcnt lgkmcnt(0)')
        o('s_sub_u32 s90, s90, s60')
        o(f's_or_b32 s54, s{S_X}, s{S_J}')
        o('s_cbranch_scc1 L_chain_end')
        o('v_mov_b32 v25, s90')
        o(f'v_mov_b32 v24, s{S_BUD}')
        o('v_mov_b32 v26, s92')
        o('v_mov_b32 v27, s94')
        o(f'v_mov_b32 v28, {WS_STAMP - 64}')
        o('global_store_dwordx4 v28, v[24:27], s[4:5]')
        o('L_chain_end:')
    o('s_waitcnt vmcnt(0) lgkmcnt(0)')
    o(f's_add_u32 s10, s{S_X}, 4')
    o('s_branch L_bulk')
```

```python
from layout import *
from util import *

EXP = {}
G_AOFF = 4
G_BOFF = 8
G_ARD = 12
G_BRD = 16
G_T = 24
G_FA = 64
G_FB = 96
def fa(s, i): return G_FA + 64*(s & 1) + 4*i
def fb(s, i): return G_FB + 64*(s & 1) + 4*i
S_AB = 16; S_BB = 18; S_AST = 20; S_BST = 21; S_CNT = 22; S_MA = 23; S_MB = 24; S_W = 14

class Shape:
    def __init__(s, MT, NT, nfa, na, pairs):
        s.MT, s.NT, s.nfa, s.na, s.pairs = MT, NT, nfa, na, pairs
        s.nd = na + 4
    def acc(s, mt, nt): return (mt*s.NT+nt)*4

S88 = Shape(8, 8, 8, 4, [(mt, nt, mt, nt, True) for mt in range(8) for nt in range(8)])
S48 = Shape(4, 8, 4, 2, [(mt, nt, mt, nt, True) for mt in range(4) for nt in range(8)])
S44 = Shape(4, 4, 8, 4, [(mt, nt, 2*mt+sub, 4*sub+nt, sub == 0) for sub in range(2) for mt in range(4) for nt in range(4)])

def dma_group(sh, slot, asc=''):
    r = [f's_add_u32 m0, s{S_MA}, {slot*16384}', 's_nop 0']
    for i in range(sh.na): r.append(f'global_load_lds_dwordx4 v{G_AOFF+i}, s[{S_AB}:{S_AB+1}] offset:{i*1024} {asc}')
    r.append(f's_add_u32 m0, s{S_MA}, {65536 + slot*16384}')
    r.append(f's_add_u32 s{S_AB}, s{S_AB}, s{S_AST}')
    r.append(f's_addc_u32 s{S_AB+1}, s{S_AB+1}, 0')
    for i in range(4): r.append(f'global_load_lds_dwordx4 v{G_BOFF+i}, s[{S_BB}:{S_BB+1}] offset:{i*1024}')
    r.append(f's_add_u32 s{S_BB}, s{S_BB}, s{S_BST}')
    r.append(f's_addc_u32 s{S_BB+1}, s{S_BB+1}, 0')
    return r

def frag_reads(sh, slot, sub, par):
    r = []
    for i in range(8):
        if i < sh.nfa:
            off = slot*16384 + (i*1024 if sh.nfa == 8 else (i >> 1)*4096 + (i & 1)*1024)
            r.append(f'ds_read_b128 {vr(fa(par,i),4)}, v{G_ARD} offset:{off}')
        for h in range(2):
            r.append(f'ds_read_b64_tr_b16 {vr(fb(par,i)+2*h,2)}, v{G_BRD+i} offset:{slot*16384 + h*4096}')
    return r

def stage(o, sh, st, transposed, first, dma, last, vm, asc='', extra=None):
    D = dma_group(sh, st, asc) if dma else []
    D = [x for x in D if x != 's_nop 0'] + list(extra or [])
    nm = len(sh.pairs); par = st & 1
    o(f's_waitcnt vmcnt({vm}) lgkmcnt(0)'); o('s_barrier')
    R = [] if last else frag_reads(sh, (st+1) % 4, 0, par ^ 1)
    slots = [[] for _ in range(nm)]
    step = 2 if nm == 64 else 1
    for k, ins in enumerate(R): slots[step*k].append(ins)
    pos = 1
    for ins in D:
        slots[min(pos, nm-1)].append(ins)
        pos += (4 if nm == 64 else 2) if ins.startswith('global') else (2 if nm == 64 else 1)
    for k, (mt, nt, ia, ib, f0) in enumerate(sh.pairs):
        acc = ar(sh.acc(mt, nt), 4)
        A = vr(fa(par, ia), 4); B = vr(fb(par, ib), 4)
        if transposed: A, B = B, A
        o(f'v_mfma_f32_16x16x32_bf16 {acc}, {A}, {B}, {"0" if (first and f0) else acc}')
        for ins in slots[k]: o(ins)

def prologue_dma(o, sh, asc='', part=None):
    for s in range(4):
        G = dma_group(sh, s, asc)
        k = 2 + sh.na
        if part == 'A': G = G[:k] + G[k+1:k+3]
        if part == 'B': G = [G[k], 's_nop 0'] + G[k+3:]
        for ins in G: o(ins)

def body_first(o, sh, transposed, asc='', sig=None, cold=False):
    if cold: o(f's_waitcnt vmcnt({3*sh.nd})')
    o('s_barrier')
    for ins in frag_reads(sh, 0, 0, 0): o(ins)
    for s in range(4):
        stage(o, sh, s, transposed, s == 0, True, False, 63 if (s < 3 and not cold) else 2*sh.nd, asc, extra=sig if s == 3 else None)

def body_mid(o, P, sh, transposed, asc='', ex2=None, ex3=None, ex1=None, ex0=None):
    o(f'{P}_mid:')
    for s in range(4): stage(o, sh, s, transposed, False, True, False, 2*sh.nd, asc, extra={0: ex0, 1: ex1, 2: ex2, 3: ex3}.get(s))
    o(f's_sub_u32 s{S_CNT}, s{S_CNT}, 1')
    o(f's_cmp_lg_u32 s{S_CNT}, 0')
    o(f's_cbranch_scc1 {P}_mid')

def body_last(o, sh, transposed):
    for s in range(4):
        vm = (2-s)*sh.nd + 8*s if s < 3 else 63
        stage(o, sh, s, transposed, False, False, s == 3, vm, extra=[x for x in dma_group(S88, s, 'sc1') if x != 's_nop 0'])

def swz_f(o, dst, lo, tmp):
    o(f'v_bfe_u32 v{dst}, v0, {lo}, 2')
    o(f'v_lshlrev_b32 v{dst}, 1, v{dst}')
    o(f'v_mov_b32 v{tmp}, 0x78')
    o(f'v_lshrrev_b32 v{dst}, v{dst}, v{tmp}')

def a_nat(o, off, rd, lda=2048):
    T = G_T
    swz_f(o, T, 4, T+1)
    o(f'v_xor_b32 v{T}, v{T}, v0')
    o(f'v_and_b32 v{T}, 3, v{T}')
    tid_expr(o, off, [(2, 4, lda), (6, 2, 64*lda)])
    o(f'v_lshl_add_u32 v{off}, v{T}, 4, v{off}')
    if EXP.get('fakeblk'): tid_expr(o, off, [(0, 6, 16), (6, 2, 64*lda)])
    for i in range(1, 4): o(f'v_add_u32 v{off+i}, {i*(16*lda - 1024)}, v{off}')
    swz_f(o, T, 2, T+1)
    o(f'v_bfe_u32 v{T+1}, v0, 4, 2')
    o(f'v_xor_b32 v{T}, v{T}, v{T+1}')
    o(f'v_and_b32 v{T}, 3, v{T}')
    tid_expr(o, rd, [(0, 4, 64), (7, 1, 8192)])
    o(f'v_lshl_add_u32 v{rd}, v{T}, 4, v{rd}')

def a_nat48(o, off, src, lda=2048):
    tid_expr(o, off, [(6, 2, 32*lda)])
    o(f'v_sub_u32 v{off}, v{src}, v{off}')
    o(f'v_add_u32 v{off+1}, {16*lda - 1024}, v{off}')
    o(f'v_add_u32 v{off+2}, {16*lda - 2048}, v{off}')
    o(f'v_add_u32 v{off+3}, {16*lda - 3072}, v{off}')

def a_blk44(o, off, rts):
    tid_expr(o, off, [(0, 6, 16), (6, 2, 2*rts)])
    o(f'v_add_u32 v{off+1}, {rts - 2048}, v{off}')

def b_off(o, off, permk, ldb):
    T = G_T
    o(f'v_bfe_u32 v{T}, v0, 4, 2')
    o(f'v_lshlrev_b32 v{T}, 1, v{T}')
    o(f'v_xor_b32 v{T}, v{T}, v0')
    o(f'v_and_b32 v{T}, 15, v{T}')
    o(f'v_lshlrev_b32 v{T}, 4, v{T}')
    o(f'v_xor_b32 v{T+1}, 128, v{T}')
    tid_expr(o, T+2, [(4, 2, ldb), (6, 1, (16 if permk else 4)*ldb)])
    rstep = (4 if permk else 8) * ldb
    o(f'v_add_u32 v{off}, v{T+2}, v{T}')
    o(f'v_add_u32 v{T+1}, v{T+2}, v{T+1}')
    o(f'v_add_u32 v{off+1}, {1*(rstep - 1024)}, v{T+1}')
    o(f'v_add_u32 v{off+2}, {2*(rstep - 1024)}, v{off}')
    o(f'v_add_u32 v{off+3}, {3*(rstep - 1024)}, v{T+1}')

def b_rd(o, rd, split):
    T = G_T
    tid_expr(o, T, [(2, 3, 32)])
    if not split:
        tid_expr(o, T+1, [(2, 4, 256), (0, 2, 8), (6, 1, 8192)], const=65536)
        for t in range(8):
            o(f'v_xor_b32 v{T+2}, {t*32}, v{T}')
            o(f'v_add_u32 v{rd+t}, v{T+1}, v{T+2}')
    else:
        tid_expr(o, T+2, [(6, 1, 128)])
        o(f'v_xor_b32 v{T}, v{T}, v{T+2}')
        tid_expr(o, T+1, [(2, 4, 256), (0, 2, 8)], const=65536)
        for t in range(4):
            o(f'v_xor_b32 v{T+2}, {t*32}, v{T}')
            o(f'v_add_u32 v{rd+t}, v{T+1}, v{T+2}')
            o(f'v_add_u32 v{rd+4+t}, 8192, v{rd+t}')

def rd_acc(o, dst, a0, a1):
    for k, a in enumerate((a0, a1)):
        for i in range(4): o(f'v_accvgpr_read_b32 v{dst+4*k+i}, a{a+i}')
def pack8(o, dst, src):
    for k in range(4): o(f'v_cvt_pk_bf16_f32 v{dst+k}, v{src+2*k}, v{src+2*k+1}')
def unpack8(o, dst, src):
    for k in range(4):
        o(f'v_lshlrev_b32 v{dst+2*k}, 16, v{src+k}')
        o(f'v_and_b32 v{dst+2*k+1}, 0xffff0000, v{src+k}')

G_L16 = 2
G_L16B = 3
def epi_blocked(o, kind, sb, sh=S88):
    T = G_T; n = 0
    for seg in range(sh.MT//2):
        for blk in range(8):
            if kind == 'qk':
                t, e = blk >> 2, blk & 3
                a0, a1 = sh.acc(2*seg+t, 2*e), sh.acc(2*seg+t, 2*e+1)
            else:
                a0, a1 = sh.acc(2*seg, blk), sh.acc(2*seg+1, blk)
            d = G_FA + 4*(n % 16); n += 1
            rd_acc(o, T + 8*(n & 1), a0, a1)
            pack8(o, d, T + 8*(n & 1))
            if not EXP.get('nost'): o(f'global_store_dwordx4 v{G_L16+(blk>>2)}, {vr(d,4)}, s[{sb}:{sb+1}] offset:{(blk&3)*1024} {EXP.get("stsc", "sc1")}')
        if seg < sh.MT//2 - 1: s_add64(o, sb, sb, SS)
    return 0 if EXP.get('nost') else n

def epi_up(o, sb, mid=None):
    T = G_T; sh = S88; n = 0
    o(f's_mov_b32 s29, {0xbfb8aa3b:#x}')
    for mt in range(8):
        for q in range(2):
            d = G_FA + 4*(n % 16); n += 1
            G = T; U = T + 8; E = T + 16
            rd_acc(o, G, sh.acc(mt, 2*q), sh.acc(mt, 2*q+1))
            for i in range(8): o(f'v_mul_f32 v{E+i}, s29, v{G+i}')
            for i in range(8): o(f'v_exp_f32 v{E+i}, v{E+i}')
            rd_acc(o, U, sh.acc(mt, 4+2*q), sh.acc(mt, 4+2*q+1))
            for i in range(8): o(f'v_add_f32 v{E+i}, 1.0, v{E+i}')
            for i in range(8): o(f'v_rcp_f32 v{E+i}, v{E+i}')
            for i in range(4): o(f'v_pk_mul_f32 {vr(G+2*i,2)}, {vr(G+2*i,2)}, {vr(E+2*i,2)}')
            for i in range(4): o(f'v_pk_mul_f32 {vr(G+2*i,2)}, {vr(G+2*i,2)}, {vr(U+2*i,2)}')
            pack8(o, d, G)
            o(f'global_store_dwordx4 v{G_L16}, {vr(d,4)}, s[{sb}:{sb+1}] offset:{q*1024} sc1')
        if mt < 7: s_add64(o, sb, sb, 112*1024)
        if mt == 1 and mid: mid(4)
    return 16

def epi_db(o, sb, gv):
    T = G_T; sh = S88; n = 0
    for mt in range(8):
        for q in range(4):
            d = G_FA + 4*(n % 16); n += 1
            rd_acc(o, T, sh.acc(mt, 2*q), sh.acc(mt, 2*q+1))
            pack8(o, T+8, T)
            unpack8(o, T, T+8)
            for i in range(4): o(f'v_pk_mul_f32 {vr(T+2*i,2)}, {vr(T+2*i,2)}, {vr(gv+2*mt,2)} op_sel:[0,1] op_sel_hi:[1,1]')
            pack8(o, d, T)
            o(f'global_store_dwordx4 v{G_L16}, {vr(d,4)}, s[{sb}:{sb+1}] offset:{q*1024} sc1')
        if mt < 7: s_add64(o, sb, sb, 32*1024)
    return 32

def epi_da(o, sb, gv, so, vo, nmt=4):
    T = G_T; sh = S44; n = 0
    for mt in range(nmt):
        for q in range(2):
            d = G_FA + 4*n
            rd_acc(o, T, sh.acc(mt, 2*q), sh.acc(mt, 2*q+1))
            for i in range(4): o(f'v_accvgpr_read_b32 v{T+24+i}, a{64+4*n+i}')
            n += 1
            pack8(o, T+8, T)
            unpack8(o, T, T+8)
            for i in range(4): o(f'v_pk_mul_f32 {vr(T+2*i,2)}, {vr(T+2*i,2)}, {vr(gv+2*mt,2)} op_sel_hi:[1,0]')
            pack8(o, T+8, T)
            unpack8(o, T, T+8)
            unpack8(o, T+16, T+24)
            for i in range(4): o(f'v_pk_add_f32 {vr(T+2*i,2)}, {vr(T+2*i,2)}, {vr(T+16+2*i,2)}')
            pack8(o, d, T)
            o(f'v_permlane16_swap_b32 v{d}, v{d+2}')
            o(f'v_permlane16_swap_b32 v{d+1}, v{d+3}')
            o(f'global_store_dwordx4 v{vo}, {vr(d,4)}, s[{so}:{so+1}] offset:{q*64}')
        if mt < nmt-1: s_add64(o, so, so, 16*2048)
    return 2*nmt
```

```python
import sys; sys.path.insert(0, 'gen')
from layout import *
from util import *
import chain, bulk, hazard

NAME = 'gated_mix__memory_aug_recurrent_mem_tr__glu_gated_swiglu__prompt'

def item(t, rb, ct, dep=C_DUMMY-1, tgt=0, sig=C_DUMMY): return t | rb << 4 | ct << 8 | dep << 14 | tgt << 20 | sig << 26

def SCHED(KS, KV, KL, UP, Q, DB, DA, DK, AT, A1, WM, AG):
    return [
        [KS(0), KV(0), UP(0,0), UP(1,0), Q(0,0), AT(0), AT(2), DA(0), DK(4, 7, 0)],
        [KS(1), KV(1), UP(0,1), UP(1,1), KL(2), Q(1,0), AT(4), DA(4)],
        [KS(2), KV(2), UP(0,2), UP(1,2), Q(0,1), AT(1), AT(3), DA(1), DK(4, 7, 1)],
        [KS(3), KV(3), UP(0,3), UP(1,3), KL(3), Q(1,1), AT(5), DA(5)],
        [KS(4), KV(4), UP(0,4), UP(1,4), Q(0,2), Q(1,2), DA(2), DK(4, 7, 2)],
        [KS(5), KV(5), UP(0,5), UP(1,5), WM(1), DB(1)],
        [KS(6), KV(6), UP(0,6), UP(1,6), Q(0,3), Q(1,3), DA(3), DK(4, 7, 3)],
        [KS(7), KV(7), KL(0), KL(1), WM(0), DB(0)],
    ] + [[A1(12 + (i >> 1), i & 1)] + ([DK(4, 6, i >> 1)] if i & 1 == 0 else []) for i in range(8)]

def schedule():
    R = range
    def kv(p, rb): return item(T_K if p < 16 else T_V, rb, p & 15, dep=C_X + rb, tgt=16, sig=C_KV + rb)
    KS = lambda l: [item(T_KS if l < 4 else T_VS, r, (4*l + c) & 15, dep=C_X + r//2, tgt=16, sig=C_KS + (l & 3)) for c in R(4) for r in R(4)]
    KV = lambda l: [kv(4*l + c, rb) for c in R(4) for rb in R(2, 6)]
    KL = lambda i: [kv(8*i + c, rb) for c in R(8) for rb in (6, 7)]
    UP = lambda h, i: [item(T_UP, 4*h + r, 4*i + c, dep=C_X + 4*h + r, tgt=16, sig=C_H + 4*h + r) for c in R(4) for r in R(4)]
    Q = lambda h, i: [item(T_Q, 4*h + r, 4*i + c, dep=C_X + 4*h + r, tgt=16, sig=C_Q + 4*h + i) for c in R(4) for r in R(4)]
    DB = lambda h: [item(T_DB, 4*h + r, c, dep=C_H + 4*h + r, tgt=28, sig=C_B + 4*h + r) for r in R(4) for c in R(4)]
    DA = lambda p: [item(T_DA, 2*p + r, c, dep=C_O + 2*p + r, tgt=8) for r in R(2) for c in R(8)]
    DK = lambda n, p, q: [item(T_DK if n == 4 else T_DK2, 2*p + r, c + 8*q, dep=C_O + 2*p + r, tgt=8 if p < 6 else 32) for r in R(2) for c in R(8)]
    A1 = lambda rq, h: [item(T_AT1, rq, c + 8*(2*h + i), dep=C_Q + 4 + c//2, tgt=16, sig=C_O + rq) for i in R(2) for c in R(8)]
    WM = lambda h: [item(T_WARM, 0, 16*h + c) for c in R(16)]
    AG = lambda g: [item(T_ATT, rq, 2*g + c, dep=C_Q + g, tgt=16, sig=C_O + rq) for rq in R(8) for c in R(2)]
    AT = lambda p: [item(T_ATT, 2*p + r, c, dep=C_Q + 4*(p//4) + c//2, tgt=16, sig=C_O + 2*p + r) for r in R(2) for c in R(8)]
    lanes = SCHED(KS, KV, KL, UP, Q, DB, DA, DK, AT, A1, WM, AG)
    tabs = []
    for g in range(8):
        tabs.append([[b[c & 15] for b in lanes[2*g + (c >> 4)]] for c in range(32)])
    n = max(len(l) for t in tabs for l in t) + 2
    return [[l + [item(0, 0, 0)]*(n - len(l)) for l in t] for t in tabs]

WARMCODE = True
DIAG = False
TOUCH = True
def entry(o, stamp):
    o('s_cmp_ge_u32 s2, 256')
    o('s_cbranch_scc1 L_exit')
    if stamp or DIAG: o('s_memrealtime s[94:95]')
    o(f's_load_dwordx2 s[4:5], s[0:1], {KA["ws"]}')
    o(f's_load_dwordx2 s[6:7], s[0:1], {KA["dbg"]}')
    if WARMCODE:
        o('s_getpc_b64 s[16:17]')
        o('L_entry_pc:')
        o('s_lshr_b32 s54, s2, 3')
        o('s_and_b32 s54, s54, 3')
        o('s_lshl_b32 s54, s54, 15')
        o('v_lshl_add_u32 v24, v0, 7, s54')
        o('v_min_u32 v24, L_code_end-L_entry_pc-4, v24')
        o('global_load_dword v28, v24, s[16:17]')
    o('v_lshrrev_b32 v24, 6, v0')
    o('s_getreg_b32 s12, hwreg(HW_REG_XCC_ID)')
    o('v_readfirstlane_b32 s14, v24')
    o('s_and_b32 s12, s12, 7')
    o('v_mov_b32 v25, 1')
    o('s_mov_b32 s15, 0')
    o('v_mov_b32 v27, 0')
    o('s_waitcnt lgkmcnt(0)')
    o('s_cmp_eq_u32 s14, 0')
    o('s_cbranch_scc0 L_en_w1')
    o('s_lshr_b32 s54, s2, 7')
    o('s_bfe_u32 s55, s2, 0x20005')
    o('s_and_b32 s56, s2, 31')
    s_expr(o, 57, [(54, R_C), (55, RING_SLOT), (56, 8192)], const=WS_RING)
    o('v_lshl_add_u32 v24, v0, 4, s57')
    o('v_add_u32 v26, 4096, v24')
    for i in range(4): o(f'v_mov_b32 v{32+i}, -1')
    for i in range(8): o(f'global_store_dwordx4 v{24 + 2*(i >> 2)}, v[32:35], s[4:5] offset:{(i & 3)*1024} sc1')
    o('s_lshl_b32 s54, s2, 7')
    o(f's_add_u32 s54, s54, {WS_PROG}')
    o('v_lshl_add_u32 v24, v0, 16, s54')
    o('s_mov_b64 exec, 3')
    o('global_store_dword v24, v27, s[4:5] sc1')
    o('s_waitcnt vmcnt(0)')
    o('s_mov_b64 exec, 1')
    o('s_mov_b32 s13, s12')
    o('L_en_try:')
    o('s_and_b32 s54, s13, 3')
    o('s_lshr_b32 s55, s13, 2')
    s_expr(o, 54, [(54, 4), (55, 128)])
    o('v_mov_b32 v24, s54')
    o(f'global_atomic_add v26, v24, v25, s[6:7] offset:{D_TICK*4} sc0')
    o('s_waitcnt vmcnt(0)')
    o('v_readfirstlane_b32 s11, v26')
    o('s_cmp_lt_u32 s11, 32')
    o('s_cbranch_scc1 L_en_got')
    o('s_add_u32 s13, s13, 1')
    o('s_and_b32 s13, s13, 7')
    o('s_cmp_lg_u32 s13, s12')
    o('s_cbranch_scc1 L_en_try')
    o('L_en_got:')
    o('s_min_u32 s11, s11, 255')
    o('s_lshl_b32 s54, s13, 8')
    o('s_or_b32 s54, s54, s11')
    o('v_mov_b32 v26, s54')
    o('ds_write_b32 v27, v26')
    o('s_mov_b64 exec, -1')
    o('s_branch L_en_j')
    o('L_en_w1:')
    o('L_en_j:')
    o('s_waitcnt lgkmcnt(0)')
    o('s_barrier')
    o('ds_read_b32 v26, v27')
    o('s_waitcnt lgkmcnt(0)')
    o('v_readfirstlane_b32 s54, v26')
    o('s_barrier')
    o('s_and_b32 s11, s54, 255')
    o('s_lshr_b32 s10, s54, 8')
    o('s_cmp_ge_u32 s11, 32')
    o('s_cbranch_scc1 L_exit')
    o('s_cmp_lt_u32 s10, 4')
    o('s_cbranch_scc1 L_chain')
    o('s_sub_u32 s10, s10, 4')
    o('s_branch L_bulk')
    o('L_exit:')
    o('s_endpgm')

KD = '''.amdhsa_kernel {n}
  .amdhsa_next_free_vgpr 512
  .amdhsa_next_free_sgpr 102
  .amdhsa_accum_offset 256
  .amdhsa_group_segment_fixed_size 0
  .amdhsa_kernarg_size 120
  .amdhsa_user_sgpr_count 2
  .amdhsa_user_sgpr_kernarg_segment_ptr 1
  .amdhsa_system_sgpr_workgroup_id_x 1
.end_amdhsa_kernel
'''
def compact(t):
    out = []
    for l in t.split('\n'):
        l = l.split(';')[0].strip()
        if l: out.append(l.replace(', ', ','))
    return '\n'.join(out) + '\n'

def build(stamp=False, DLY=None):
    global WARMCODE, TOUCH, DIAG
    DIAG = (DLY or {}).get('diag')
    TOUCH = (DLY or {}).get('touch', 0)
    WARMCODE = (DLY or {}).get('wc', 1)
    import gemm2
    gemm2.EXP = DLY or {}
    o = Out()
    entry(o, stamp)
    tabs = schedule()
    bulk.gen_bulk(o, tabs, stamp)
    chain.gen_chain(o, stamp=stamp, DLY=DLY)
    o('L_code_end:')
    k1, n1 = hazard.fix(o.text())
    o = Out(); bulk.emit_table(o, tabs)
    head = open(f'cdna_kernels/{NAME}.s.ref').read().split('; Override launch geometry')[0]
    s = head
    s += f'; @launch grid=(256,1,1) block=(256,1,1) lds=163840\n'
    s += '.amdgcn_target "amdgcn-amd-amdhsa--gfx950"\n.text\n'
    s += f'.globl {NAME}_kernel\n.p2align 8\n.type {NAME}_kernel,@function\n{NAME}_kernel:\n' + compact(k1)
    s += compact(o.text())
    s += '.section .rodata,"a"\n.p2align 6\n' + KD.format(n=NAME + '_kernel')
    return s

if __name__ == '__main__':
    s = build(DLY=eval(sys.argv[1]) if len(sys.argv) > 1 else None)
    open(sys.argv[2] if len(sys.argv) > 2 else f'cdna_kernels/{NAME}.s', 'w').write(s)
    print(len(s), 'bytes', s.count('\n'), 'lines')
```

```python
from layout import *
from util import *
from gemm2 import *
import gemm2

C_ANAT = 192; C_AH = 196; C_AO = 198; C_OUT = 214; C_B8 = 200; C_B7 = 204; C_B2 = 208; C_RDN = 212; C_RDB = 213
C_AN2 = 244+8; C_BRN = 216; C_BRS = 224
V_TK = 232; V_TA = 215; V_INC = 252; V_SIG = 233; V_ONE = 234; V_ZERO = 235; V_DEP = 236; V_GADDR = 237; V_DADDR = 238; V_LDEP = 239; V_LDEP0 = 15; V_GV = 240
S_WS = 4; S_DBG = 6; S_GRP = 10
S_PX = 64; S_PQ = 66; S_PK = 68; S_PV = 70; S_P1 = 72; S_P3 = 74; S_P2 = 76; S_TAB = 78; S_PO = 60; S_POUT = 62
S_CURI = 26; S_NXTI = 27; S_PF = 28; S_OUT = 30; S_SIGN = 32; S_BUD = 40
S_TY = 33; S_RB = 34; S_CT = 35
SCALE_LOG2E = f2u(128 ** -0.5 * math.log2(math.e))

def decode(o, item):
    o(f's_and_b32 s{S_TY}, s{item}, 15')
    o(f's_bfe_u32 s{S_RB}, s{item}, 0x40004')
    o(f's_bfe_u32 s{S_CT}, s{item}, 0x60008')

def set_dma(o, P, item, small=False):
    o(f's_lshr_b32 s55, s{S_W}, 1')
    o(f's_mov_b32 s{S_WRAP}, -1')
    o(f's_cmp_eq_u32 s{S_TY}, {T_DB}')
    o(f's_cbranch_scc1 {P}_d8')
    if small:
        o(f's_cmp_eq_u32 s{S_TY}, {T_DA4}')
        o(f's_cbranch_scc1 {P}_d4')
    o(f's_sub_u32 s54, s{S_TY}, {T_DA}')
    o('s_cmp_lt_u32 s54, 2')
    o(f's_cbranch_scc1 {P}_db')
    s_expr(o, 54, [(S_RB, 1 << 19)], const=WS_XB)
    s_add64(o, S_AB, S_WS, 's54')
    o(f's_mov_b32 s{S_AST}, 1024')
    for i in range(4): o(f'v_mov_b32 v{G_AOFF+i}, v{C_ANAT+i}')
    if small:
        o(f's_cmp_lt_u32 s{S_TY}, {T_KS}')
        o(f's_cbranch_scc1 {P}_big')
        s_expr(o, 54, [(S_RB, 1 << 18), (S_W, 65536)], const=WS_XB)
        s_add64(o, S_AB, S_WS, 's54')
        o(f'v_mov_b32 v{G_AOFF}, v{G_L16}')
        o(f'v_add_u32 v{G_AOFF+1}, {32768-1024}, v{G_L16}')
        o(f'{P}_big:')
    o(f's_cmp_eq_u32 s{S_TY}, {T_UP}')
    o(f's_cbranch_scc1 {P}_up')
    o(f's_cmp_eq_u32 s{S_TY}, {T_Q}')
    o(f's_cselect_b64 s[56:57], s[{S_PQ}:{S_PQ+1}], s[{S_PK}:{S_PK+1}]')
    o(f's_cmp_eq_u32 s{S_TY}, {T_V}')
    o(f's_cselect_b64 s[56:57], s[{S_PV}:{S_PV+1}], s[56:57]')
    if small:
        o(f's_cmp_eq_u32 s{S_TY}, {T_VS}')
        o(f's_cselect_b64 s[56:57], s[{S_PV}:{S_PV+1}], s[56:57]')
    s_expr(o, 54, [(S_CT, 512), (55, 256)])
    s_add64(o, S_BB, 56, 's54')
    o(f's_mov_b32 s{S_BST}, {32*8192}')
    for i in range(4): o(f'v_mov_b32 v{G_BOFF+i}, v{C_B8+i}')
    o(f's_branch {P}_e')
    o(f'{P}_up:')
    o('s_cmp_eq_u32 s55, 1')
    o(f's_cselect_b64 s[56:57], s[{S_P3}:{S_P3+1}], s[{S_P1}:{S_P1+1}]')
    o(f's_and_b32 s54, s{S_CT}, 31')
    o('s_lshl_b32 s54, s54, 8')
    s_add64(o, S_BB, 56, 's54')
    o(f's_mov_b32 s{S_BST}, {32*7168}')
    for i in range(4): o(f'v_mov_b32 v{G_BOFF+i}, v{C_B7+i}')
    o(f's_bitcmp1_b32 s{S_CT}, 5')
    o(f's_cbranch_scc0 {P}_e')
    o(f's_and_b32 s54, s{S_RB}, 3')
    o(f's_mul_i32 s{S_WRAP}, s54, 2')
    o(f's_mul_i32 s{S_WA}, s{S_AST}, 32')
    o(f's_mul_i32 s{S_WB}, s{S_BST}, 32')
    o(f's_lshl_b32 s54, s{S_WRAP}, 2')
    o(f's_mul_i32 s57, s54, s{S_AST}')
    s_add64(o, S_AB, S_AB, 's57')
    o(f's_mul_i32 s57, s54, s{S_BST}')
    s_add64(o, S_BB, S_BB, 's57')
    o(f's_branch {P}_e')
    o(f'{P}_d8:')
    s_expr(o, 54, [(S_RB, 16*112*1024)], const=WS_H)
    s_add64(o, S_AB, S_WS, 's54')
    o(f's_mov_b32 s{S_AST}, 1024')
    o(f's_and_b32 s54, s{S_CT}, 31')
    s_expr(o, 54, [(54, 512), (55, 256)])
    s_add64(o, S_BB, S_P2, 's54')
    o(f's_mov_b32 s{S_BST}, {32*2048}')
    o(f'v_mov_b32 v{G_AOFF}, v{C_AH}')
    for i in range(1, 4): o(f'v_add_u32 v{G_AOFF+i}, {i*111*1024}, v{C_AH}')
    for i in range(4): o(f'v_mov_b32 v{G_BOFF+i}, v{C_B2+i}')
    o(f's_bitcmp1_b32 s{S_CT}, 5')
    o(f's_cbranch_scc0 {P}_e')
    o(f's_and_b32 s54, s{S_RB}, 3')
    o(f's_mul_i32 s{S_WRAP}, s54, 7')
    o(f's_mul_i32 s{S_WA}, s{S_AST}, 112')
    o(f's_mul_i32 s{S_WB}, s{S_BST}, 112')
    o(f's_lshl_b32 s54, s{S_WRAP}, 2')
    o(f's_mul_i32 s57, s54, s{S_AST}')
    s_add64(o, S_AB, S_AB, 's57')
    o(f's_mul_i32 s57, s54, s{S_BST}')
    s_add64(o, S_BB, S_BB, 's57')
    o(f's_branch {P}_e')
    if small:
        o(f'{P}_d4:')
        s_expr(o, 54, [(S_RB, 8*128*1024), (S_W, 256*1024)], const=WS_O)
        s_add64(o, S_AB, S_WS, 's54')
        o(f's_mov_b32 s{S_AST}, 1024')
        s_expr(o, 54, [(S_CT, 512), (55, 256)])
        s_add64(o, S_BB, S_PO, 's54')
        o(f's_mov_b32 s{S_BST}, {32*2048}')
        o(f'v_mov_b32 v{G_AOFF}, v{G_L16}')
        o(f'v_add_u32 v{G_AOFF+1}, {127*1024}, v{G_L16}')
        for i in range(4): o(f'v_mov_b32 v{G_BOFF+i}, v{C_B2+i}')
        o(f's_branch {P}_e')
    o(f'{P}_db:')
    o(f's_lshr_b32 s57, s{S_CT}, 3')
    s_expr(o, 54, [(S_RB, 8*128*1024), (57, 32768)], const=WS_O - 2048)
    o(f's_and_b32 s12, s{S_CT}, 7')
    s_expr(o, 12, [(12, 256), (55, 32*2048), (57, 2*MB)])
    s_add64(o, S_AB, S_WS, 's54')
    o(f's_mov_b32 s{S_AST}, 2048')
    s_add64(o, S_BB, S_PO, 's12')
    o(f's_mov_b32 s{S_BST}, {64*2048}')
    for t in range(2):
        s_expr(o, 54, [(S_W, 2), (57, 1)], const=t)
        o('s_and_b32 s54, s54, 3')
        s_expr(o, 54, [(54, 128*1024), (55, 512*1024)], const=2048*(1-t))
        o(f'v_add_u32 v{G_AOFF+2*t}, s54, v{G_L16}')
        o(f'v_mov_b32 v{G_AOFF+2*t+1}, v{G_AOFF+2*t}')
    for i in range(4): o(f'v_mov_b32 v{G_BOFF+i}, v{C_B2+i}')
    o(f'{P}_e:')

def poll_ge(o, lbl, addr_v, base, target, off=0, allw=False, sleep=16):
    if not allw:
        o(f's_cmp_lg_u32 s{S_W}, 0')
        o(f's_cbranch_scc1 {lbl}_ok')
    o(f'{lbl}:')
    o(f'global_load_dword v{V_DEP}, v{addr_v}, s[{base}:{base+1}] offset:{off} sc1')
    o(f's_sub_u32 s{S_BUD}, s{S_BUD}, 1')
    o('s_cbranch_scc1 L_bulk_bail')
    o('s_waitcnt vmcnt(0)')
    o(f'v_cmp_gt_u32 vcc, {target}, v{V_DEP}')
    o(f's_cbranch_vccz {lbl}_ok')
    o(f's_sleep {sleep}')
    o(f's_branch {lbl}')
    o(f'{lbl}_ok:')

_n = [0]
def SIG():
    _n[0] += 1
    return (f's_cmp_eq_u32 s39, 0\n    s_cbranch_scc1 L_sig{_n[0]}\n    s_mov_b32 s39, 0\n    s_mov_b64 exec, 1\n    global_atomic_add v{V_SIG}, v{V_INC}, s[{S_WS}:{S_WS+1}]\n    s_mov_b64 exec, -1\n    v_mov_b32 v{V_INC}, 1\nL_sig{_n[0]}:\n    s_nop 0')
def cnt(i): return WS_CNT + 128*i
def flush_sig(o):
    o('s_waitcnt vmcnt(0)')
    o('s_barrier')
    o(SIG())

def fetch_issue(o):
    pass

def gen_bulk(o, tables, stamp=False):
    o('L_bulk:')
    for reg, nm in ((S_WS, 'ws'), (S_DBG, 'dbg'), (S_PX, 'x'), (S_PQ, 'Wq'), (S_PK, 'Wk'), (S_PV, 'Wv'), (S_P1, 'w1'), (S_P3, 'w3'), (S_P2, 'w2'), (S_PO, 'Wo'), (S_POUT, 'out'), (46, 'gate')):
        o(f's_load_dwordx2 s[{reg}:{reg+1}], s[0:1], {KA[nm]}')
    o('v_lshrrev_b32 v2, 6, v0')
    o(f's_mov_b32 s{S_BUD}, 0x200000')
    o(f'v_readfirstlane_b32 s{S_W}, v2')
    o(f's_getpc_b64 s[{S_TAB}:{S_TAB+1}]')
    o('L_bulk_pc:')
    o(f's_add_u32 s{S_TAB}, s{S_TAB}, L_table-L_bulk_pc')
    o(f's_addc_u32 s{S_TAB+1}, s{S_TAB+1}, 0')
    n = len(tables[0][0])
    s_expr(o, 54, [(S_GRP, 32*n*4), (11, n*4)])
    s_add64(o, S_TAB, S_TAB, 's54')
    o(f's_load_dwordx2 s[{S_CURI}:{S_CURI+1}], s[{S_TAB}:{S_TAB+1}], 0')
    o(f's_lshl_b32 s{S_MA}, s{S_W}, 12')
    GX = 128; GW = 160; XD = 64
    def xloads():
        tid_expr(o, 40, [(0, 6, 32)])
        o(f'global_load_dwordx4 {vr(GW,4)}, v40, s[46:47]')
        o(f'global_load_dwordx4 {vr(GW+4,4)}, v40, s[46:47] offset:16')
        s_expr(o, 13, [(11, 4), (S_GRP, 1)])
        s_expr(o, 54, [(13, 16*2048), (S_W, 4*2048)])
        s_add64(o, 56, S_PX, 's54')
        for k in range(4):
            for h in range(2):
                o(f'global_load_dwordx4 {vr(GX+8*k+4*h,4)}, v40, s[56:57] offset:{(k&1)*2048 + h*16}')
            if k == 1: s_add64(o, 56, 56, 4096)
    o('s_waitcnt lgkmcnt(0)')
    o(f's_cmp_ge_u32 s{S_GRP}, 4')
    o('s_cbranch_scc1 L_bulk_nx')
    xloads()
    o('L_bulk_nx:')
    tid_expr(o, G_L16, [(0, 6, 16)])
    o(f'v_add_u32 v{G_L16B}, 4096, v{G_L16}')
    tid_expr(o, C_ANAT, [(0, 6, 16), (6, 2, 4*32768)])
    for i in range(1, 4): o(f'v_add_u32 v{C_ANAT+i}, {i*(32768-1024)}, v{C_ANAT}')
    tid_expr(o, C_AH, [(0, 6, 16), (6, 2, 4*112*1024)])
    tid_expr(o, C_RDB, [(0, 6, 16), (7, 1, 8192)])
    tid_expr(o, C_OUT, [(0, 4, 2048), (4, 1, 32), (5, 1, 16), (7, 1, 64*2048), (6, 1, 128)])
    b_off(o, C_B8, False, 8192)
    b_off(o, C_B7, False, 7168)
    b_off(o, C_B2, True, 2048)
    b_rd(o, C_BRN, False)
    b_rd(o, C_BRS, True)
    o(f'v_mov_b32 v{V_ONE}, 1')
    o(f'v_mov_b32 v{V_INC}, 1')
    o(f'v_mov_b32 v{V_ZERO}, 0')
    o(f'v_mov_b32 v{V_SIG}, {cnt(C_DUMMY)}')
    tid_expr(o, V_GADDR, [(0, 4, 8), (7, 1, 512)], const=WS_G)
    tid_expr(o, V_LDEP, [(6, 2, 4)], const=131072)
    o(f'v_mov_b32 v{V_LDEP0}, 131072')
    o(f's_mov_b32 s{S_PF}, 0')
    o(f's_lshr_b32 s41, s{S_GRP}, 2')
    o('s_mov_b32 s42, -1')
    o('s_mov_b32 s43, 0')
    o(f'v_mov_b32 v{V_TA}, 0')
    for r in (S_WRAP, S_WA, S_WB): o(f's_mov_b32 s{r}, 0')
    o('s_mov_b32 s39, 0')
    o('s_mov_b32 s29, 0')
    o(f's_cmp_eq_u32 s{S_W}, 0')
    o('s_cselect_b32 s38, 1, 0')
    o('s_waitcnt lgkmcnt(0)')
    o(f's_mov_b64 s[48:49], s[{S_P1}:{S_P1+1}]')
    o(f's_mov_b64 s[8:9], s[{S_P1}:{S_P1+1}]')
    for r in (44, S_AB, S_BB, S_OUT, 50, 52, 56): o(f's_mov_b64 s[{r}:{r+1}], s[{S_PX}:{S_PX+1}]')
    for i in range(8): o(f'v_mov_b32 v{G_AOFF+i}, 0')
    o(f'v_mov_b32 v{V_DADDR}, 0')
    o(f's_cmp_ge_u32 s{S_GRP}, 4')
    o('s_cbranch_scc1 L_bulk_nx2')
    o('s_waitcnt vmcnt(0)')
    tid_expr(o, 24, [(0, 6, 512), (6, 2, 64)], const=131072)
    for k in range(4):
        for h in range(2): o(f'ds_write_b128 v24, {vr(GX+8*k+4*h,4)} offset:{h*256 + k*16}')
    o('s_waitcnt lgkmcnt(0)')
    o('s_barrier')
    tid_expr(o, 28, [(0, 6, 16), (6, 2, 8192)])
    o('v_add_u32 v24, 131072, v28')
    for k in range(8): o(f'ds_read_b128 {vr(XD+4*k,4)}, v24 offset:{k*1024}')
    s_expr(o, 54, [(13, 32768)], const=WS_XB)
    s_add64(o, 56, S_WS, 's54')
    o('v_add_u32 v29, 4096, v28')
    o('s_waitcnt lgkmcnt(0)')
    for k in range(8): o(f'global_store_dwordx4 v{28+(k>>2)}, {vr(XD+4*k,4)}, s[56:57] offset:{(k&3)*1024} sc1')
    WU = 104
    for k in range(8):
        o(f'v_lshlrev_b32 v{WU+2*k}, 16, v{GW+k}')
        o(f'v_and_b32 v{WU+2*k+1}, 0xffff0000, v{GW+k}')
    for r in range(4):
        A = 120 + 2*r
        for k in range(8):
            x = GX + 8*r + k
            o(f'v_lshlrev_b32 v24, 16, v{x}')
            o(f'v_and_b32 v25, 0xffff0000, v{x}')
            o(f'v_pk_mul_f32 v[24:25], v[24:25], {vr(WU+2*k,2)}')
            o('v_cvt_pk_bf16_f32 v26, v24, v25')
            if k == 0:
                o(f'v_lshlrev_b32 v{A}, 16, v26')
                o(f'v_and_b32 v{A+1}, 0xffff0000, v26')
            else:
                o('v_lshlrev_b32 v24, 16, v26')
                o('v_and_b32 v25, 0xffff0000, v26')
                o(f'v_pk_add_f32 {vr(A,2)}, {vr(A,2)}, v[24:25]')
        o(f'v_add_f32 v{A}, v{A}, v{A+1}')
    for dpp in ('quad_perm:[1,0,3,2]', 'quad_perm:[2,3,0,1]', 'row_half_mirror', 'row_mirror'):
        for r in range(4): o(f'v_add_f32_dpp v{120+2*r}, v{120+2*r}, v{120+2*r} {dpp} row_mask:0xf bank_mask:0xf')
    for sw in ('16', '32'):
        for r in range(4): o(f'v_mov_b32 v{121+2*r}, v{120+2*r}')
        for r in range(4): o(f'v_permlane{sw}_swap_b32 v{120+2*r}, v{121+2*r}')
        for r in range(4): o(f'v_add_f32 v{120+2*r}, v{120+2*r}, v{121+2*r}')
    o(f's_mov_b32 s54, {0xbfb8aa3b:#x}')
    for r in range(4):
        A = 120 + 2*r
        o(f'v_cvt_pk_bf16_f32 v{A}, v{A}, v{A}')
        o(f'v_and_b32 v{A}, 0xffff0000, v{A}')
        o(f'v_mul_f32 v{A}, s54, v{A}')
        o(f'v_exp_f32 v{A}, v{A}')
        o(f'v_add_f32 v{A}, 1.0, v{A}')
        o(f'v_rcp_f32 v{A}, v{A}')
        o(f'v_cvt_pk_bf16_f32 v{A}, v{A}, v{A}')
        o(f'v_and_b32 v{A}, 0xffff0000, v{A}')
        o(f'v_sub_f32 v{A+1}, 1.0, v{A}')
        o(f'v_cvt_pk_bf16_f32 v{A+1}, v{A+1}, v{A+1}')
        o(f'v_and_b32 v{A+1}, 0xffff0000, v{A+1}')
    s_expr(o, 54, [(13, 128), (S_W, 32)], const=WS_G)
    o('v_mov_b32 v24, s54')
    o('s_mov_b64 exec, 1')
    o(f'global_store_dwordx4 v24, v[120:123], s[{S_WS}:{S_WS+1}] sc1')
    o(f'global_store_dwordx4 v24, v[124:127], s[{S_WS}:{S_WS+1}] offset:16 sc1')
    o('s_mov_b64 exec, -1')
    o('s_lshr_b32 s54, s13, 4')
    s_expr(o, 54, [(54, 128)], const=cnt(C_X))
    o(f'v_mov_b32 v{V_SIG}, s54')
    o('s_mov_b32 s39, s38')
    tid_expr(o, G_T, [(0, 2, 4), (2, 1, 128)])
    poll_ge(o, 'L_bulk_tk', G_T, S_DBG, 32, D_TICK*4, sleep=1)
    o('L_bulk_nx2:')
    if stamp:
        s_expr(o, 54, [(S_GRP, 32*256), (11, 256)], const=WS_STAMP + 17*MB)
        o('v_mov_b32 v250, s54')
    o('L_bulk_item:')
    if stamp:
        o('s_memrealtime s[90:91]')
        o('s_waitcnt lgkmcnt(0)')
        o('s_sub_u32 s90, s90, s94')
        o('v_mov_b32 v248, s90')
        o(f'v_mov_b32 v249, s{S_CURI}')
        o('s_mov_b64 exec, 1')
        o('global_store_dwordx2 v250, v[248:249], s[4:5]')
        o('s_mov_b64 exec, -1')
        o('v_add_u32 v250, 8, v250')
    decode(o, S_CURI)
    o(f's_cmp_eq_u32 s{S_TY}, {T_END}')
    o('s_cbranch_scc1 L_bulk_end')
    o(f's_cmp_lg_u32 s{S_PF}, 0')
    o('s_cbranch_scc1 L_bulk_go')
    o(f's_cmp_eq_u32 s{S_TY}, {T_POOL}')
    o('s_cbranch_scc0 L_bulk_np')
    flush_sig(o)
    o(f's_and_b32 s54, s{S_CT}, 7')
    s_expr(o, 54, [(54, 128)], const=cnt(C_POOL))
    o(f'v_mov_b32 v{G_T}, s54')
    o(f's_cmp_lg_u32 s{S_W}, 0')
    o('s_cbranch_scc1 L_pool_w')
    o('s_mov_b64 exec, 1')
    o(f'global_atomic_add v{G_T+1}, v{G_T}, v{V_ONE}, s[{S_WS}:{S_WS+1}] sc0')
    o('s_waitcnt vmcnt(0)')
    o(f'ds_write_b32 v{V_LDEP0}, v{G_T+1}')
    o('s_mov_b64 exec, -1')
    o('s_waitcnt lgkmcnt(0)')
    o('L_pool_w:')
    o('s_barrier')
    o(f'ds_read_b32 v{G_T+1}, v{V_LDEP0}')
    o('s_waitcnt lgkmcnt(0)')
    o(f'v_readfirstlane_b32 s54, v{G_T+1}')
    o('s_mov_b32 s29, 0')
    o('s_cmp_ge_u32 s54, 16')
    o('s_cbranch_scc1 L_bulk_adv3')
    o(f's_bitcmp1_b32 s{S_CT}, 5')
    o(f's_cselect_b32 s29, 0, s{S_CURI}')
    o(f's_andn2_b32 s{S_CURI}, s{S_CURI}, {32 << 8}')
    o('s_lshr_b32 s55, s54, 2')
    o('s_and_b32 s54, s54, 3')
    s_expr(o, 56, [(55, (1 << 4) + (1 << 26)), (54, 8 << 8)])
    o(f's_add_u32 s{S_CURI}, s{S_CURI}, s56')
    o(f's_sub_u32 s{S_CURI}, s{S_CURI}, {T_POOL - T_AT1}')
    decode(o, S_CURI)
    o('L_bulk_np:')
    flush_sig(o)
    o(f's_bfe_u32 s54, s{S_CURI}, 0x6000e')
    o(f's_bfe_u32 s37, s{S_CURI}, 0x60014')
    s_expr(o, 54, [(54, 128)], const=WS_CNT)
    o(f'v_mov_b32 v{G_T+8}, s54')
    o(f's_cmp_ge_u32 s{S_TY}, {T_ATT}')
    o('s_cbranch_scc1 L_bulk_nb')
    o(f'global_load_dword v{V_DEP}, v{G_T+8}, s[{S_WS}:{S_WS+1}] sc1')
    set_dma(o, 'L_sd0', S_CURI, True)
    prologue_dma(o, S88, 'sc1', 'B')
    o('s_waitcnt vmcnt(16)')
    o(f'v_cmp_gt_u32 vcc, s37, v{V_DEP}')
    o('s_cbranch_vccz L_bulk_dep_ok')
    o('L_bulk_nb:')
    poll_ge(o, 'L_bulk_dep', G_T+8, S_WS, 's37', sleep=3)
    o(f's_cmp_ge_u32 s{S_TY}, {T_ATT}')
    o('s_cbranch_scc1 L_att')
    o('s_barrier')
    o(f's_cmp_ge_u32 s{S_TY}, {T_DA4}')
    o('s_cbranch_scc1 L_bulk_first')
    prologue_dma(o, S88, 'sc1', 'A')
    o('s_branch L_bulk_p2')
    o('L_bulk_first:')
    prologue_dma(o, S48, 'sc1', 'A')
    o('L_bulk_p2:')
    o(f's_cmp_eq_u32 s{S_TY}, {T_DK}')
    o('s_cbranch_scc0 L_bulk_nw')
    o(f's_lshr_b32 s55, s{S_CT}, 3')
    o(f's_and_b32 s56, s{S_CT}, 7')
    o(f's_and_b32 s57, s{S_RB}, 3')
    s_expr(o, 54, [(55, 2*MB), (56, 256), (57, 256*2048)])
    tid_expr(o, G_T, [(1, 7, 2048), (0, 1, 128)], sregs=[54])
    o(f'global_load_dword v{V_TK}, v{G_T}, s[{S_PO}:{S_PO+1}]')
    o(f'v_add_u32 v{G_T}, {128*2048}, v{G_T}')
    o(f'global_load_dword v{V_TK}, v{G_T}, s[{S_PO}:{S_PO+1}]')
    o('s_waitcnt vmcnt(2)')
    o('s_branch L_bulk_go')
    o('L_bulk_nw:')
    o('s_waitcnt vmcnt(0)')
    o('L_bulk_go:')
    o(f's_bfe_u32 s54, s{S_NXTI}, 0x6000e')
    s_expr(o, 54, [(54, 128)], const=WS_CNT)
    o(f'v_mov_b32 v{V_DADDR}, s54')
    o(f's_lshr_b32 s{S_SIGN}, s{S_CURI}, 26')
    o(f's_lshr_b32 s55, s{S_W}, 1')
    o(f's_and_b32 s56, s{S_W}, 1')
    o(f's_and_b32 s{S_CT}, s{S_CT}, 31')
    o(f's_sub_u32 s54, s{S_TY}, {T_DA}')
    o('s_cmp_lt_u32 s54, 2')
    o('s_cbranch_scc1 L_g_db')
    o(f'v_mov_b32 v{G_ARD}, v{C_RDB}')
    o(f's_mov_b32 s{S_CNT}, 6')
    o(f's_cmp_eq_u32 s{S_TY}, {T_UP}')
    o('s_cbranch_scc1 L_g_up')
    for i in range(8): o(f'v_mov_b32 v{G_BRD+i}, v{C_BRN+i}')
    o(f's_cmp_ge_u32 s{S_TY}, {T_DA4}')
    o('s_cbranch_scc1 L_g_small')
    o(f's_cmp_eq_u32 s{S_TY}, {T_DB}')
    o('s_cbranch_scc0 L_g_qkv')
    o(f's_mov_b32 s{S_CNT}, 26')
    s_expr(o, 54, [(S_RB, 16*32*1024), (55, 8*32*1024), (S_CT, 8192), (56, 4096)], const=WS_T2)
    s_add64(o, S_OUT, S_WS, 's54')
    s_expr(o, 54, [(S_RB, 2048), (55, 512)])
    s_add64(o, 44, S_WS, 's54')
    o('s_branch L_g_tr')
    o('L_g_qkv:')
    o(f's_sub_u32 s57, s{S_TY}, 1')
    s_expr(o, 54, [(57, 16*MB), (S_RB, 8*SS), (55, 4*SS), (S_CT, 2*HS), (56, HS)])
    s_add64(o, S_OUT, S_WS, 's54')
    o(f's_cmp_eq_u32 s{S_TY}, {T_V}')
    o('s_cbranch_scc1 L_g_v')
    o('s_branch L_g_tr')
    o('L_g_up:')
    for i in range(8): o(f'v_mov_b32 v{G_BRD+i}, v{C_BRS+i}')
    s_expr(o, 54, [(S_RB, 16*112*1024), (55, 8*112*1024), (S_CT, 4096), (56, 2048)], const=WS_H)
    s_add64(o, S_OUT, S_WS, 's54')
    def hook(P):
        o(f's_mov_b32 s36, s{S_TY}')
        decode(o, S_NXTI)
        o(f's_mov_b32 s{S_PF}, 1')
        o(f's_sub_u32 s54, s{S_TY}, 1')
        o('s_cmp_lt_u32 s54, 6')
        o(f's_cbranch_scc0 {P}_no')
        o(f'ds_read_b128 {vr(G_T,4)}, v{V_LDEP0}')
        o(f's_bfe_u32 s55, s{S_NXTI}, 0x60014')
        o('s_waitcnt lgkmcnt(0)')
        o(f'v_min3_u32 v{G_T}, v{G_T}, v{G_T+1}, v{G_T+2}')
        o(f'v_min_u32 v{G_T}, v{G_T}, v{G_T+3}')
        o(f'v_readfirstlane_b32 s54, v{G_T}')
        o('s_cmp_ge_u32 s54, s55')
        o(f's_cbranch_scc1 {P}_pf')
        o(f'{P}_no:')
        o(f's_mov_b32 s{S_PF}, 0')
        o(f's_mov_b32 s{S_TY}, {T_Q}')
        o(f's_mov_b32 s{S_RB}, 0')
        o(f's_mov_b32 s{S_CT}, 0')
        o(f'{P}_pf:')
        set_dma(o, P + '_sd', S_NXTI)
        o(f's_cmp_eq_u32 s{S_PF}, 0')
        o(f's_cselect_b64 s[{S_AB}:{S_AB+1}], s[{S_PX}:{S_PX+1}], s[{S_AB}:{S_AB+1}]')
        o('s_cselect_b32 s54, 0, -1')
        o(f's_and_b32 s{S_BST}, s{S_BST}, s54')
        for i in range(8): o(f'v_and_b32 v{G_AOFF+i}, s54, v{G_AOFF+i}')
    def depload():
        return [f'global_load_dword v{V_DEP}, v{V_DADDR}, s[{S_WS}:{S_WS+1}] sc1']
    depw = [f'ds_write_b32 v{V_LDEP}, v{V_DEP}']
    def warm(P):
        o('s_add_u32 s42, s42, 1')
        o('s_mov_b32 s43, 0')
        o('s_cmp_ge_u32 s42, 2')
        o(f's_cbranch_scc1 {P}_nw')
        s_expr(o, 54, [(S_GRP, 32*57344), (11, 57344)])
        tid_expr(o, V_TA, [(0, 4, 128), (6, 2, 14336)], sregs=[54])
        o('s_cmp_eq_u32 s42, 0')
        o(f's_cselect_b64 s[48:49], s[{S_P1}:{S_P1+1}], s[{S_P2}:{S_P2+1}]')
        o(f's_cselect_b64 s[8:9], s[{S_P3}:{S_P3+1}], s[{S_P2}:{S_P2+1}]')
        o('s_mov_b32 s43, 7')
        o(f'{P}_nw:')
    def touch(second):
        _n[0] += 1
        adv = f'    s_sub_u32 s43, s43, 1\n    v_add_u32 v{V_TA}, 2048, v{V_TA}\n' if second else ''
        return [f's_cmp_eq_u32 s43, 0\n    s_cbranch_scc1 L_tch{_n[0]}\n    global_load_dword v{V_TK}, v{V_TA}, {"s[8:9]" if second else "s[48:49]"}\n{adv}L_tch{_n[0]}:\n    s_nop 0']
    def tk(k):
        if stamp: o(f's_memtime s[{80+2*k}:{81+2*k}]')
    def finish(nst):
        s_expr(o, 54, [(S_SIGN, 128)], const=WS_CNT)
        o(f'v_mov_b32 v{V_SIG}, s54')
        o(f's_cmp_eq_u32 s{S_SIGN}, {C_DUMMY}')
        o('s_cselect_b32 s39, 0, s38')
        o(f's_waitcnt vmcnt({nst})')
        if stamp:
            tk(4)
            o('s_waitcnt lgkmcnt(0)')
            for k in range(4):
                o(f's_sub_u32 s54, s{82+2*k}, s{80+2*k}')
                o(f'v_mov_b32 v{G_T+k}, s54')
            o('v_lshlrev_b32 v251, 1, v250')
            o(f'v_subrev_u32 v251, {WS_STAMP + 16*MB + 16}, v251')
            o('s_mov_b64 exec, 1')
            o(f'global_store_dwordx4 v251, {vr(G_T,4)}, s[4:5]')
            o('s_mov_b64 exec, -1')
        o('s_branch L_bulk_adv')
    def run(P, sh, tr, asc, pre=None):
        tk(0)
        body_first(o, sh, tr, asc, [SIG()] + depload())
        tk(1)
        T_ = (lambda s: touch(s)) if (sh is S88 and gemm2.EXP.get('btouch')) else (lambda s: [])
        body_mid(o, P, sh, tr, asc, depw + T_(False), depload() + T_(True), T_(True), T_(False))
        tk(2)
        if pre: pre()
        hook(P + '_h')
        body_last(o, sh, tr)
        tk(3)
    o('L_g_tr:')
    run('L_g_tr', S88, True, 'sc1')
    o(f's_cmp_eq_u32 s36, {T_UP}')
    o('s_cbranch_scc1 L_e_up')
    o(f's_cmp_eq_u32 s36, {T_DB}')
    o('s_cbranch_scc1 L_e_db')
    finish(epi_blocked(o, 'qk', S_OUT))
    o('L_e_up:')
    finish(epi_up(o, S_OUT))
    o('L_e_db:')
    for mt in range(8): o(f'global_load_dwordx2 {vr(160+2*mt,2)}, v{V_GADDR}, s[44:45] offset:{mt*128} sc1')
    o('s_waitcnt vmcnt(0)')
    finish(epi_db(o, S_OUT, 160))
    o('L_g_v:')
    run('L_g_v', S88, False, 'sc1')
    finish(epi_blocked(o, 'v', S_OUT))
    o('L_g_small:')
    o(f's_sub_u32 s57, s{S_TY}, {T_KS - 1}')
    s_expr(o, 54, [(57, 16*MB), (S_RB, 4*SS), (55, 2*SS), (S_CT, 2*HS), (56, HS)])
    s_add64(o, S_OUT, S_WS, 's54')
    o(f's_cmp_eq_u32 s{S_TY}, {T_VS}')
    o('s_cbranch_scc1 L_g_vs')
    o(f's_cmp_eq_u32 s{S_TY}, {T_DA4}')
    o('s_cbranch_scc0 L_g_ks')
    o(f's_mov_b32 s{S_CNT}, 30')
    s_expr(o, 54, [(S_RB, 8*32*1024), (55, 4*32*1024), (S_CT, 8192), (56, 4096)], const=WS_T2)
    s_add64(o, S_OUT, S_WS, 's54')
    s_expr(o, 54, [(S_RB, 128*2048), (S_CT, 512), (56, 128)])
    s_add64(o, 44, S_POUT, 's54')
    o(f's_lshl_b32 s54, s{S_RB}, 10')
    s_add64(o, 46, S_WS, 's54')
    for mt in range(4): o(f'global_load_dwordx2 {vr(V_GV+2*mt,2)}, v{V_GADDR}, s[46:47] offset:{mt*128} sc1')
    o('L_g_ks:')
    def t2load4():
        o(f's_cmp_eq_u32 s{S_TY}, {T_DA4}')
        o('s_cbranch_scc0 L_g_k3')
        o(f's_lshr_b32 s54, s{S_RB}, 1')
        s_expr(o, 54, [(54, 128)], const=cnt(C_B))
        o(f'v_mov_b32 v{G_T}, s54')
        poll_ge(o, 'L_bulk_dep4', G_T, S_WS, 4, allw=True, sleep=4)
        for mt in range(4):
            for q in range(4): o(f'global_load_dwordx4 {ar(128+16*mt+4*q,4)}, v{G_L16}, s[{S_OUT}:{S_OUT+1}] offset:{q*1024} sc1')
            if mt < 3: s_add64(o, S_OUT, S_OUT, 32*1024)
        o('L_g_k3:')
    run('L_g_ks', S48, True, 'sc1', t2load4)
    o(f's_cmp_eq_u32 s36, {T_DA4}')
    o('s_cbranch_scc1 L_e_da4')
    finish(epi_blocked(o, 'qk', S_OUT, S48))
    o('L_e_da4:')
    o('s_waitcnt vmcnt(32)')
    finish(epi_da(o, S_OUT, V_GV, 44, C_OUT, 4, S48, 128))
    o('L_g_vs:')
    run('L_g_vs', S48, False, 'sc1')
    finish(epi_blocked(o, 'v', S_OUT, S48))
    o('L_g_db:')
    o(f'v_mov_b32 v{G_ARD}, v{C_RDB}')
    for i in range(8): o(f'v_mov_b32 v{G_BRD+i}, v{C_BRS+i}')
    o(f's_lshr_b32 s13, s{S_CT}, 3')
    o(f's_and_b32 s12, s{S_CT}, 7')
    s_expr(o, 54, [(S_RB, 8*32*1024), (55, 4*32*1024), (12, 4096), (56, 2048), (13, 32*1024)], const=WS_T2)
    s_add64(o, S_OUT, S_WS, 's54')
    s_expr(o, 54, [(S_RB, 128*2048), (12, 256), (13, 16*2048)])
    s_add64(o, 44, S_POUT, 's54')
    s_expr(o, 15, [(S_RB, 8), (12, 1)])
    o(f's_cmp_eq_u32 s{S_TY}, {T_DK}')
    o('s_cselect_b32 s54, 2, 14')
    o(f's_mov_b32 s{S_CNT}, s54')
    s_expr(o, 54, [(S_RB, 1024), (13, 128)])
    s_add64(o, 46, S_WS, 's54')
    for mt in range(4): o(f'global_load_dwordx2 {vr(V_GV+2*mt,2)}, v{V_GADDR}, s[46:47] offset:{mt*128} sc1')
    def t2load():
        o(f's_cmp_eq_u32 s{S_TY}, {T_DA}')
        o('s_cbranch_scc0 L_g_d3')
        o(f's_lshr_b32 s54, s{S_RB}, 1')
        s_expr(o, 54, [(54, 128)], const=cnt(C_B))
        o(f'v_mov_b32 v{G_T}, s54')
        poll_ge(o, 'L_bulk_dep2', G_T, S_WS, 4, allw=True, sleep=4)
        for mt in range(4):
            for q in range(2): o(f'global_load_dwordx4 {ar(64+8*mt+4*q,4)}, v{G_L16}, s[{S_OUT}:{S_OUT+1}] offset:{q*1024} sc1')
            if mt < 3: s_add64(o, S_OUT, S_OUT, 32*1024)
        o('L_g_d3:')
    run('L_g_d', S44, True, 'sc1', t2load)
    o(f's_cmp_eq_u32 s36, {T_DA}')
    o('s_cbranch_scc1 L_e_da')
    o('s_branch L_e_dk')
    o('L_e_da:')
    o('s_waitcnt vmcnt(32)')
    finish(epi_da(o, S_OUT, V_GV, 44, C_OUT))
    o('L_e_dk:')
    s_expr(o, 54, [(15, 262144), (S_W, 4096)], const=WS_PS)
    s_add64(o, 46, S_WS, 's54')
    for r in range(1, 4):
        o(f's_add_u32 s54, s13, {r}')
        o('s_and_b32 s54, s54, 3')
        s_expr(o, 54, [(54, 65536)], const=(r-1)*16384)
        s_add64(o, 50, 46, 's54')
        for k in range(4): o(f'global_store_dwordx4 v{G_L16}, {ar(16*r+4*k,4)}, s[50:51] offset:{k*1024} sc1')
    s_expr(o, 54, [(15, 128)], const=cnt(C_TILE))
    o(f'v_mov_b32 v{V_SIG}, s54')
    o('s_lshr_b32 s54, s15, 4')
    s_expr(o, 54, [(54, 128)], const=cnt(C_B))
    o(f'v_mov_b32 v{G_T}, s54')
    o(f'global_load_dword v{G_T+1}, v{G_T}, s[{S_WS}:{S_WS+1}] sc1')
    o('s_waitcnt vmcnt(0)')
    o('s_barrier')
    o(f's_cmp_lg_u32 s{S_W}, 0')
    o('s_cbranch_scc1 L_dk_w_ok')
    o('s_mov_b64 exec, 1')
    o(f'global_atomic_add v{V_DEP}, v{V_SIG}, v{V_ONE}, s[{S_WS}:{S_WS+1}] sc0')
    o('s_waitcnt vmcnt(0)')
    o(f'v_cmp_gt_u32 vcc, 3, v{V_DEP}')
    o('s_mov_b64 exec, -1')
    o('s_cbranch_vccz L_dk_w_ok')
    poll_ge(o, 'L_dk_w', V_SIG, S_WS, 4, sleep=0, allw=True)
    o(f'v_cmp_gt_u32 vcc, 4, v{G_T+1}')
    o('s_cbranch_vccz L_dk_b_ok')
    poll_ge(o, 'L_dk_b', G_T, S_WS, 4, sleep=2, allw=True)
    for q in range(2): o(f'global_load_dwordx4 {ar(64+4*q,4)}, v{G_L16}, s[{S_OUT}:{S_OUT+1}] offset:{q*1024} sc1')
    o('s_lshl_b32 s54, s13, 16')
    s_add64(o, 46, 46, 's54')
    P0 = G_FA + 64
    o('s_barrier')
    for p in range(3):
        for k in range(4): o(f'global_load_dwordx4 {vr(P0+16+16*p+4*k,4)}, v{G_L16}, s[46:47] offset:{k*1024} sc1')
        if p < 2: s_add64(o, 46, 46, 16384)
    for i in range(16): o(f'v_accvgpr_read_b32 v{P0+i}, a{i}')
    o('s_waitcnt vmcnt(8)')
    for i in range(8): o(f'v_pk_add_f32 {vr(P0+2*i,2)}, {vr(P0+2*i,2)}, {vr(P0+16+2*i,2)}')
    o('s_waitcnt vmcnt(0)')
    for i in range(8): o(f'v_pk_add_f32 {vr(P0+32+2*i,2)}, {vr(P0+32+2*i,2)}, {vr(P0+48+2*i,2)}')
    for i in range(8): o(f'v_pk_add_f32 {vr(P0+2*i,2)}, {vr(P0+2*i,2)}, {vr(P0+32+2*i,2)}')
    for i in range(16): o(f'v_accvgpr_write_b32 a{i}, v{P0+i}')
    finish(epi_da(o, S_OUT, V_GV, 44, C_OUT, 1))
    o('L_bulk_adv:')
    o('s_cmp_lg_u32 s41, 0')
    o('s_cbranch_scc1 L_bulk_adv2')
    o('s_mov_b32 s41, 1')
    flush_sig(o)
    o('L_bulk_adv2:')
    warm('L_w')
    o('L_bulk_adv3:')
    o('s_cmp_eq_u32 s29, 0')
    o('s_cbranch_scc1 L_bulk_adv4')
    o(f's_mov_b32 s{S_CURI}, s29')
    o('s_branch L_bulk_item')
    o('L_bulk_adv4:')
    o(f's_mov_b32 s{S_CURI}, s{S_NXTI}')
    s_add64(o, S_TAB, S_TAB, 4)
    o(f's_load_dword s{S_NXTI}, s[{S_TAB}:{S_TAB+1}], 4')
    o('s_waitcnt lgkmcnt(0)')
    o('s_branch L_bulk_item')
    gen_att(o)
    o('L_bulk_bail:')
    o(f'global_atomic_add v{V_ZERO}, v{V_ONE}, s[{S_DBG}:{S_DBG+1}] offset:{D_BAIL*4}')
    o('s_endpgm')
    o('L_bulk_end:')
    flush_sig(o)
    if gemm2.EXP.get('diag'): diag(o, 0)
    o('s_waitcnt vmcnt(0)')
    o('s_endpgm')

def gen_att(o):
    T = G_T
    o('L_att:')
    o(f's_cmp_eq_u32 s{S_TY}, {T_WARM}')
    o('s_cbranch_scc0 L_att0')
    s_expr(o, 54, [(S_CT, 229376)])
    tid_expr(o, T, [(0, 8, 128)], sregs=[54])
    for k in range(7):
        o(f'global_load_dword v{V_TK}, v{T}, s[{S_P2}:{S_P2+1}]')
        if k < 6: o(f'v_add_u32 v{T}, 32768, v{T}')
    o(f's_mov_b32 s{S_PF}, 0')
    o('s_branch L_bulk_adv3')
    o('L_att0:')
    o(f's_lshr_b32 s13, s{S_CT}, 3')
    s_expr(o, 13, [(13, 1), (S_RB, 4)])
    o(f's_and_b32 s36, s{S_CT}, 7')
    s_expr(o, 36, [(36, 4), (S_W, 1)])
    o('s_barrier')
    o('s_lshr_b32 s54, s36, 1')
    s_expr(o, 54, [(54, 1024)], const=WS_PROG)
    tid_expr(o, 51, [(0, 3, 128)], sregs=[54])
    o('s_and_b32 s37, s13, 0xf8')
    o('s_add_u32 s37, s37, 1')
    poll_ge(o, 'L_att_p', 51, S_WS, 's37', allw=True)
    o('s_add_u32 s37, s13, 1')
    s_expr(o, 54, [(13, SS), (36, HS)])
    s_add64(o, 44, S_WS, 's54')
    s_add64(o, 46, 44, WS_K)
    s_add64(o, 16, 44, WS_VT)
    s_expr(o, 54, [(13, SS//4), (36, HS//4)], const=WS_KM)
    s_add64(o, 50, S_WS, 's54')
    s_add64(o, 52, 50, WS_VMT - WS_KM)
    s_expr(o, 54, [(13, 2*128*1024), (36, 4096)], const=WS_O)
    s_add64(o, S_OUT, S_WS, 's54')
    VKM = 60; VVM = 61; MSK = 56; SC = 62; ONES = 52
    tid_expr(o, VKM, [(4, 2, 128), (2, 2, 32), (0, 1, 16)])
    tid_expr(o, VVM, [(0, 6, 4)])
    tid_expr(o, T, [(4, 2, 4)])
    o(f'v_and_b32 v{T+1}, 15, v0')
    o(f'v_mov_b32 v{T+2}, 0xff800000')
    for i in range(4):
        o(f'v_add_u32 v{T+3}, {i}, v{T}')
        o(f'v_cmp_le_u32 vcc, v{T+3}, v{T+1}')
        o(f'v_cndmask_b32 v{MSK+i}, v{T+2}, 0, vcc')
        o(f'v_mov_b32 v{ONES+i}, 0x3f803f80')
    o(f'v_mov_b32 v{SC}, {SCALE_LOG2E:#x}')
    o(f'v_mov_b32 v{SC+1}, {SCALE_LOG2E:#x}')
    for b in range(2):
        for et in range(8): o(f'v_accvgpr_write_b32 a{128*b + 112 + 2*et + 1}, 0')
    NL = 8 + 8 + 4 + 8 + 8
    def loads(b, part=3):
        B = 128*b
        if part != 3:
            if part == 1:
                for (base, sb) in ((0, 44), (32, 46), (64, 16)):
                    for k in range(8): o(f'global_load_dwordx4 {ar(B+base+4*k,4)}, v{G_L16+(k>>2)}, s[{sb}:{sb+1}] offset:{(k&3)*1024} sc1')
                for r in (44, 46, 16): s_add64(o, r, r, SS)
            else:
                for k in range(4): o(f'global_load_dwordx4 {ar(B+96+4*k,4)}, v{VKM}, s[50:51] offset:{k*512} sc1')
                for k in range(8): o(f'global_load_dword a{B+112+2*k}, v{VVM}, s[52:53] offset:{k*256} sc1')
                for r in (50, 52): s_add64(o, r, r, SS//4)
            return
        for k in range(8): o(f'global_load_dwordx4 {ar(B+4*k,4)}, v{G_L16+(k>>2)}, s[44:45] offset:{(k&3)*1024} sc1')
        for k in range(8): o(f'global_load_dwordx4 {ar(B+32+4*k,4)}, v{G_L16+(k>>2)}, s[46:47] offset:{(k&3)*1024} sc1')
        for k in range(4): o(f'global_load_dwordx4 {ar(B+96+4*k,4)}, v{VKM}, s[50:51] offset:{k*512} sc1')
        for k in range(8): o(f'global_load_dwordx4 {ar(B+64+4*k,4)}, v{G_L16+(k>>2)}, s[16:17] offset:{(k&3)*1024} sc1')
        for k in range(8): o(f'global_load_dword a{B+112+2*k}, v{VVM}, s[52:53] offset:{k*256} sc1')
        for r in (44, 46, 16): s_add64(o, r, r, SS)
        for r in (50, 52): s_add64(o, r, r, SS//4)
    S = 64
    Pp = 84
    Lr = 96
    O = 128
    D = 104
    def compute(b, st, more):
        B = 128*b
        Q = lambda t, e: ar(B + 4*(t*4+e), 4)
        K = lambda t, e: ar(B + 32 + 4*(t*4+e), 4)
        V = lambda et, n=4: ar(B + 64 + 4*et, n)
        KM = lambda e: ar(B + 96 + 4*e, 4)
        VM = lambda et: ar(B + 112 + 2*et, 2)
        o(f's_waitcnt vmcnt({st + 16})')
        if more: loads(b ^ 1)
        for e in range(4):
            for (d, a, q, c0) in ((S, K(0, e), Q(0, e), vr(MSK, 4)), (S+4, KM(e), Q(0, e), '0'), (S+8, K(0, e), Q(1, e), '0'), (S+12, K(1, e), Q(1, e), vr(MSK, 4)), (S+16, KM(e), Q(1, e), '0')):
                o(f'v_mfma_f32_16x16x32_bf16 {vr(d,4)}, {a}, {q}, {c0 if e == 0 else vr(d,4)}')
        for tq in range(2):
            vals = [S, S+1, S+2, S+3, S+4, S+5] if tq == 0 else list(range(S+8, S+18))
            m = T + 2*tq
            o(f'v_max3_f32 v{m}, v{vals[0]}, v{vals[1]}, v{vals[2]}')
            for i in range(3, len(vals)-1, 2): o(f'v_max3_f32 v{m}, v{m}, v{vals[i]}, v{vals[i+1]}')
            o(f'v_max_f32 v{m}, v{m}, v{vals[-1]}')
        for sw in ('32', '16'):
            for tq in range(2): o(f'v_mov_b32 v{T+2*tq+1}, v{T+2*tq}')
            for tq in range(2): o(f'v_permlane{sw}_swap_b32 v{T+2*tq}, v{T+2*tq+1}')
            for tq in range(2): o(f'v_max_f32 v{T+2*tq}, v{T+2*tq}, v{T+2*tq+1}')
        for tq in range(2): o(f'v_mul_f32 v{T+2*tq}, v{SC}, v{T+2*tq}')
        for tq in range(2):
            prs = [S, S+2, S+4] if tq == 0 else [S+8, S+10, S+12, S+14, S+16]
            dst = [Pp, Pp+1, Pp+2] if tq == 0 else [Pp+4, Pp+5, Pp+6, Pp+7, Pp+8]
            for r in prs: o(f'v_pk_fma_f32 {vr(r,2)}, {vr(r,2)}, {vr(SC,2)}, {vr(T+2*tq,2)} op_sel_hi:[1,1,0] neg_lo:[0,0,1] neg_hi:[0,0,1]')
            for r in prs:
                o(f'v_exp_f32 v{r}, v{r}'); o(f'v_exp_f32 v{r+1}, v{r+1}')
            for r, d in zip(prs, dst): o(f'v_cvt_pk_bf16_f32 v{d}, v{r}, v{r+1}')
        o(f's_waitcnt vmcnt({max(0, st + (NL if more else 0))})')
        o(f'v_mfma_f32_16x16x32_bf16 {vr(Lr,4)}, {vr(ONES,4)}, {vr(Pp,4)}, 0')
        o(f'v_mfma_f32_16x16x32_bf16 {vr(Lr+4,4)}, {vr(ONES,4)}, {vr(Pp+4,4)}, 0')
        for et in range(8):
            o(f'v_mfma_f32_16x16x16_bf16 {vr(O+4*et,4)}, {V(et,2)}, {vr(Pp,2)}, 0')
        o(f'v_mfma_f32_16x16x16_bf16 {vr(Lr+4,4)}, {vr(ONES,2)}, {vr(Pp+8,2)}, {vr(Lr+4,4)}')
        for et in range(8):
            o(f'v_mfma_f32_16x16x16_bf16 {vr(O+4*et,4)}, {VM(et)}, {vr(Pp+2,2)}, {vr(O+4*et,4)}')
        o(f'v_rcp_f32 v{T}, v{Lr}')
        o(f'v_rcp_f32 v{T+2}, v{Lr+4}')
        for et in range(8):
            o(f'v_mfma_f32_16x16x32_bf16 {vr(O+32+4*et,4)}, {V(et)}, {vr(Pp+4,4)}, 0')
        for et in range(8):
            o(f'v_mfma_f32_16x16x16_bf16 {vr(O+32+4*et,4)}, {VM(et)}, {vr(Pp+8,2)}, {vr(O+32+4*et,4)}')
        for tq in range(2):
            for q in range(4):
                r = O + 32*tq + 8*q
                for i in range(4): o(f'v_pk_mul_f32 {vr(r+2*i,2)}, {vr(r+2*i,2)}, {vr(T+2*tq,2)} op_sel_hi:[1,0]')
                pack8(o, D + 4*q, r)
                o(f'global_store_dwordx4 v{G_L16}, {vr(D+4*q,4)}, s[{S_OUT}:{S_OUT+1}] offset:{q*1024} sc1')
            s_add64(o, S_OUT, S_OUT, 128*1024)
    o(f'v_mov_b32 v{Pp+3}, 0')
    o(f'v_mov_b32 v{Pp+9}, 0')
    o('s_add_u32 s12, s37, 1')
    o(f's_cmp_eq_u32 s{S_TY}, {T_AT1}')
    o('s_cbranch_scc1 L_att_sl')
    o('s_add_u32 s54, s37, 3')
    o(f'v_cmp_gt_u32 vcc, s54, v{V_DEP}')
    o('s_cbranch_vccnz L_att_slow')
    loads(0)
    compute(0, 0, True)
    compute(1, 8, True)
    compute(0, 8, True)
    compute(1, 8, False)
    o('s_branch L_att_end')
    o('L_att_slow:')
    o('s_add_u32 s12, s37, 4')
    o('L_att_sl:')
    loads(0, 1)
    poll_ge(o, 'L_att_p2', 51, S_WS, 's37', allw=True, sleep=3)
    loads(0, 2)
    compute(0, -8, False)
    o('s_add_u32 s37, s37, 1')
    o('s_cmp_lt_u32 s37, s12')
    o('s_cbranch_scc1 L_att_sl')
    o('L_att_end:')
    o(f's_lshr_b32 s54, s{S_CURI}, 26')
    s_expr(o, 54, [(54, 128)], const=WS_CNT)
    o(f'v_mov_b32 v{V_SIG}, s54')
    o('s_mov_b32 s39, s38')
    o(f's_cmp_eq_u32 s{S_TY}, {T_ATT}')
    o('s_cselect_b32 s54, 4, 1')
    o(f'v_mov_b32 v{V_INC}, s54')
    o(f's_mov_b32 s{S_PF}, 0')
    o('s_branch L_bulk_adv3')

def emit_table(o, tables):
    o.L.append('.p2align 4')
    o.L.append('.type L_table,@object')
    o('L_table:')
    for g in tables:
        for lst in g:
            o.L.append('    .long ' + ', '.join(hex(x) for x in lst))
```

```python
from layout import *
from util import *

SCALE_LOG2E = f2u(128 ** -0.5 * math.log2(math.e))
RS = 144; RED_P = 16 * RS; RO_P = 1280
L_RED = 0; L_RV = 9216; L_RO = 13312; L_VMO = 18432; L_KL = 20480
L_XB = 32768; L_PB = 0
(V_ARD, V_ORD, V_QKWR, V_QKRD, V_OWR, V_CWQ, V_CRD, V_CRD2, V_CRD3, V_MWR, V_LREDW, V_LREDW1, V_LREDR, V_LREDR2,
 V_LRVW, V_LRVR, V_LROW, V_LROR, V_LROR2, V_LVMO, V_IDX, V_LROQ, V_KMWR) = range(1, 24)
V_T = 24; V_STP = 27; V_PROG = 28; V_LVMO2 = 29; V_L16 = 30
V_SENT = 32; V_LKL = 34; V_LVL = 35; V_ONES = 36
V_A = 40; V_D = 56; V_E = 80; V_R = 88; V_QK = 104; V_S = 120; V_C = 120; V_P = 132; V_PUB = 132; V_SC = 138
V_O = 140; V_L = 144; V_VM = 148; V_KD = 150; V_VD = 151; V_VX = 152; V_KMW2 = 156; V_KD2 = 157; V_VD2 = 158; V_KX = 160
S_WS = 4; S_DBG = 6; S_X = 10; S_J = 11; S_HEAD = 12; S_ES = 13; S_W = 14; S_STEP = 15
S_CUR = 16; S_NXT = 18; S_RST = 20; S_KB = 22; S_VB = 24; S_KM = 26; S_VM = 28; S_MODE = 30
S_MQ = 32; S_SCALE = 36; S_NOSENT = 37; S_BUD = 40; S_RING = 42; S_XB = 44; S_CC = 62; S_JO = 46; S_EK = 47; S_TK = 48; S_TV = 50

def gen_chain(o, nsteps=64, stamp=False, DLY=None):
    D0 = dict(a=1, b=0, o=0, c=13, pa=14, po=14, pb=8, d3=8)
    D0.update(DLY or {}); DLY = D0
    stamps = stamp and not DLY.get('noflush')
    def st(k):
        if stamps: o(f"{'s_memrealtime' if DLY.get('rt') else 's_memtime'} s[{64+2*k}:{65+2*k}]")
    def flush():
        if not stamps: return
        o('s_waitcnt lgkmcnt(0)')
        for k in range(12): o(f'v_writelane_b32 v31, s{64+2*k}, {k}')
        o('s_mov_b64 exec, 0xffff')
        o(f'global_store_dword v{V_STP}, v31, s[4:5]')
        o('s_mov_b64 exec, -1')
        o(f'v_add_u32 v{V_STP}, 64, v{V_STP}')
    def nops(n):
        for _ in range(n // 2): o('s_nop 15')
        if n & 1: o('s_nop 7')
    def emit(l):
        for i in l: o(i)
    X = lambda *a, **k: tid_expr(o, *a, **k)
    def ps(k):
        if stamp:
            o('s_memrealtime s[80:81]')
            o('s_waitcnt lgkmcnt(0)')
            o(f'v_writelane_b32 v127, s80, {k}')
    LANE16 = (0, 6, 16)

    o('L_chain:')
    for reg, nm in ((64, 'Wq'), (66, 'Wk'), (68, 'Wv'), (70, 'Wo'), (72, 'mem0'), ):
        o(f's_load_dwordx2 s[{reg}:{reg+1}], s[0:1], {KA[nm]}')
    o(f's_lshr_b32 s{S_HEAD}, s{S_J}, 2')
    o(f's_lshl_b32 s54, s{S_X}, 3')
    o(f's_add_u32 s{S_HEAD}, s{S_HEAD}, s54')
    o(f's_and_b32 s{S_ES}, s{S_J}, 3')
    o(f's_mov_b32 s{S_BUD}, 0x200000')
    o(f's_xor_b32 s{S_JO}, s{S_J}, 8')
    o(f's_xor_b32 s{S_EK}, s{S_ES}, 2')
    WQ, WO, WT, TRN, TRO = 128, 129, 130, 131, 132
    s_expr(o, 54, [(S_HEAD, 256), (S_ES, 64)])
    X(WQ, [(6, 2, 1 << 21), (2, 4, 8192), (0, 2, 16)], sregs=[54])
    o(f'v_xor_b32 v126, 256, v{WQ}')
    o(f'v_xor_b32 v125, 128, v{WQ}')
    s_expr(o, 54, [(S_X, 1 << 21), (S_JO, 64)])
    X(WO, [(6, 2, 1 << 19), (2, 4, 2048), (0, 2, 16)], sregs=[54])
    s_expr(o, 76, [(S_W, 16384)], const=L_XB)
    o('s_waitcnt lgkmcnt(0)')
    def wdma(sb, va, step, sbase, off):
        o(f'v_mov_b32 v{WT}, v{va}')
        for it in range(16):
            o(f's_add_u32 m0, s{sbase}, {off + it*1024}')
            o('s_nop 0')
            o(f'global_load_lds_dwordx4 v{WT}, s[{sb}:{sb+1}]')
            if it < 15: o(f'v_add_u32 v{WT}, {step}, v{WT}')
    ps(0)
    MATS = dict(k=(66, 126, 16*8192, 2, True), v=(68, WQ, 16*8192, 4, True), q=(64, 125, 16*8192, 0, True), o=(70, WO, 16*2048, 6, False))
    ORD = DLY.get('ord', 'kvqo')
    def wl(i): m = MATS[ORD[i]]; wdma(m[0], m[1], m[2], 76, 65536*(i & 1))
    def wr(i):
        m = MATS[ORD[i]]; wread(m[3], (TRN + 2*(i & 1)) if m[4] else (TRO if i & 1 else 134), 0, m[4])
    wl(0)
    ps(1)
    X(V_L16, [LANE16])
    s_expr(o, 54, [(S_X, 16384)])
    X(V_ARD, [(6, 2, 4096), LANE16], const=R_MEM, sregs=[54])
    o(f'v_add_u32 v{V_ORD}, {R_OB - R_MEM}, v{V_ARD}')
    s_expr(o, 55, [(S_HEAD, 4096)], const=R_QK)
    o(f'v_add_u32 v{V_QKRD}, s55, v{V_L16}')
    s_expr(o, 56, [(S_ES, 1024)])
    X(V_QKWR, [(0, 8, 4)], sregs=[55, 56])
    X(24, [(3, 1, 2048)], const=2048)
    o(f'v_xor_b32 v{V_QKWR}, v24, v{V_QKWR}')
    s_expr(o, 54, [(S_X, 16384), (S_J, 512)])
    X(V_OWR, [(6, 1, 256), (0, 4, 16), (5, 1, 32), (4, 1, 8)], const=R_OB, sregs=[54])
    s_expr(o, 54, [(S_X, 16384), (S_JO, 512)])
    X(V_MWR, [(0, 6, 8)], const=R_MEM, sregs=[54])
    o(f's_lshr_b32 s54, s{S_J}, 1')
    o(f's_and_b32 s55, s{S_J}, 1')
    s_expr(o, 56, [(54, 16384), (55, 4096), (S_X, 1024)], const=R_C)
    X(V_CWQ, [(0, 8, 4)], sregs=[56])
    o(f'v_add_u32 v{V_CRD3}, s56, v{V_L16}')
    o(f'v_xor_b32 v{V_CRD}, 1024, v{V_CRD3}')
    o(f'v_xor_b32 v{V_CRD2}, 2048, v{V_CRD3}')
    o(f'v_xor_b32 v{V_CRD3}, 3072, v{V_CRD3}')
    X(V_LREDW, [(6, 2, RED_P), (4, 2, 2*RS), (0, 4, 4)], const=L_RED)
    o(f'v_add_u32 v{V_LREDW1}, {8*RS}, v{V_LREDW}')
    X(V_LREDR, [(3, 1, 8*RS), (4, 2, 2*RS), (2, 1, RS), (1, 1, 64), (6, 2, 16), (0, 1, 8)], const=L_RED)
    X(V_LREDR2, [(2, 3, RS), (1, 1, 64), (5, 1, 16), (0, 1, 8)], const=L_RED + 8*RS)
    s_expr(o, 54, [(S_HEAD, HS//4), (S_ES, 512)])
    X(V_KMWR, [(0, 6, 4)], sregs=[54])
    o(f'v_xor_b32 v{V_KMW2}, {HS//4}, v{V_KMWR}')
    X(V_LVMO2, [(0, 6, 4)], const=L_VMO)
    X(V_LRVW, [(6, 2, 1024), (0, 6, 8)], const=L_RV)
    X(V_LRVR, [(6, 1, 512), (0, 6, 8)], const=L_RV)
    X(V_LVMO, [(0, 7, 4)], const=L_VMO)
    X(V_LROW, [(6, 2, RO_P), (4, 2, 2*RS), (0, 4, 4)], const=L_RO)
    X(V_LROR, [(3, 2, 2*RS), (1, 1, RS), (5, 1, 64), (0, 1, 32), (2, 1, 8)], const=L_RO)
    o(f'v_add_u32 v{V_LROR2}, {2*RO_P}, v{V_LROR}')
    X(V_LROQ, [(5, 2, 2*RS), (3, 1, RS), (7, 1, 64), (2, 1, 32), (4, 1, 8), (0, 1, 4), (1, 1, 16)], const=L_RO)
    s_expr(o, 54, [(S_HEAD, HS)])
    o(f'v_add_u32 v{V_KD}, s54, v{V_L16}')
    s_expr(o, 55, [(S_ES, 2048)])
    o(f'v_add_u32 v{V_VD}, s55, v{V_KD}')
    o(f'v_add_u32 v{V_LKL}, {L_KL}, v{V_L16}')
    X(V_KD2, [(6, 2, 2048)])
    o(f'v_add_u32 v{V_KD2}, v{V_KD2}, v{V_KD}')
    X(V_VD2, [(6, 1, 1024)], const=WS_VT - WS_K)
    o(f'v_add_u32 v{V_VD2}, v{V_VD2}, v{V_VD}')
    s_expr(o, 52, [(S_W, 2048)], const=L_KL)
    o(f's_and_b32 s53, s{S_W}, 1')
    s_expr(o, 53, [(53, 1024)], const=L_KL + 8192)
    X(V_LVL, [(6, 1, 1024), LANE16], const=L_KL + 8192)
    s_expr(o, 54, [(S_HEAD, 512), (S_ES, 128)], const=WS_PROG)
    o(f'v_mov_b32 v{V_PROG}, s54')
    o('v_bfe_u32 v24, v0, 1, 1')
    o('v_cmp_eq_u32 vcc, 0, v24')
    o('v_mov_b32 v24, 0xeeee')
    o('v_mov_b32 v25, 0x4444')
    o(f'v_cndmask_b32 v{V_IDX}, v24, v25, vcc')
    for i in range(2): o(f'v_mov_b32 v{V_SENT+i}, -1')
    for i in range(4): o(f'v_mov_b32 v{V_ONES+i}, 0x3f803f80')
    o(f's_mov_b32 s{S_MQ}, 0x33333333')
    o(f's_mov_b32 s{S_MQ+1}, 0x33333333')
    o(f's_mov_b32 s{S_SCALE}, {SCALE_LOG2E:#x}')
    o(f's_mov_b32 s{S_NOSENT}, 0xfffffffe')
    o(f'v_mov_b32 v{V_SC}, s{S_SCALE}')
    o(f'v_mov_b32 v{V_SC+1}, s{S_SCALE}')
    o(f'v_mov_b32 v{V_VM}, 0')
    s_add64(o, S_RING, S_WS, WS_RING)
    X(TRN, [(4, 2, 8*64), (2, 2, 64), (0, 2, 8)])
    X(TRO, [(5, 1, 16*64), (4, 1, 4*64), (2, 1, 64), (3, 1, 8*64), (0, 2, 8)], const=65536, sregs=[76])
    o(f'v_add_u32 v{TRN}, s76, v{TRN}')
    o(f'v_add_u32 v{TRN+2}, 65536, v{TRN}')
    o(f'v_subrev_u32 v134, 65536, v{TRO}')
    def wread(T0, addr, off, natural):
        for t in range(2):
            for c in range(4):
                for m in range(4):
                    row = 64*c + 32*(m >> 1) + (4 if natural else 2)*(m & 1)
                    o(f'ds_read_b64_tr_b16 {ar(((T0+t)*4+c)*8 + 2*m, 2)}, v{addr} offset:{off + row*64 + t*32}')
                o('s_waitcnt lgkmcnt(8)')
    ps(4)
    wl(1)
    o('s_waitcnt vmcnt(16)')
    ps(5)
    wr(0)
    o('s_waitcnt lgkmcnt(0)')
    wl(2)
    o('s_waitcnt vmcnt(16)')
    ps(6)
    wr(1)
    o('s_waitcnt vmcnt(16) lgkmcnt(0)')
    wl(3)
    o('s_waitcnt vmcnt(16)')
    ps(7)
    o('v_mov_b32 v124, 127')
    o(f's_cmp_eq_u32 s{S_W}, 1')
    o('s_cbranch_scc0 L_ci_v')
    o('v_mov_b32 v24, 1')
    o('s_mov_b64 exec, 1')
    o(f'global_atomic_add v124, v{V_VM}, v24, s[6:7] offset:{D_DEC*4} sc0')
    o('s_getreg_b32 s54, hwreg(HW_REG_XCC_ID)')
    o('s_and_b32 s54, s54, 7')
    o('s_lshl_b32 s54, 1, s54')
    o(f's_lshl_b32 s55, s{S_X}, 2')
    o('v_mov_b32 v25, s54')
    o('v_mov_b32 v26, s55')
    o(f'global_atomic_or v26, v25, s[6:7] offset:{D_MASK*4}')
    o('s_mov_b64 exec, -1')
    o('L_ci_v:')
    wr(2)
    X(24, [(2, 2, 4096), (0, 1, 2048), (6, 2, 512), (4, 2, 32), (1, 1, 4)])
    for c in range(4):
        for q in range(4): o(f'global_load_dword v{V_A+4*c+q}, v24, s[72:73] offset:{c*128 + q*8}')
    o('s_waitcnt vmcnt(16)')
    ps(8)
    wr(3)
    def sum4(R):
        for h in range(2):
            o(f'v_pk_add_f32 {vr(R+2*h,2)}, {vr(R+2*h,2)}, {vr(R+4+2*h,2)}')
            o(f'v_pk_add_f32 {vr(R+8+2*h,2)}, {vr(R+8+2*h,2)}, {vr(R+12+2*h,2)}')
        for h in range(2): o(f'v_pk_add_f32 {vr(R+2*h,2)}, {vr(R+2*h,2)}, {vr(R+8+2*h,2)}')
    ps(10)
    o('s_waitcnt vmcnt(0) lgkmcnt(0)')
    o('v_readfirstlane_b32 s54, v124')
    o('s_cmp_lt_u32 s54, 48')
    o('s_cbranch_scc0 L_ci_nc')
    o('s_mov_b64 exec, 1')
    o(f's_and_b32 s58, s{S_J}, 1')
    s_expr(o, 54, [(S_J, 128), (S_X, 16384), (58, 8192)], const=WS_RING + R_C + 262144)
    o('v_mov_b32 v24, s54')
    o('v_xor_b32 v26, 8192, v24')
    o('s_mov_b32 s54, -1')
    o('s_mov_b32 s55, -1')
    o('s_mov_b32 s59, 0')
    o('L_ci_cal:')
    o('s_memtime s[16:17]')
    o(f'global_store_dword v24, v{V_VM}, s[4:5] sc1')
    o('s_waitcnt vmcnt(0)')
    o('s_memtime s[18:19]')
    o(f'global_store_dword v26, v{V_VM}, s[4:5] sc1')
    o('s_waitcnt vmcnt(0)')
    o('s_memtime s[20:21]')
    o('s_waitcnt lgkmcnt(0)')
    o('s_sub_u32 s56, s18, s16')
    o('s_sub_u32 s57, s20, s18')
    o('s_min_u32 s54, s54, s56')
    o('s_min_u32 s55, s55, s57')
    o('s_add_u32 s59, s59, 1')
    o('s_cmp_lt_u32 s59, 3')
    o('s_cbranch_scc1 L_ci_cal')
    o('s_sub_i32 s56, s54, s55')
    o('s_sub_i32 s57, s55, s54')
    o('s_cmp_eq_u32 s58, 1')
    o('s_cselect_b32 s54, s57, s56')
    o('s_max_i32 s54, s54, -400')
    o('s_min_i32 s54, s54, 400')
    o('v_mov_b32 v24, s54')
    o(f'global_atomic_add v{V_VM}, v24, s[6:7] offset:{D_POL*4}')
    o('s_waitcnt vmcnt(0)')
    o('s_mov_b64 exec, -1')
    o('L_ci_nc:')
    o('s_barrier')
    o(f's_cmp_eq_u32 s{S_W}, 0')
    o('s_cbranch_scc0 L_ci_e')
    o('s_mov_b64 exec, 1')
    o('v_mov_b32 v24, 1')
    o('v_mov_b32 v25, 0')
    o(f'global_atomic_add v25, v24, s[6:7] offset:{D_INIT*4}')
    o('s_mov_b64 exec, -1')
    o('L_ci_e:')
    ps(11)
    s_add64(o, S_KB, S_WS, WS_K)
    s_add64(o, S_VB, S_WS, WS_VT)
    s_add64(o, S_KM, S_WS, WS_KM)
    s_expr(o, 54, [(S_HEAD, HS), (S_ES, 2048)], const=WS_K + 2*SS)
    s_add64(o, S_TK, S_WS, 's54')
    s_add64(o, S_TV, S_TK, WS_VT - WS_K)
    s_add64(o, S_VM, S_WS, WS_VMT)
    o(f'v_mov_b32 v{V_P+4}, 0')
    o('v_mov_b32 v25, 0')
    o(f's_cmp_eq_u32 s{S_W}, 3')
    o('s_cbranch_scc1 L_ci_w3')
    o(f's_cmp_lg_u32 s{S_W}, 0')
    o('s_cbranch_scc1 L_ci_ok')
    o('L_ci_wait:')
    o(f'global_load_dword v{V_R+4}, v25, s[6:7] offset:{D_INIT*4} sc1')
    o(f's_sub_u32 s{S_BUD}, s{S_BUD}, 1')
    o('s_cbranch_scc1 L_chain_bail')
    o('s_waitcnt vmcnt(0)')
    o(f'v_cmp_gt_u32 vcc, 128, v{V_R+4}')
    o('s_cbranch_vccz L_ci_ok')
    o('s_sleep 2')
    o('s_branch L_ci_wait')
    o('L_ci_w3:')
    X(26, [(0, 2, 4), (2, 1, 128)])
    o('L_ci_wt:')
    o(f'global_load_dword v{V_R+6}, v26, s[6:7] offset:{D_TICK*4} sc1')
    o(f's_sub_u32 s{S_BUD}, s{S_BUD}, 1')
    o('s_cbranch_scc1 L_chain_bail')
    o('s_waitcnt vmcnt(0)')
    o(f'v_cmp_gt_u32 vcc, 32, v{V_R+6}')
    o('s_cbranch_vccnz L_ci_wt')
    s_expr(o, 54, [(S_X, 128)], const=WS_CNT + 128*C_KS)
    o('v_mov_b32 v26, s54')
    o('L_ci_wkv:')
    o(f'global_load_dword v{V_R+4}, v26, s[4:5] sc1')
    o(f's_sub_u32 s{S_BUD}, s{S_BUD}, 1')
    o('s_cbranch_scc1 L_chain_bail')
    o('s_waitcnt vmcnt(0)')
    o(f'v_cmp_gt_u32 vcc, 16, v{V_R+4}')
    o('s_cbranch_vccz L_ci_kv')
    o('s_sleep 2')
    o('s_branch L_ci_wkv')
    o('L_ci_kv:')
    for h in range(2):
        o(f's_mov_b32 m0, {L_KL + h*4096}')
        s_add64(o, 56, S_KB, 4096*h)
        for i in range(4): o(f'global_load_lds_dwordx4 v{V_KD}, s[56:57] offset:{i*1024} sc1')
    o(f's_mov_b32 m0, {L_KL + 8192}')
    o('s_nop 0')
    for i in range(2): o(f'global_load_lds_dwordx4 v{V_VD}, s[{S_VB}:{S_VB+1}] offset:{i*1024} sc1')
    o('L_ci_ok:')
    ps(9)
    o('s_barrier')
    o(f'global_load_dword v{V_R+5}, v25, s[6:7] offset:{D_POL*4} sc1')
    o(f'global_load_dwordx4 {vr(V_R,4)}, v25, s[6:7] offset:{D_MASK*4} sc1')
    s_add64(o, S_KB, S_KB, SS)
    o('s_waitcnt vmcnt(0)')
    o(f'v_bcnt_u32_b32 v24, v{V_R}, 0')
    for i in range(1, 4): o(f'v_bcnt_u32_b32 v24, v{V_R+i}, v24')
    o(f'v_readfirstlane_b32 s{S_MODE}, v24')
    if 'pol' in DLY:
        o(f'v_mov_b32 v24, {DLY["pol"]*8192}')
    else:
        o(f'v_cmp_lt_i32 vcc, 0, v{V_R+5}')
        o('v_mov_b32 v25, 8192')
        o('v_cndmask_b32 v24, 0, v25, vcc')
    for r in (V_CWQ, V_CRD, V_CRD2, V_CRD3): o(f'v_xor_b32 v{r}, v24, v{r}')
    o(f's_mov_b32 s{S_STEP}, 0')
    if DLY.get('diag'): diag(o, 2)
    if stamp:
        o('s_memtime s[60:61]')
        ps(12)
        o('v_writelane_b32 v127, s94, 13')
        s_expr(o, 54, [(S_X, 32*512), (S_J, 512), (S_W, 128)], const=WS_STAMP + 16*MB)
        X(24, [(0, 6, 4)], sregs=[54])
        o('s_mov_b64 exec, 0xffffffff')
        o('global_store_dword v24, v127, s[4:5]')
        o('s_mov_b64 exec, -1')
        s_expr(o, 54, [(S_X, 16384), (S_J, 8*16384)], const=WS_STAMP)
        X(V_STP, [(6, 2, 4096), (0, 6, 4)], sregs=[54])
        for k in range(12): st(k)
    for i in range(16): o(f'v_min_u32 v{V_A+i}, s{S_NOSENT}, v{V_A+i}')
    def prep():
        for i in range(24): o(f'v_mov_b32 v{V_D+i}, 0')
    prep()
    for k, sb in enumerate((S_CUR, S_NXT, S_RST)): s_add64(o, sb, S_RING, k*RING_SLOT)
    o(f's_cmp_eq_u32 s{S_MODE}, 4')
    o('s_cbranch_scc0 L_cs_a_go')
    o('s_branch L_cf_a_go')

    def issue(regs, addr, n=4, pace=0):
        for c in range(n):
            o(f'global_load_dwordx4 {vr(regs+4*c,4)}, {addr(c)} sc1')
            if c < n-1 and pace: o(f's_nop {pace-1}')
    utails = []
    Tm = V_T + 2
    def sstream(P, tag, regs, addr, body, n=4, simple=False, extra=0):
        L = f'{P}_{tag}'
        def ck(c):
            r = regs + 4*c
            return [f'v_max3_u32 v{Tm}, v{r}, v{r+1}, v{r+2}', f'v_max_u32 v{Tm}, v{Tm}, v{r+3}', f'v_cmp_eq_u32 vcc, -1, v{Tm}']
        def reload(c):
            return ['s_mov_b64 exec, vcc', f'global_load_dwordx4 {vr(regs+4*c,4)}, {addr(c)} sc1', 's_mov_b64 exec, -1']
        o(f'{L}_go:')
        if simple:
            o('s_waitcnt vmcnt(0)')
            rs = list(range(regs, regs + 4*n))
            o(f'v_max3_u32 v{Tm}, v{rs[0]}, v{rs[1]}, v{rs[2]}')
            for i in range(3, len(rs)-1, 2): o(f'v_max3_u32 v{Tm}, v{Tm}, v{rs[i]}, v{rs[i+1]}')
            o(f'v_max_u32 v{Tm}, v{Tm}, v{rs[-1]}')
            o(f'v_cmp_eq_u32 vcc, -1, v{Tm}')
            o(f's_cbranch_vccz {L}_ok')
            issue(regs, addr, n)
            o(f's_sub_u32 s{S_BUD}, s{S_BUD}, 1')
            o(f's_cbranch_scc0 {L}_go')
            o('s_branch L_chain_bail')
            o(f'{L}_ok:')
            for c in range(n): emit(body(c))
            return
        def weave(ins, nxt):
            nxt = list(nxt)
            per = -(-len(nxt) // max(1, len(ins) - 1))
            for i in ins:
                o(i)
                for _ in range(per):
                    if nxt: o(nxt.pop(0))
            emit(nxt)
        def name(q, f): return f'{L}_q' + ''.join(map(str, q)) + (f'f{f}' if extra else '')
        def key(q, f): return (tuple(q), f if extra else 0)
        def nextchk(q, f): return [f's_waitcnt vmcnt({len(q)-1 + (extra if f > 0 else 0)})'] + ck(q[0]) if q else []
        todo = []; seen = set()
        def block(q, f):
            while True:
                o(f'{name(q, f)}:')
                seen.add(key(q, f))
                o(f's_cbranch_vccnz {name(q, f)}x')
                todo.append((list(q), f))
                c = q[0]; q = q[1:]; f = max(0, f-1)
                weave(body(c), nextchk(q, f))
                if not q: return None
                if key(q, f) in seen: return name(q, f)
        q0 = list(range(n))
        emit(nextchk(q0, n))
        block(q0, n)
        o(f'{L}_done:')
        def emit_tail():
            while todo:
                q, f = todo.pop(0)
                o(f'{name(q, f)}x:')
                emit(reload(q[0]))
                if q[0] == max(q):
                    o(f's_sub_u32 s{S_BUD}, s{S_BUD}, 1')
                    o('s_cbranch_scc1 L_chain_bail')
                q2 = q[1:] + [q[0]]; f2 = max(0, f-1)
                emit(nextchk(q2, f2))
                if key(q2, f2) in seen: o(f's_branch {name(q2, f2)}')
                else:
                    tgt = block(q2, f2)
                    o(f's_branch {tgt or L + "_done"}')
        utails.append(emit_tail)
    def sum4x2(R):
        o(f'v_pk_add_f32 {vr(R,2)}, {vr(R,2)}, {vr(R+2,2)}')
        o(f'v_pk_add_f32 {vr(R+4,2)}, {vr(R+4,2)}, {vr(R+6,2)}')
        o(f'v_pk_add_f32 {vr(R,2)}, {vr(R,2)}, {vr(R+4,2)}')
    def smf(D, c, T):
        return f'v_smfmac_f32_16x16x64_bf16 {vr(D,4)}, {vr(V_A+4*c,4)}, {ar((T*4+c)*8,8)}, v{V_IDX}'
    def rotate():
        o(f's_mov_b64 s[{S_CUR}:{S_CUR+1}], s[{S_NXT}:{S_NXT+1}]')
        o(f's_mov_b64 s[{S_NXT}:{S_NXT+1}], s[{S_RST}:{S_RST+1}]')
        o(f's_add_u32 s54, s{S_STEP}, 2')
        o('s_and_b32 s54, s54, 3')
        o('s_lshl_b32 s54, s54, 19')
        s_add64(o, S_RST, S_RING, 's54')
        if DLY.get('late', 2) == 2: s_add64(o, S_KB, S_KB, SS)
    CUR = sr(S_CUR); RST = sr(S_RST)
    def loop(P, sc):
        simple = sc != ''
        LATE = DLY.get('late', 2)
        def stouch(sel, lbl, lim):
            if not DLY.get('spf', 0): return
            tl = [(S_TK, q) for q in range(0, 2048, 128)] + [(S_TV, q) for q in range(0, 2048, 128)]
            o(f's_cmp_ge_u32 s{S_STEP}, {lim}')
            o(f's_cbranch_scc1 {lbl}')
            for (sb, off) in tl[sel]: o(f's_load_dword s41, s[{sb}:{sb+1}], {off}')
            s_add64(o, S_TK, S_TK, SS)
            s_add64(o, S_TV, S_TV, SS)
            o(f'{lbl}:')
        def kvread():
            for k in range(8): o(f'ds_read_b128 {vr(V_KX+4*k,4)}, v{V_LKL} offset:{k*1024}')
            o(f'ds_read_b128 {vr(V_VX,4)}, v{V_LVL}')
        o(f'{P}_top:')
        o('s_barrier')
        st(0)
        nops(DLY['a'])
        aA = lambda c: f'v{V_ARD}, {CUR} offset:{c*1024}'
        issue(V_A, aA, pace=DLY['pa'])
        sstream(P, 'a', V_A, aA, lambda c: [smf(V_D+4*T, c, T) for T in range(4)], simple=simple)
        st(1)
        for T in range(4):
            b = V_D + 4*T
            o(f'v_pk_add_f32 {vr(b,2)}, {vr(b,2)}, {vr(b+2,2)}')
            o(f'ds_write2_b32 v{V_LREDW if T < 2 else V_LREDW1}, v{b}, v{b+1} offset0:{(T&1)*16} offset1:{(T&1)*16+RS//4}')
        vm = [(T, c) for c in range(4) for T in (4, 5)]
        for (T, c) in vm[:3]: o(smf(V_D+4*T, c, T))
        o('s_waitcnt lgkmcnt(0)')
        o('s_barrier')
        for p in range(4): o(f'ds_read_b64 {vr(V_R+2*p,2)}, v{V_LREDR} offset:{p*RED_P}')
        for (T, c) in vm[3:]: o(smf(V_D+4*T, c, T))
        o('s_waitcnt lgkmcnt(0)')
        sum4x2(V_R)
        o(f'v_cvt_pk_bf16_f32 v{V_R}, v{V_R}, v{V_R+1}')
        o(f'v_min_u32 v{V_R}, s{S_NOSENT}, v{V_R}')
        o(f'global_store_dword v{V_QKWR}, v{V_R}, {CUR} {sc}')
        st(2)
        for t in range(2):
            b = V_D + 16 + 4*t
            o(f'v_pk_add_f32 {vr(b,2)}, {vr(b,2)}, {vr(b+2,2)}')
            o(f'ds_write_b64 v{V_LRVW}, {vr(b,2)} offset:{t*512}')
        o(f's_cmp_lt_u32 s{S_W}, 2')
        o(f's_cbranch_scc0 {P}_w23')
        o(f's_cmp_eq_u32 s{S_STEP}, {nsteps-1}')
        o(f's_cbranch_scc1 {P}_last01')
        o('s_waitcnt lgkmcnt(0)')
        o('s_barrier')
        if LATE: kvread()
        nops(DLY['b'])
        aB = lambda c: f'v{V_QKRD}, {CUR} offset:{c*1024}'
        issue(V_QK, aB, pace=DLY['pb'])
        o('s_barrier')
        o(f'ds_read_b32 v{V_VM+1}, v{V_LVMO}')
        for i in range(12): o(f'v_mov_b32 v{V_S+i}, 0')
        if LATE: o('s_waitcnt lgkmcnt(1)')
        def bodyB(e):
            r = []
            for t in range(3):
                A = vr(V_KX + (t*4+e)*4, 4) if t < 2 else vr(V_QK+4*e, 4)
                r.append(f'v_mfma_f32_16x16x32_bf16 {vr(V_S+4*t,4)}, {A}, {vr(V_QK+4*e,4)}, {vr(V_S+4*t,4)}')
            return r
        sstream(P, 'b', V_QK, aB, bodyB, simple=simple)
        st(3)
        S = V_S
        o(f'v_max3_f32 v{V_T}, v{S}, v{S+1}, v{S+2}')
        o(f'v_max3_f32 v{V_T}, v{V_T}, v{S+3}, v{S+4}')
        o(f'v_max3_f32 v{V_T}, v{V_T}, v{S+5}, v{S+6}')
        o(f'v_max3_f32 v{V_T}, v{V_T}, v{S+7}, v{S+10}')
        o(f'v_max_f32 v{V_T}, v{V_T}, v{S+11}')
        for sw in ('32', '16'):
            o(f'v_mov_b32 v{V_T+1}, v{V_T}')
            o(f'v_permlane{sw}_swap_b32 v{V_T}, v{V_T+1}')
            o(f'v_max_f32 v{V_T}, v{V_T}, v{V_T+1}')
        o(f'v_mul_f32 v{V_T}, s{S_SCALE}, v{V_T}')
        for i in (0, 1, 2, 3, 5):
            o(f'v_pk_fma_f32 {vr(S+2*i,2)}, {vr(S+2*i,2)}, {vr(V_SC,2)}, {vr(V_T,2)} op_sel_hi:[1,1,0] neg_lo:[0,0,1] neg_hi:[0,0,1]')
        for i in range(8): o(f'v_exp_f32 v{S+i}, v{S+i}')
        for i in range(4): o(f'v_cvt_pk_bf16_f32 v{V_P+i}, v{S+2*i}, v{S+2*i+1}')
        for i in (10, 11): o(f'v_exp_f32 v{S+i}, v{S+i}')
        o(f'v_mfma_f32_16x16x32_bf16 {vr(V_L,4)}, {vr(V_ONES,4)}, {vr(V_P,4)}, 0')
        o(f'v_cvt_pk_bf16_f32 v{V_P+5}, v{S+10}, v{S+11}')
        o(f'v_mfma_f32_16x16x32_bf16 {vr(V_O,4)}, {vr(V_VX,4)}, {vr(V_P,4)}, 0')
        o('s_waitcnt lgkmcnt(0)')
        o(f'v_mfma_f32_16x16x16_bf16 {vr(V_L,4)}, {vr(V_ONES,2)}, {vr(V_P+4,2)}, {vr(V_L,4)}')
        o(f'v_mfma_f32_16x16x16_bf16 {vr(V_O,4)}, {vr(V_VM,2)}, {vr(V_P+4,2)}, {vr(V_O,4)}')
        o(f's_mov_b64 exec, s[{S_MQ}:{S_MQ+1}]')
        o(f'v_rcp_f32 v{V_T}, v{V_L}')
        o(f'v_pk_mul_f32 {vr(V_O,2)}, {vr(V_O,2)}, {vr(V_T,2)} op_sel_hi:[1,0]')
        o(f'v_pk_mul_f32 {vr(V_O+2,2)}, {vr(V_O+2,2)}, {vr(V_T,2)} op_sel_hi:[1,0]')
        o(f'v_cvt_pk_bf16_f32 v{V_O}, v{V_O}, v{V_O+1}')
        o(f'v_cvt_pk_bf16_f32 v{V_O+1}, v{V_O+2}, v{V_O+3}')
        o(f'v_min_u32 v{V_O}, s{S_NOSENT}, v{V_O}')
        o(f'v_min_u32 v{V_O+1}, s{S_NOSENT}, v{V_O+1}')
        o(f'global_store_dwordx2 v{V_OWR}, {vr(V_O,2)}, {CUR} {sc}')
        o('s_mov_b64 exec, -1')
        st(4)
        o(f's_branch {P}_po')
        o(f'{P}_last01:')
        o('s_waitcnt lgkmcnt(0)')
        o('s_barrier')
        o('s_barrier')
        o('s_branch L_chain_done')
        o(f'{P}_w23:')
        o('s_waitcnt lgkmcnt(0)')
        o('s_barrier')
        for p in range(4): o(f'ds_read_b64 {vr(V_R+2*p,2)}, v{V_LRVR} offset:{p*1024}')
        o('s_waitcnt lgkmcnt(0)')
        sum4x2(V_R)
        o(f'v_cvt_pk_bf16_f32 v{V_VM+1}, v{V_R}, v{V_R+1}')
        o(f'ds_write_b32 v{V_LVMO}, v{V_VM+1}')
        o(f's_cmp_eq_u32 s{S_W}, 2')
        o('s_waitcnt lgkmcnt(0)')
        o('s_barrier')
        if DLY.get('mvr'):
            o(f'global_store_dword v{V_CWQ}, v{V_SENT}, {RST} sc1')
            o(f'global_store_dword v{V_CWQ}, v{V_SENT}, {RST} offset:-512 sc1')
        o(f's_cbranch_scc1 {P}_w2a')
        for hf in range(2):
            for p in range(4): o(f'ds_read_b64 {vr(V_R+8*hf+2*p,2)}, v{V_LREDR2} offset:{p*RED_P + hf*32}')
        o(f'ds_read2_b32 {vr(V_PUB+2,2)}, v{V_LVMO2} offset0:0 offset1:64')
        prep()
        o('s_waitcnt lgkmcnt(0)')
        for hf in range(2):
            sum4x2(V_R+8*hf)
            o(f'v_cvt_pk_bf16_f32 v{V_PUB+hf}, v{V_R+8*hf}, v{V_R+8*hf+1}')
        o(f's_cmp_eq_u32 s{S_STEP}, {nsteps-1}')
        o(f's_cbranch_scc1 {P}_last3')
        def kvdma():
            for h in range(2):
                o(f's_mov_b32 m0, {L_KL + h*4096}')
                if h: s_add64(o, 56, S_KB, 4096)
                for i in range(4): o(f'global_load_lds_dwordx4 v{V_KD}, s[{56 if h else S_KB}:{57 if h else S_KB+1}] offset:{i*1024} {DLY.get("ksc", "sc1")}')
            o(f's_mov_b32 m0, {L_KL + 8192}')
            s_add64(o, S_KB, S_KB, SS)
            for i in range(2): o(f'global_load_lds_dwordx4 v{V_VD}, s[{S_VB}:{S_VB+1}] offset:{i*1024} {DLY.get("ksc", "sc1")}')
            s_add64(o, S_VB, S_VB, SS)
        stouch(slice(15, 30), f'{P}_t3', nsteps-2)
        if not LATE:
            nops(DLY['d3'])
            kvdma()
        o(f's_branch {P}_po')
        o(f'{P}_w2a:')
        prep()
        o(f's_cmp_eq_u32 s{S_STEP}, {nsteps-1}')
        o('s_cbranch_scc1 L_chain_done')
        o(f's_cmp_eq_u32 s{S_STEP}, {nsteps-3}')
        o(f's_cbranch_scc0 {P}_ncw')
        o('s_getpc_b64 s[56:57]')
        o(f'{P}_pc:')
        o(f's_sub_u32 s56, s56, {P}_pc-L_bulk')
        o('s_subb_u32 s57, s57, 0')
        o(f's_lshl_b32 s54, s{S_J}, 12')
        X(V_T, [(0, 5, 128)], sregs=[54])
        o(f'v_min_u32 v{V_T}, L_chain-L_bulk, v{V_T}')
        o(f'global_load_dword v{V_T+1}, v{V_T}, s[56:57]')
        o(f'{P}_ncw:')
        if not DLY.get('nodep'):
            stouch(slice(0, 15), f'{P}_t2', nsteps-2)
            o(f's_add_u32 s54, s{S_STEP}, {3 if DLY.get("spf") else 1 if LATE else 2}')
            o('s_and_b32 s55, s54, 7')
            o(f's_cbranch_scc1 {P}_po')
            o('s_cmp_ge_u32 s54, 64')
            o(f's_cbranch_scc1 {P}_po')
            s_expr(o, 54, [(54, 16)], const=WS_CNT + 128*C_KV)
            o(f'v_mov_b32 v{V_T}, s54')
            o(f'{P}_kvw:')
            o(f'global_load_dword v{V_T+1}, v{V_T}, s[4:5] sc1')
            o(f's_sub_u32 s{S_BUD}, s{S_BUD}, 1')
            o('s_cbranch_scc1 L_chain_bail')
            o('s_waitcnt vmcnt(0)')
            o(f'v_cmp_gt_u32 vcc, 32, v{V_T+1}')
            o(f's_cbranch_vccnz {P}_kvw')
        o(f'{P}_po:')
        o('s_barrier')
        for i in range(8): o(f'v_mov_b32 v{V_E+i}, 0')
        o(f's_add_u32 s{S_STEP}, s{S_STEP}, 1')
        if LATE == 2: o('s_mov_b32 m0, s52')
        nops(DLY['o'])
        aO = lambda c: f'v{V_ORD}, {CUR} offset:{c*1024}'
        EARLY = DLY.get('early', 0)
        def kv3():
            for i in range(2): o(f'global_load_lds_dwordx4 v{V_KD2}, s[{S_KB}:{S_KB+1}] offset:{i*1024} sc1')
            o('s_mov_b32 m0, s53')
            o('s_nop 0')
            o(f'global_load_lds_dwordx4 v{V_VD2}, s[{S_KB}:{S_KB+1}] sc1')
        issue(V_A, aO, pace=DLY['po'])
        if EARLY:
            nops(EARLY-1)
            kv3()
        sstream(P, 'o', V_A, aO, lambda c: [smf(V_E+4*t, c, 6+t) for t in range(2)], simple=simple, extra=3 if EARLY else 0)
        st(5)
        for t in range(2):
            b = V_E + 4*t
            o(f'v_pk_add_f32 {vr(b,2)}, {vr(b,2)}, {vr(b+2,2)}')
            o(f'ds_write2_b32 v{V_LROW}, v{b}, v{b+1} offset0:{t*16} offset1:{t*16+RS//4}')
        if LATE == 2 and not EARLY: kv3()
        o('s_waitcnt lgkmcnt(0)')
        o('s_barrier')
        st(6)
        o(f'ds_read2st64_b32 {vr(V_E,2)}, v{V_LROQ} offset0:0 offset1:5')
        o(f'ds_read2st64_b32 {vr(V_E+2,2)}, v{V_LROQ} offset0:10 offset1:15')
        o(f's_cmp_lt_u32 s{S_W}, 2')
        o('s_waitcnt lgkmcnt(0)')
        o(f'v_add_f32 v{V_E}, v{V_E}, v{V_E+1}')
        o(f'v_add_f32 v{V_E+2}, v{V_E+2}, v{V_E+3}')
        o(f'v_add_f32 v{V_E}, v{V_E}, v{V_E+2}')
        o(f'v_min_u32 v{V_E}, s{S_NOSENT}, v{V_E}')
        o(f'global_store_dword v{V_CWQ}, v{V_E}, {CUR} sc1')
        st(7)
        o(f'global_store_dword v{V_QKWR}, v{V_SENT}, {RST} {sc}')
        if not DLY.get('mvr'): o(f'global_store_dword v{V_CWQ}, v{V_SENT}, {RST} sc1')
        o(f's_cbranch_scc0 {P}_w23c')
        o(f's_mov_b64 exec, s[{S_MQ}:{S_MQ+1}]')
        o(f'global_store_dwordx2 v{V_OWR}, {vr(V_SENT,2)}, {RST} {sc}')
        o('s_mov_b64 exec, -1')
        prep()
        if not LATE: kvread()
        rotate()
        flush()
        stouch(slice(30, 32), f'{P}_t0', nsteps-1)
        o(f's_branch {P}_top')
        o(f'{P}_w23c:')
        o(f's_cmp_eq_u32 s{S_W}, 3')
        o(f's_cbranch_scc0 {P}_w2c')
        def prog(sub):
            o(f'v_mov_b32 v{V_T}, s{S_STEP}')
            if sub: o(f'v_add_u32 v{V_T}, {sub}, v{V_T}')
            o('s_mov_b64 exec, 1')
            o(f'global_store_dword v{V_PROG}, v{V_T}, s[4:5] sc1')
            o('s_mov_b64 exec, -1')
        def pub():
            for hf in range(2):
                o(f'global_store_dword v{V_KMW2}, v{V_PUB+hf}, s[{S_KM}:{S_KM+1}] offset:{hf*256} {DLY.get("pubsc", "sc1")}')
                o(f'global_store_dword v{V_KMWR}, v{V_PUB+2+hf}, s[{S_VM}:{S_VM+1}] offset:{hf*256} {DLY.get("pubsc", "sc1")}')
            s_add64(o, S_KM, S_KM, SS//4)
            s_add64(o, S_VM, S_VM, SS//4)
        if LATE == 1:
            st(9)
            kvdma()
            if DLY.get('kvlat'):
                o('s_waitcnt vmcnt(0)')
                st(11)
        nops(DLY.get('dp', 0))
        if DLY.get('p4'):
            o(f's_and_b32 s54, s{S_STEP}, 3')
            o('s_cmp_eq_u32 s54, 1')
            o(f's_cbranch_scc0 {P}_np')
        prog(-1)
        o(f'{P}_np:')
        pub()
        rotate()
        flush()
        o(f's_branch {P}_top')
        o(f'{P}_last3:')
        pub()
        o('s_waitcnt vmcnt(0)')
        prog(1)
        o('s_branch L_chain_done')
        o(f'{P}_w2c:')
        o(f'ds_read2_b64 {vr(V_R,4)}, v{V_LROR} offset0:0 offset1:2')
        o(f'ds_read2_b64 {vr(V_R+4,4)}, v{V_LROR} offset0:{RO_P//8} offset1:{RO_P//8+2}')
        o(f'ds_read2_b64 {vr(V_R+8,4)}, v{V_LROR2} offset0:0 offset1:2')
        o(f'ds_read2_b64 {vr(V_R+12,4)}, v{V_LROR2} offset0:{RO_P//8} offset1:{RO_P//8+2}')
        o(f'global_store_dwordx2 v{V_MWR}, {vr(V_SENT,2)}, {RST} {sc}')
        o(f's_mov_b64 s[{S_CC}:{S_CC+1}], {CUR}')
        rotate()
        flush()
        o('s_waitcnt lgkmcnt(0)')
        sum4(V_R)
        nops(DLY['c'])
        st(8)
        crd = [V_CRD, V_CRD2, V_CRD3]
        aC = lambda c: f'v{crd[c]}, {sr(S_CC)}'
        issue(V_C, aC, n=3)
        C = V_C
        if not simple:
            o('s_waitcnt vmcnt(2)')
            o(f'v_max3_u32 v{Tm}, v{C}, v{C+1}, v{C+2}')
            for h in range(2): o(f'v_pk_add_f32 {vr(V_R+4+2*h,2)}, {vr(V_R+2*h,2)}, {vr(C+2*h,2)}')
            o('s_waitcnt vmcnt(1)')
            o(f'v_max3_u32 v{Tm}, v{Tm}, v{C+3}, v{C+4}')
            o(f'v_max3_u32 v{Tm}, v{Tm}, v{C+5}, v{C+6}')
            o('s_waitcnt vmcnt(0)')
            o(f'v_max3_u32 v{Tm}, v{Tm}, v{C+7}, v{C+8}')
            o(f'v_max3_u32 v{Tm}, v{Tm}, v{C+9}, v{C+10}')
            o(f'v_max_u32 v{Tm}, v{Tm}, v{C+11}')
            o(f'v_cmp_eq_u32 vcc, -1, v{Tm}')
            for h in range(2): o(f'v_pk_add_f32 {vr(V_R+8+2*h,2)}, {vr(C+4+2*h,2)}, {vr(C+8+2*h,2)}')
            for h in range(2): o(f'v_pk_add_f32 {vr(V_R+4+2*h,2)}, {vr(V_R+4+2*h,2)}, {vr(V_R+8+2*h,2)}')
            for h in range(2): o(f'v_cvt_pk_bf16_f32 v{V_R+4+h}, v{V_R+4+2*h}, v{V_R+5+2*h}')
            for h in range(2): o(f'v_min_u32 v{V_R+4+h}, s{S_NOSENT}, v{V_R+4+h}')
            o(f's_cbranch_vccnz {P}_c_go')
            o(f'global_store_dwordx2 v{V_MWR}, {vr(V_R+4,2)}, {CUR} {sc}')
            st(10)
            o(f's_branch {P}_top')
        sstream(P, 'c', V_C, aC, lambda c: [f'v_pk_add_f32 {vr(V_R+2*h,2)}, {vr(V_R+2*h,2)}, {vr(V_C+2*h,2)}' for h in range(2)] if c == 0 else [], n=3, simple=simple)
        for h in range(2): o(f'v_pk_add_f32 {vr(V_C+4+2*h,2)}, {vr(V_C+4+2*h,2)}, {vr(V_C+8+2*h,2)}')
        for h in range(2): o(f'v_pk_add_f32 {vr(V_R+2*h,2)}, {vr(V_R+2*h,2)}, {vr(V_C+4+2*h,2)}')
        o(f'v_cvt_pk_bf16_f32 v{V_R}, v{V_R}, v{V_R+1}')
        o(f'v_cvt_pk_bf16_f32 v{V_R+1}, v{V_R+2}, v{V_R+3}')
        o(f'v_min_u32 v{V_R}, s{S_NOSENT}, v{V_R}')
        o(f'v_min_u32 v{V_R+1}, s{S_NOSENT}, v{V_R+1}')
        o(f'global_store_dwordx2 v{V_MWR}, {vr(V_R,2)}, {CUR} {sc}')
        st(10)
        o(f's_branch {P}_top')
        for f in utails: f()
        utails.clear()
    loop('L_cf', '')
    loop('L_cs', 'sc1')
    o('L_chain_bail:')
    o('v_mov_b32 v24, 1')
    o('v_mov_b32 v25, 0')
    o(f'global_atomic_add v25, v24, s[6:7] offset:{D_BAIL*4}')
    o('s_endpgm')
    o('L_chain_done:')
    if DLY.get('diag'): diag(o, 3)
    if stamp:
        o('s_memtime s[90:91]')
        o('s_memrealtime s[92:93]')
        o('s_waitcnt lgkmcnt(0)')
        o('s_sub_u32 s90, s90, s60')
        o(f's_or_b32 s54, s{S_X}, s{S_J}')
        o('s_cbranch_scc1 L_chain_end')
        o('v_mov_b32 v25, s90')
        o(f'v_mov_b32 v24, s{S_BUD}')
        o('v_mov_b32 v26, s92')
        o('v_mov_b32 v27, s94')
        o(f'v_mov_b32 v28, {WS_STAMP - 64}')
        o('global_store_dwordx4 v28, v[24:27], s[4:5]')
        o('L_chain_end:')
    o('s_waitcnt vmcnt(0) lgkmcnt(0)')
    o(f's_add_u32 s10, s{S_X}, 4')
    o('s_branch L_bulk')
```

```python
from layout import *
from util import *

EXP = {}
G_AOFF = 4
G_BOFF = 8
G_ARD = 12
G_BRD = 16
G_T = 24
G_FA = 64
G_FB = 96
def fa(s, i): return G_FA + 64*(s & 1) + 4*i
def fb(s, i): return G_FB + 64*(s & 1) + 4*i
S_AB = 16; S_BB = 18; S_AST = 20; S_BST = 21; S_CNT = 22; S_MA = 23; S_WRAP = 24; S_WA = 25; S_WB = 3; S_W = 14

class Shape:
    def __init__(s, MT, NT, nfa, na, pairs):
        s.MT, s.NT, s.nfa, s.na, s.pairs = MT, NT, nfa, na, pairs
        s.nd = na + 4
    def acc(s, mt, nt): return (mt*s.NT+nt)*4

S88 = Shape(8, 8, 8, 4, [(mt, nt, mt, nt, True) for mt in range(8) for nt in range(8)])
S48 = Shape(4, 8, 4, 2, [(mt, nt, mt, nt, True) for mt in range(4) for nt in range(8)])
S44 = Shape(4, 4, 8, 4, [(mt, nt, 2*mt+sub, 4*sub+nt, sub == 0) for sub in range(2) for mt in range(4) for nt in range(4)])

def dma_group(sh, slot, asc=''):
    r = [f's_add_u32 m0, s{S_MA}, {slot*16384}', 's_nop 0']
    for i in range(sh.na): r.append(f'global_load_lds_dwordx4 v{G_AOFF+i}, s[{S_AB}:{S_AB+1}] offset:{i*1024} {asc}')
    r.append(f's_add_u32 m0, s{S_MA}, {65536 + slot*16384}')
    r.append(f's_add_u32 s{S_AB}, s{S_AB}, s{S_AST}')
    r.append(f's_addc_u32 s{S_AB+1}, s{S_AB+1}, 0')
    for i in range(4): r.append(f'global_load_lds_dwordx4 v{G_BOFF+i}, s[{S_BB}:{S_BB+1}] offset:{i*1024}')
    r.append(f's_add_u32 s{S_BB}, s{S_BB}, s{S_BST}')
    r.append(f's_addc_u32 s{S_BB+1}, s{S_BB+1}, 0')
    return r

def frag_reads(sh, slot, sub, par):
    r = []
    for i in range(8):
        if i < sh.nfa:
            off = slot*16384 + (i*1024 if sh.nfa == 8 else (i >> 1)*4096 + (i & 1)*1024)
            r.append(f'ds_read_b128 {vr(fa(par,i),4)}, v{G_ARD} offset:{off}')
        for h in range(2):
            r.append(f'ds_read_b64_tr_b16 {vr(fb(par,i)+2*h,2)}, v{G_BRD+i} offset:{slot*16384 + h*4096}')
    return r

def stage(o, sh, st, transposed, first, dma, last, vm, asc='', extra=None):
    D = dma_group(sh, st, asc) if dma else []
    D = [x for x in D if x != 's_nop 0'] + list(extra or [])
    nm = len(sh.pairs); par = st & 1
    o(f's_waitcnt vmcnt({vm}) lgkmcnt(0)'); o('s_barrier')
    R = [] if last else frag_reads(sh, (st+1) % 4, 0, par ^ 1)
    slots = [[] for _ in range(nm)]
    step = 2 if nm == 64 else 1
    for k, ins in enumerate(R): slots[step*k].append(ins)
    pos = 1
    for ins in D:
        slots[min(pos, nm-1)].append(ins)
        pos += (4 if nm == 64 else 2) if ins.startswith('global') else (2 if nm == 64 else 1)
    for k, (mt, nt, ia, ib, f0) in enumerate(sh.pairs):
        acc = ar(sh.acc(mt, nt), 4)
        A = vr(fa(par, ia), 4); B = vr(fb(par, ib), 4)
        if transposed: A, B = B, A
        o(f'v_mfma_f32_16x16x32_bf16 {acc}, {A}, {B}, {"0" if (first and f0) else acc}')
        for ins in slots[k]: o(ins)

def prologue_dma(o, sh, asc='', part=None):
    for s in range(4):
        G = dma_group(sh, s, asc)
        k = 2 + sh.na
        if part == 'A': G = G[:k] + G[k+1:k+3]
        if part == 'B': G = [G[k], 's_nop 0'] + G[k+3:]
        for ins in G: o(ins)

def body_first(o, sh, transposed, asc='', sig=None, cold=False):
    if cold: o(f's_waitcnt vmcnt({3*sh.nd})')
    o('s_barrier')
    for ins in frag_reads(sh, 0, 0, 0): o(ins)
    for s in range(4):
        stage(o, sh, s, transposed, s == 0, True, False, 63 if (s < 3 and not cold) else 2*sh.nd, asc, extra=sig if s == 3 else None)

def body_mid(o, P, sh, transposed, asc='', ex2=None, ex3=None, ex1=None, ex0=None):
    o(f'{P}_mid:')
    if sh is S88 and transposed:
        o(f's_cmp_lg_u32 s{S_CNT}, s{S_WRAP}')
        o(f's_cbranch_scc1 {P}_nwr')
        o(f's_sub_u32 s{S_AB}, s{S_AB}, s{S_WA}')
        o(f's_subb_u32 s{S_AB+1}, s{S_AB+1}, 0')
        o(f's_sub_u32 s{S_BB}, s{S_BB}, s{S_WB}')
        o(f's_subb_u32 s{S_BB+1}, s{S_BB+1}, 0')
        o(f'{P}_nwr:')
    for s in range(4): stage(o, sh, s, transposed, False, True, False, 2*sh.nd, asc, extra={0: ex0, 1: ex1, 2: ex2, 3: ex3}.get(s))
    o(f's_sub_u32 s{S_CNT}, s{S_CNT}, 1')
    o(f's_cmp_lg_u32 s{S_CNT}, 0')
    o(f's_cbranch_scc1 {P}_mid')

def body_last(o, sh, transposed):
    for s in range(4):
        vm = (2-s)*sh.nd + 8*s if s < 3 else 63
        stage(o, sh, s, transposed, False, False, s == 3, vm, extra=[x for x in dma_group(S88, s, 'sc1') if x != 's_nop 0'])

def swz_f(o, dst, lo, tmp):
    o(f'v_bfe_u32 v{dst}, v0, {lo}, 2')
    o(f'v_lshlrev_b32 v{dst}, 1, v{dst}')
    o(f'v_mov_b32 v{tmp}, 0x78')
    o(f'v_lshrrev_b32 v{dst}, v{dst}, v{tmp}')

def a_nat(o, off, rd, lda=2048):
    T = G_T
    swz_f(o, T, 4, T+1)
    o(f'v_xor_b32 v{T}, v{T}, v0')
    o(f'v_and_b32 v{T}, 3, v{T}')
    tid_expr(o, off, [(2, 4, lda), (6, 2, 64*lda)])
    o(f'v_lshl_add_u32 v{off}, v{T}, 4, v{off}')
    if EXP.get('fakeblk'): tid_expr(o, off, [(0, 6, 16), (6, 2, 64*lda)])
    for i in range(1, 4): o(f'v_add_u32 v{off+i}, {i*(16*lda - 1024)}, v{off}')
    swz_f(o, T, 2, T+1)
    o(f'v_bfe_u32 v{T+1}, v0, 4, 2')
    o(f'v_xor_b32 v{T}, v{T}, v{T+1}')
    o(f'v_and_b32 v{T}, 3, v{T}')
    tid_expr(o, rd, [(0, 4, 64), (7, 1, 8192)])
    o(f'v_lshl_add_u32 v{rd}, v{T}, 4, v{rd}')

def a_nat48(o, off, src, lda=2048):
    tid_expr(o, off, [(6, 2, 32*lda)])
    o(f'v_sub_u32 v{off}, v{src}, v{off}')
    o(f'v_add_u32 v{off+1}, {16*lda - 1024}, v{off}')
    o(f'v_add_u32 v{off+2}, {16*lda - 2048}, v{off}')
    o(f'v_add_u32 v{off+3}, {16*lda - 3072}, v{off}')

def a_blk44(o, off, rts):
    tid_expr(o, off, [(0, 6, 16), (6, 2, 2*rts)])
    o(f'v_add_u32 v{off+1}, {rts - 2048}, v{off}')

def b_off(o, off, permk, ldb):
    T = G_T
    o(f'v_bfe_u32 v{T}, v0, 4, 2')
    o(f'v_lshlrev_b32 v{T}, 1, v{T}')
    o(f'v_xor_b32 v{T}, v{T}, v0')
    o(f'v_and_b32 v{T}, 15, v{T}')
    o(f'v_lshlrev_b32 v{T}, 4, v{T}')
    o(f'v_xor_b32 v{T+1}, 128, v{T}')
    tid_expr(o, T+2, [(4, 2, ldb), (6, 1, (16 if permk else 4)*ldb)])
    rstep = (4 if permk else 8) * ldb
    o(f'v_add_u32 v{off}, v{T+2}, v{T}')
    o(f'v_add_u32 v{T+1}, v{T+2}, v{T+1}')
    o(f'v_add_u32 v{off+1}, {1*(rstep - 1024)}, v{T+1}')
    o(f'v_add_u32 v{off+2}, {2*(rstep - 1024)}, v{off}')
    o(f'v_add_u32 v{off+3}, {3*(rstep - 1024)}, v{T+1}')

def b_rd(o, rd, split):
    T = G_T
    tid_expr(o, T, [(2, 3, 32)])
    if not split:
        tid_expr(o, T+1, [(2, 4, 256), (0, 2, 8), (6, 1, 8192)], const=65536)
        for t in range(8):
            o(f'v_xor_b32 v{T+2}, {t*32}, v{T}')
            o(f'v_add_u32 v{rd+t}, v{T+1}, v{T+2}')
    else:
        tid_expr(o, T+2, [(6, 1, 128)])
        o(f'v_xor_b32 v{T}, v{T}, v{T+2}')
        tid_expr(o, T+1, [(2, 4, 256), (0, 2, 8)], const=65536)
        for t in range(4):
            o(f'v_xor_b32 v{T+2}, {t*32}, v{T}')
            o(f'v_add_u32 v{rd+t}, v{T+1}, v{T+2}')
            o(f'v_add_u32 v{rd+4+t}, 8192, v{rd+t}')

def rd_acc(o, dst, a0, a1):
    for k, a in enumerate((a0, a1)):
        for i in range(4): o(f'v_accvgpr_read_b32 v{dst+4*k+i}, a{a+i}')
def pack8(o, dst, src):
    for k in range(4): o(f'v_cvt_pk_bf16_f32 v{dst+k}, v{src+2*k}, v{src+2*k+1}')
def unpack8(o, dst, src):
    for k in range(4):
        o(f'v_lshlrev_b32 v{dst+2*k}, 16, v{src+k}')
        o(f'v_and_b32 v{dst+2*k+1}, 0xffff0000, v{src+k}')

G_L16 = 2
G_L16B = 3
def epi_blocked(o, kind, sb, sh=S88):
    T = G_T; n = 0
    for seg in range(sh.MT//2):
        for blk in range(8):
            if kind == 'qk':
                t, e = blk >> 2, blk & 3
                a0, a1 = sh.acc(2*seg+t, 2*e), sh.acc(2*seg+t, 2*e+1)
            else:
                a0, a1 = sh.acc(2*seg, blk), sh.acc(2*seg+1, blk)
            d = G_FA + 4*(n % 16); n += 1
            rd_acc(o, T + 8*(n & 1), a0, a1)
            pack8(o, d, T + 8*(n & 1))
            if not EXP.get('nost'): o(f'global_store_dwordx4 v{G_L16+(blk>>2)}, {vr(d,4)}, s[{sb}:{sb+1}] offset:{(blk&3)*1024} {EXP.get("stsc", "sc1")}')
        if seg < sh.MT//2 - 1: s_add64(o, sb, sb, SS)
    return 0 if EXP.get('nost') else n

def epi_up(o, sb, mid=None):
    T = G_T; sh = S88; n = 0
    o(f'v_mov_b32 v{T+24}, {0xbfb8aa3b:#x}')
    o(f'v_mov_b32 v{T+25}, 1.0')
    for mt in range(8):
        for q in range(2):
            d = G_FA + 4*(n % 16); n += 1
            G = T; U = T + 8; E = T + 16
            rd_acc(o, G, sh.acc(mt, 2*q), sh.acc(mt, 2*q+1))
            for i in range(4): o(f'v_pk_mul_f32 {vr(E+2*i,2)}, {vr(G+2*i,2)}, {vr(T+24,2)} op_sel_hi:[1,0]')
            for i in range(8): o(f'v_exp_f32 v{E+i}, v{E+i}')
            rd_acc(o, U, sh.acc(mt, 4+2*q), sh.acc(mt, 4+2*q+1))
            for i in range(4): o(f'v_pk_add_f32 {vr(E+2*i,2)}, {vr(E+2*i,2)}, {vr(T+24,2)} op_sel:[0,1] op_sel_hi:[1,1]')
            for i in range(8): o(f'v_rcp_f32 v{E+i}, v{E+i}')
            for i in range(4): o(f'v_pk_mul_f32 {vr(G+2*i,2)}, {vr(G+2*i,2)}, {vr(E+2*i,2)}')
            for i in range(4): o(f'v_pk_mul_f32 {vr(G+2*i,2)}, {vr(G+2*i,2)}, {vr(U+2*i,2)}')
            pack8(o, d, G)
            o(f'global_store_dwordx4 v{G_L16}, {vr(d,4)}, s[{sb}:{sb+1}] offset:{q*1024} sc1')
        if mt < 7: s_add64(o, sb, sb, 112*1024)
        if mt == 1 and mid: mid(4)
    return 16

def epi_db(o, sb, gv):
    T = G_T; sh = S88; n = 0
    for mt in range(8):
        for q in range(4):
            d = G_FA + 4*(n % 16); n += 1
            rd_acc(o, T, sh.acc(mt, 2*q), sh.acc(mt, 2*q+1))
            pack8(o, T+8, T)
            unpack8(o, T, T+8)
            for i in range(4): o(f'v_pk_mul_f32 {vr(T+2*i,2)}, {vr(T+2*i,2)}, {vr(gv+2*mt,2)} op_sel:[0,1] op_sel_hi:[1,1]')
            pack8(o, d, T)
            o(f'global_store_dwordx4 v{G_L16}, {vr(d,4)}, s[{sb}:{sb+1}] offset:{q*1024} sc1')
        if mt < 7: s_add64(o, sb, sb, 32*1024)
    return 32

def epi_da(o, sb, gv, so, vo, nmt=4, sh=S44, t2a=64):
    T = G_T; n = 0
    for mt in range(nmt):
        for q in range(sh.NT//2):
            d = G_FA + 4*n
            rd_acc(o, T, sh.acc(mt, 2*q), sh.acc(mt, 2*q+1))
            for i in range(4): o(f'v_accvgpr_read_b32 v{T+24+i}, a{t2a+4*n+i}')
            n += 1
            pack8(o, T+8, T)
            unpack8(o, T, T+8)
            for i in range(4): o(f'v_pk_mul_f32 {vr(T+2*i,2)}, {vr(T+2*i,2)}, {vr(gv+2*mt,2)} op_sel_hi:[1,0]')
            pack8(o, T+8, T)
            unpack8(o, T, T+8)
            unpack8(o, T+16, T+24)
            for i in range(4): o(f'v_pk_add_f32 {vr(T+2*i,2)}, {vr(T+2*i,2)}, {vr(T+16+2*i,2)}')
            pack8(o, d, T)
            o(f'v_permlane16_swap_b32 v{d}, v{d+2}')
            o(f'v_permlane16_swap_b32 v{d+1}, v{d+3}')
            o(f'global_store_dwordx4 v{vo}, {vr(d,4)}, s[{so}:{so+1}] offset:{q*64} {EXP.get("osc", "sc1")}')
        if mt < nmt-1: s_add64(o, so, so, 16*2048)
    return n
```

```python
import sys; sys.path.insert(0, 'gen')
from layout import *
from util import *
import chain, bulk, hazard

NAME = 'gated_mix__memory_aug_recurrent_mem_tr__glu_gated_swiglu__prompt'

def item(t, rb, ct, dep=C_DUMMY-1, tgt=0, sig=C_DUMMY): return t | rb << 4 | ct << 8 | dep << 14 | tgt << 20 | sig << 26

def schedule():
    R = range
    def kv(p, rb): return item(T_K if p < 16 else T_V, rb, p & 15, dep=C_X + rb, tgt=16, sig=C_KV + rb)
    KS = lambda i: [item(T_KS if i < 2 else T_VS, r, (8*i + c) & 15, dep=C_X, tgt=16, sig=C_KS + (((8*i + c) & 15) >> 2)) for c in R(8) for r in R(2)]
    KA_ = lambda i: [kv(8*i + c, rb) for c in R(8) for rb in (1, 2)]
    KB = lambda i: [kv(8*i + c, rb) for c in R(8) for rb in (3, 4)]
    cells = [kv(p, rb) for p in R(32) for rb in (5, 6)] + [kv(p, 7) for p in R(32)]
    KC = lambda i: cells[16*i:16*i+16]
    UP = lambda h, i, cold=0: [item(T_UP, 4*h + r, 4*i + c + 32*cold, dep=C_X + 4*h + r, tgt=16, sig=C_H + 4*h + r) for c in R(4) for r in R(4)]
    Q = lambda h, i: [item(T_Q, 4*h + r, 4*i + c, dep=C_X + 4*h + r, tgt=16, sig=C_Q + 4*h + i) for c in R(4) for r in R(4)]
    DB = lambda h, cold=0: [item(T_DB, 4*h + r, c + 32*cold, dep=C_H + 4*h + r, tgt=28, sig=C_B + 4*h + r) for r in R(4) for c in R(4)]
    ot = lambda p: 32
    DA = lambda p: [item(T_DA, 2*p + r, c, dep=C_O + 2*p + r, tgt=ot(p)) for r in R(2) for c in R(8)]
    D4 = lambda pp: [item(T_DA4, 4*pp + r, c, dep=C_O + 4*pp + r, tgt=ot(2*pp)) for r in R(4) for c in R(4)]
    DK = lambda p, q: [item(T_DK, 2*p + r, c + 8*q, dep=C_O + 2*p + r, tgt=ot(p)) for r in R(2) for c in R(8)]
    A1 = lambda rq, h: [item(T_AT1, rq, c + 8*(2*h + i), dep=C_Q + 4 + c//2, tgt=16, sig=C_O + rq) for i in R(2) for c in R(8)]
    AH = lambda g, p: [item(T_AT1, 2*p + r, 2*g + c + 8*i, dep=C_Q + 4*(p//4) + g, tgt=16, sig=C_O + 2*p + r) for r in R(2) for i in R(4) for c in R(2)]
    AT = lambda p: [item(T_ATT, 2*p + r, c, dep=C_Q + 4*(p//4) + c//2, tgt=16, sig=C_O + 2*p + r) for r in R(2) for c in R(8)]
    PL = [item(T_POOL, 12, c & 7, dep=C_Q + 4 + (c & 7)//2, tgt=16, sig=C_O + 12) for c in R(16)]
    AG = lambda g: [item(T_ATT, rq, 2*g + c, dep=C_Q + g, tgt=16, sig=C_O + rq) for rq in R(8) for c in R(2)]
    lanes = [
        [KS(0), KB(0), UP(0,0,1), UP(1,0), Q(0,0), Q(1,0), AH(0,4), AH(0,5), AH(3,4), DA(4)],
        [KA_(0), UP(0,4,1), UP(1,4), KC(2), Q(0,2), AG(2), AH(1,0), AH(1,1), DA(0), PL],
        [KS(1), KB(1), UP(0,1,1), UP(1,1), Q(0,1), Q(1,1), AH(1,4), AH(1,5), DA(5)],
        [KA_(1), KC(0), KC(1), DB(0,1), PL],
        [KS(2), KB(2), UP(0,2,1), UP(1,2), KC(5), Q(1,2), AH(2,4), AH(2,5), AH(3,5), DA(3)],
        [KA_(2), UP(0,6,1), UP(1,6), KC(4), Q(1,3), AG(0), AH(1,2), AH(1,3), DA(2), PL],
        [KS(3), KB(3), UP(0,3,1), UP(1,3), DB(1), PL],
        [KA_(3), UP(0,5,1), UP(1,5), KC(3), Q(0,3), AG(3), DA(1), PL],
    ] + [[[x | 32 << 8 for x in PL], DK(6 + (i & 1), i >> 1)] for i in R(8)]
    tabs = []
    for g in range(8):
        tabs.append([[b[c & 15] for b in lanes[2*g + (c >> 4)]] for c in range(32)])
    n = max(len(l) for t in tabs for l in t) + 2
    return [[l + [item(0, 0, 0)]*(n - len(l)) for l in t] for t in tabs]

WARMCODE = True
DIAG = False
TOUCH = True
def entry(o, stamp):
    o('s_cmp_ge_u32 s2, 256')
    o('s_cbranch_scc1 L_exit')
    if stamp or DIAG: o('s_memrealtime s[94:95]')
    o(f's_load_dwordx2 s[4:5], s[0:1], {KA["ws"]}')
    o(f's_load_dwordx2 s[6:7], s[0:1], {KA["dbg"]}')
    if WARMCODE:
        o('s_getpc_b64 s[16:17]')
        o('L_entry_pc:')
        o('s_lshr_b32 s54, s2, 3')
        o('s_and_b32 s54, s54, 3')
        o('s_lshl_b32 s54, s54, 15')
        o('v_lshl_add_u32 v24, v0, 7, s54')
        o('v_min_u32 v24, L_code_end-L_entry_pc-4, v24')
        o('global_load_dword v28, v24, s[16:17]')
    o('v_lshrrev_b32 v24, 6, v0')
    o('s_getreg_b32 s12, hwreg(HW_REG_XCC_ID)')
    o('v_readfirstlane_b32 s14, v24')
    o('s_and_b32 s12, s12, 7')
    o('v_mov_b32 v25, 1')
    o('s_mov_b32 s15, 0')
    o('v_mov_b32 v27, 0')
    o('s_waitcnt lgkmcnt(0)')
    o('s_cmp_eq_u32 s14, 0')
    o('s_cbranch_scc0 L_en_w1')
    o('s_lshr_b32 s54, s2, 7')
    o('s_bfe_u32 s55, s2, 0x20005')
    o('s_and_b32 s56, s2, 31')
    s_expr(o, 57, [(54, R_C), (55, RING_SLOT), (56, 8192)], const=WS_RING)
    o('v_lshl_add_u32 v24, v0, 4, s57')
    o('v_add_u32 v26, 4096, v24')
    for i in range(4): o(f'v_mov_b32 v{32+i}, -1')
    for i in range(8): o(f'global_store_dwordx4 v{24 + 2*(i >> 2)}, v[32:35], s[4:5] offset:{(i & 3)*1024} sc1')
    o('s_lshl_b32 s54, s2, 7')
    o(f's_add_u32 s54, s54, {WS_PROG}')
    o('v_lshl_add_u32 v24, v0, 16, s54')
    o('s_mov_b64 exec, 3')
    o('global_store_dword v24, v27, s[4:5] sc1')
    o('s_waitcnt vmcnt(0)')
    o('s_mov_b64 exec, 1')
    o('s_mov_b32 s13, s12')
    o('L_en_try:')
    o('s_and_b32 s54, s13, 3')
    o('s_lshr_b32 s55, s13, 2')
    s_expr(o, 54, [(54, 4), (55, 128)])
    o('v_mov_b32 v24, s54')
    o(f'global_atomic_add v26, v24, v25, s[6:7] offset:{D_TICK*4} sc0')
    o('s_waitcnt vmcnt(0)')
    o('v_readfirstlane_b32 s11, v26')
    o('s_cmp_lt_u32 s11, 32')
    o('s_cbranch_scc1 L_en_got')
    o('s_add_u32 s13, s13, 1')
    o('s_and_b32 s13, s13, 7')
    o('s_cmp_lg_u32 s13, s12')
    o('s_cbranch_scc1 L_en_try')
    o('L_en_got:')
    o('s_min_u32 s11, s11, 255')
    o('s_lshl_b32 s54, s13, 8')
    o('s_or_b32 s54, s54, s11')
    o('v_mov_b32 v26, s54')
    o('ds_write_b32 v27, v26')
    o('s_mov_b64 exec, -1')
    o('s_branch L_en_j')
    o('L_en_w1:')
    o('L_en_j:')
    o('s_waitcnt lgkmcnt(0)')
    o('s_barrier')
    o('ds_read_b32 v26, v27')
    o('s_waitcnt lgkmcnt(0)')
    o('v_readfirstlane_b32 s54, v26')
    o('s_barrier')
    o('s_and_b32 s11, s54, 255')
    o('s_lshr_b32 s10, s54, 8')
    o('s_cmp_ge_u32 s11, 32')
    o('s_cbranch_scc1 L_exit')
    o('s_cmp_lt_u32 s10, 4')
    o('s_cbranch_scc1 L_chain')
    o('s_sub_u32 s10, s10, 4')
    o('s_branch L_bulk')
    o('L_exit:')
    o('s_endpgm')

KD = '''.amdhsa_kernel {n}
  .amdhsa_next_free_vgpr 512
  .amdhsa_next_free_sgpr 102
  .amdhsa_accum_offset 256
  .amdhsa_group_segment_fixed_size 0
  .amdhsa_kernarg_size 120
  .amdhsa_user_sgpr_count 2
  .amdhsa_user_sgpr_kernarg_segment_ptr 1
  .amdhsa_system_sgpr_workgroup_id_x 1
.end_amdhsa_kernel
'''
def compact(t):
    out = []
    for l in t.split('\n'):
        l = l.split(';')[0].strip()
        if l: out.append(l.replace(', ', ','))
    return '\n'.join(out) + '\n'

def build(stamp=False, DLY=None):
    global WARMCODE, TOUCH, DIAG
    DIAG = (DLY or {}).get('diag')
    TOUCH = (DLY or {}).get('touch', 0)
    WARMCODE = (DLY or {}).get('wc', 1)
    import gemm2
    gemm2.EXP = DLY or {}
    o = Out()
    entry(o, stamp)
    tabs = schedule()
    bulk.gen_bulk(o, tabs, stamp)
    chain.gen_chain(o, stamp=stamp, DLY=DLY)
    o('L_code_end:')
    k1, n1 = hazard.fix(o.text())
    o = Out(); bulk.emit_table(o, tabs)
    head = open(f'cdna_kernels/{NAME}.s.ref').read().split('; Override launch geometry')[0]
    s = head
    s += f'; @launch grid=(256,1,1) block=(256,1,1) lds=163840\n'
    s += '.amdgcn_target "amdgcn-amd-amdhsa--gfx950"\n.text\n'
    s += f'.globl {NAME}_kernel\n.p2align 8\n.type {NAME}_kernel,@function\n{NAME}_kernel:\n' + compact(k1)
    s += compact(o.text())
    s += '.section .rodata,"a"\n.p2align 6\n' + KD.format(n=NAME + '_kernel')
    return s

if __name__ == '__main__':
    s = build(DLY=eval(sys.argv[1]) if len(sys.argv) > 1 else None)
    open(sys.argv[2] if len(sys.argv) > 2 else f'cdna_kernels/{NAME}.s', 'w').write(s)
    print(len(s), 'bytes', s.count('\n'), 'lines')
```
